```python
import torch

def _softmax(x, axis=-1):
    return torch.softmax(x, dim=axis)
def _gelu(x):
    return torch.nn.functional.gelu(x, approximate="tanh")
def _silu(x):
    return torch.nn.functional.silu(x)
def _sigmoid(x):
    return torch.sigmoid(x)
def _layernorm(x, axis=-1, eps=1e-5):
    m = x.mean(dim=axis, keepdim=True)
    v = x.var(dim=axis, keepdim=True, unbiased=False)
    return (x - m) / torch.sqrt(v + eps)
def _scatter_add(tgt, idx, src, axis=0):
    return tgt.clone().index_add_(axis, idx, src)
def _segment_sum(src, seg, n):
    out = torch.zeros((n,) + src.shape[1:], dtype=src.dtype)
    return out.index_add_(0, seg, src)
def _pad(x, pw):
    flat = tuple(v for pair in reversed(pw) for v in pair)
    return torch.nn.functional.pad(x, flat)

kernel_name = 'gated_mix__sliding_local_dilated__moe_arch_mod__prompt'

def setup_inputs():

    _w = (lambda a: (lambda t: t.to(torch.bfloat16) if t.is_floating_point() else t)(torch.as_tensor(a)))
    def _A_setup():
        B, S, D = 1, 2048, 640
        return {
            "x": _w((lambda *s: torch.randn(*s, dtype=torch.bfloat16) * 0.05)(B, S, D)),
            "wqkv": _w((lambda *s: torch.randn(*s, dtype=torch.bfloat16) * 0.8)(D, 3 * D)),
            "wo": _w((lambda *s: torch.randn(*s, dtype=torch.bfloat16) * 0.05)(D, D)),
        }
    _A_in = _A_setup()

    def _B_setup():
        B, S, D, F, C = 1, 2048, 640, 1728, 2
        return {
            "x": _w((lambda *s: torch.randn(*s, dtype=torch.bfloat16) * 0.05)(B, S, D)),
            "w_r": _w((lambda *s: torch.randn(*s, dtype=torch.bfloat16) * 1.6)(D)),
            "w_gate": _w((lambda *s: torch.randn(*s, dtype=torch.bfloat16) * 0.4)(D, F)),
            "w_up": _w((lambda *s: torch.randn(*s, dtype=torch.bfloat16) * 0.4)(D, F)),
            "w_down": _w((lambda *s: torch.randn(*s, dtype=torch.bfloat16) * 0.4)(F, D)),
        }
    _B_in = _B_setup()

    return {
        "A_x": _A_in["x"],
        "A_wqkv": _A_in["wqkv"],
        "A_wo": _A_in["wo"],
        "B_x": _B_in["x"],
        "B_w_r": _B_in["w_r"],
        "B_w_gate": _B_in["w_gate"],
        "B_w_up": _B_in["w_up"],
        "B_w_down": _B_in["w_down"],
        "gate_w": _w((lambda *s: torch.randn(*s, dtype=torch.bfloat16) * 0.05)(640) * 16.0),
    }

def reference(A_x, A_wqkv, A_wo, B_x, B_w_r, B_w_gate, B_w_up, B_w_down, gate_w):
    def _A_ref(x, wqkv, wo):
        B, S, D = x.shape
        H = 32; Dh = D // H
        W, dil = 8, 2
        qkv = (lambda x, *d: x.permute(*d))((x @ wqkv).reshape(B, S, 3, H, Dh), 2, 0, 3, 1, 4)
        q, k, v = qkv[0], qkv[1], qkv[2]
        scale = Dh ** -0.5
        pos = torch.arange(S)
        off = torch.arange(W) * dil
        idx = pos[:, None] - off[None, :]
        mask = idx >= 0
        idx_c = torch.where(mask, idx, 0).reshape(-1)
        kg = k[:, :, idx_c, :].reshape(B, H, S, W, Dh)
        vg = v[:, :, idx_c, :].reshape(B, H, S, W, Dh)
        logits = torch.einsum("bhsd,bhswd->bhsw", q, kg) * scale
        logits = torch.where(mask[None, None, :, :], logits, -1e9)
        attn = _softmax(logits, axis=-1)
        o = torch.einsum("bhsw,bhswd->bhsd", attn, vg)
        return (lambda x, *d: x.permute(*d))(o, 0, 2, 1, 3).reshape(B, S, D) @ wo

    def _B_ref(x, w_r, w_gate, w_up, w_down):
        B, S, D = x.shape
        C = 2
        r = x @ w_r
        idx = torch.argsort(-r, axis=-1)[:, :C]
        idx_e = (lambda x, n, axis: torch.repeat_interleave(x, n, dim=axis))(idx.reshape(B, C, 1), D, axis=2)
        x_sel = (lambda x, i, axis: torch.take_along_dim(x, i, dim=axis))(x, idx_e, axis=1)
        g = _silu(x_sel @ w_gate)
        u = x_sel @ w_up
        y = (g * u) @ w_down
        r_sel = _sigmoid((lambda x, i, axis: torch.take_along_dim(x, i, dim=axis))(r, idx, axis=1))
        y = y * r_sel.reshape(B, C, 1)
        b_off = (torch.arange(B) * S).reshape(B, 1)
        flat_idx = (idx + b_off).reshape(B * C)
        zero = (x * 0.0).reshape(B * S, D)
        upd = _scatter_add(zero, flat_idx, y.reshape(B * C, D), axis=0)
        return x + upd.reshape(B, S, D)

    x = A_x
    g = _sigmoid((x * gate_w).sum(-1, keepdims=True))
    a = _A_ref(x, A_wqkv, A_wo)
    b = _B_ref(x, B_w_r, B_w_gate, B_w_up, B_w_down)
    return g * a + (1 - g) * b
```

```python
class Asm:
    def __init__(self):
        self.lines = []
        self._lbl = 0

    def __call__(self, s):
        for ln in s.strip("\n").split("\n"):
            self.lines.append("    " + ln.strip())

    def raw(self, s):
        self.lines.append(s)

    def label(self, name):
        self.lines.append(name + ":")

    def comment(self, s):
        self.lines.append("    ; " + s)

    def newlabel(self, base="L"):
        self._lbl += 1
        return "%s_%d" % (base, self._lbl)

    def text(self):
        return "\n".join(self.lines) + "\n"


class RegAlloc:
    def __init__(self, prefix, start=0, limit=256):
        self.prefix = prefix
        self.next = start
        self.limit = limit
        self.high = start

    def alloc(self, n=1, align=None):
        if align is None:
            align = 1 if n == 1 else (2 if n == 2 else 4)
        r = (self.next + align - 1) // align * align
        self.next = r + n
        assert self.next <= self.limit, "out of %s registers" % self.prefix
        self.high = max(self.high, self.next)
        return r

    def mark(self):
        return self.next

    def release(self, mark):
        self.next = mark


def vr(base, n=1):
    return "v%d" % base if n == 1 else "v[%d:%d]" % (base, base + n - 1)


def sr(base, n=1):
    return "s%d" % base if n == 1 else "s[%d:%d]" % (base, base + n - 1)


class LgkmQueue:
    def __init__(self, asm):
        self.asm = asm
        self.q = []

    def issue(self, tag):
        self.q.append(tag)

    def need(self, *tags):
        last = -1
        for i, t in enumerate(self.q):
            if t in tags:
                last = i
        if last < 0:
            return
        n = len(self.q) - 1 - last
        n = min(n, 15)
        self.asm("s_waitcnt lgkmcnt(%d)" % n)
        self.q = self.q[len(self.q) - n:] if n else []

    def drain(self, emit=True):
        if emit:
            self.asm("s_waitcnt lgkmcnt(0)")
        self.q = []
```

```python
import os
import struct
import sys

sys.path.insert(0, os.path.dirname(os.path.abspath(__file__)))
from asmdsl import Asm, RegAlloc, LgkmQueue, vr, sr

NAME = "gated_mix__sliding_local_dilated__moe_arch_mod__prompt"
STAMP = int(os.environ.get("STAMP", "0"))
EXTRA_EMPTY = int(os.environ.get("EXTRA_EMPTY", "0"))


def P(name, default):
    return int(os.environ.get(name, str(default)))


O_OFF = 0x100000
O_BYTES = 128 * 20480
G_OFF = 0x1000
SEL_OFF = 0x0
YP_OFF = 0x10000
NSL = 54
YP_BYTES = NSL * 2 * 640 * 4
STAMP_OFF = 0x400000

X_BYTES = 2048 * 1280
NEG = 0xF149F2CA
LOG2E = 0x3FB8AA3B


def f32bits(x):
    return struct.unpack("<I", struct.pack("<f", x))[0]


SCALE_L2E = f32bits((20 ** -0.5) * 1.4426950408889634)

HEADER = open(os.path.join(os.path.dirname(os.path.abspath(__file__)), "..", NAME + ".s.ref")).read().split("\n")
HEADER = [l for l in HEADER if l.startswith(";") and "@launch" not in l]


class R:
    def __init__(self, p, i):
        self.p, self.i = p, i

    def __str__(self):
        return "%s%d" % (self.p, self.i)

    def __format__(self, spec):
        return str(self)

    def __call__(self, n):
        return "%s[%d:%d]" % (self.p, self.i, self.i + n - 1)

    def __add__(self, k):
        return R(self.p, self.i + k)


class RA(RegAlloc):
    def a(self, n=1, align=None):
        return R(self.prefix, self.alloc(n, align))

    def many(self, k, n=1):
        return [self.a(n) for _ in range(k)]


def srd(a, d, base, nbytes, add=0):
    if add:
        a(f"s_add_u32 {d}, {base}, 0x{add:x}")
        a(f"s_addc_u32 {d+1}, {base+1}, 0")
    else:
        a(f"s_mov_b32 {d}, {base}")
        a(f"s_mov_b32 {d+1}, {base+1}")
    a(f"s_mov_b32 {d+2}, 0x{nbytes:x}")
    a(f"s_mov_b32 {d+3}, 0x20000")


STB = 84
STAMP_SEL = os.environ.get("STAMPS", "").split(",")


def stamp(a, name):
    if not STAMP:
        return
    if isinstance(name, int):
        a("s_memrealtime %s" % sr(STB + 2 * name, 2))
    elif name in STAMP_SEL:
        a("s_memrealtime %s" % sr(STB + 2 * (1 + STAMP_SEL.index(name)), 2))
    if not isinstance(name, int) and ("T" + name) in STAMP_SEL:
        a("s_memtime %s" % sr(STB + 2 * (1 + STAMP_SEL.index("T" + name)), 2))


def stamp_init(a):
    if STAMP:
        for i in range(8):
            a("s_mov_b64 %s, 0" % sr(STB + 2 * i, 2))
        stamp(a, 0)


def stamp_flush(a, kidx, s_ws, lbl):
    if not STAMP:
        return
    stamp(a, 7)
    if P("AMP", 0):
        k = P("AMPK", 7)
        a("s_waitcnt lgkmcnt(0)")
        if P("AMPC", 0):
            a("s_cmp_lt_u32 s2, 64")
            a("s_cbranch_scc%d %s" % (1 if P("AMPC", 0) == 1 else 0, lbl))
        a("s_cmp_eq_u32 %s, 0" % sr(STB + 2 * k))
        a("s_cbranch_scc1 %s" % lbl)
        a("s_sub_u32 s82, %s, %s" % (sr(STB + 2 * k), sr(STB)))
        a("s_mul_i32 s82, s82, %d" % P("AMP", 0))
        a("s_min_u32 s82, s82, 20000")
        a.label("K_AMP")
        a("s_memrealtime %s" % sr(STB + 2, 2))
        a("s_waitcnt lgkmcnt(0)")
        a("s_sub_u32 s83, %s, %s" % (sr(STB + 2), sr(STB)))
        a("s_cmp_lt_u32 s83, s82")
        a("s_cbranch_scc1 K_AMP")
        a.label(lbl)
        return
    a("s_mov_b64 exec, -1")
    a("v_cmp_eq_u32 vcc, %d, v0" % (64 * P("STAMP_WAVE", 0)))
    a("s_and_saveexec_b64 s[82:83], vcc")
    a("s_cbranch_execz %s" % lbl)
    a("s_waitcnt lgkmcnt(0)")
    if P("DBGSTAMP", 0):
        a("v_mov_b32 v1, 0")
        for i in range(8):
            a("v_mov_b32 v2, %s" % sr(STB + 2 * i))
            a(f"global_atomic_umax v1, v2, {(s_ws+(-2))(2)} offset:{i*4 - 128}")
        a("v_not_b32 v2, %s" % sr(STB))
        a(f"global_atomic_umax v1, v2, {(s_ws+(-2))(2)} offset:{32 - 128}")
        a.label(lbl)
        return
    a("s_lshl_b32 s82, s2, 6")
    a("s_add_u32 s82, s82, 0x%x" % (STAMP_OFF + kidx * 256 * 64))
    a("v_mov_b32 v1, s82")
    for i in range(8):
        a("v_mov_b32 v2, %s" % sr(STB + 2 * i))
        a("v_mov_b32 v3, %s" % sr(STB + 2 * i + 1))
        a(f"global_store_dwordx2 v1, v[2:3], {s_ws(2)} offset:{i*8}")
    a.label(lbl)


def wave_max_u32(a, v, t, sdst, stmp):
    src = v
    for dpp in ("quad_perm:[1,0,3,2]", "quad_perm:[2,3,0,1]", "row_half_mirror", "row_mirror"):
        a("s_nop 1")
        a(f"v_max_u32_dpp {t}, {src}, {src} {dpp} row_mask:0xf bank_mask:0xf")
        src = t
    a("s_nop 1")
    a(f"v_readlane_b32 {sdst}, {t}, 0")
    a(f"v_readlane_b32 {stmp}, {t}, 16")
    a(f"v_readlane_b32 {stmp+1}, {t}, 32")
    a(f"v_readlane_b32 {stmp+2}, {t}, 48")
    a("s_nop 3")
    a(f"s_max_u32 {sdst}, {sdst}, {stmp}")
    a(f"s_max_u32 {stmp+1}, {stmp+1}, {stmp+2}")
    a(f"s_max_u32 {sdst}, {sdst}, {stmp+1}")


def wave_top2(a, v, t, sk1, sk2, stmp):
    wave_max_u32(a, v, t, sk1, stmp)
    a(f"v_cmp_ne_u32 vcc, {sk1}, {v}")
    a("s_nop 1")
    a(f"v_cndmask_b32 {v}, 0, {v}, vcc")
    wave_max_u32(a, v, t, sk2, stmp)


def bf16r(a, d, s):
    a(f"v_cvt_pk_bf16_f32 {d}, {s}, {s}")
    a(f"v_lshlrev_b32 {d}, 16, {d}")


def sigmoid(a, d, s, t):
    a(f"v_mul_f32 {t}, 0x{LOG2E ^ 0x80000000:x}, {s}")
    a(f"v_exp_f32 {t}, {t}")
    a("s_nop 0")
    a(f"v_add_f32 {t}, 1.0, {t}")
    a(f"v_rcp_f32 {d}, {t}")
    a("s_nop 0")


MFMA = "v_mfma_f32_16x16x32_bf16"
```

```python
from common import *

KNAME = NAME + "_kernel"
SC_POLL = os.environ.get("SC_POLL", "sc1")
SC_FLAG = os.environ.get("SC_FLAG", "sc1")
SC_ST = os.environ.get("SC_ST", "sc1")
SC_LD = os.environ.get("SC_LD", "sc1")
FNT = os.environ.get("FNT", "")
FNTD = os.environ.get("FNTD", FNT)
FL_OFF = 0x80000
YFL = 160 * 512
KMB = YFL + 2048
ZBYTES = KMB + 54 * 512
NZ = 8
GW0 = 24
MT = 12
MH = 6
RROWS = (MT - 1) * 16
XREG = MT * 2048
SLOT = XREG + 16384
LA = 2
NS = 3
NCH = 10
PITCH = 272
TP = 16 * PITCH
QKV_BASE = 2 * SLOT
WO_L = 0
STG = 140288
SP = 144
YB = STG + 8 * 16 * SP
LDS_BYTES = 4 * SLOT
SPIN = 0x20000
SENT = P("SENT", 1)
ZW2 = 48
ZW = 16


def gen(a):
    a.raw(".p2align 12")
    a.raw(".p2align 8")
    a.raw(f".globl {KNAME}")
    a.raw(f".type {KNAME},@function")
    a.label(KNAME)
    S = RA("s", 3, 82 if STAMP else 100)
    V = RA("v", 1, 256)
    s_tmp = S.a()
    s_pws = S.a(4)
    s_pwo = S.a(2)
    s_po = S.a(2)
    sX, sW, sO, sWO = S.many(4, 4)
    s_xcd, s_i, s_w, s_rt, s_hg, s_t2, s_n = S.many(7)
    s_half = S.a()
    s_fl = S.a()
    s_pc = S.a(2)
    v_lane, v_t0, v_t1, v_t2, v_t3, v_pf, v_smp = V.many(7)
    DBG, WS = s_pws, s_pws + 2

    s_rt2, s_ct = S.many(2)
    s_mb = S.a()
    mS, mV = S.mark(), V.mark()
    s_lw, s_xb, s_m0x, s_m0w, s_sox, s_sow, s_kc, s_wb, s_xk, s_so1 = S.many(10)
    v_xo = V.many(2)
    v_wo = V.many(2)
    ORDER = [("w", 0), ("x", 0), ("w", 1), ("x", 1), ("x", 2), ("w", 2), ("x", 3), ("w", 3), ("x", 4), ("x", 5)]
    HS = P("HSPLIT", 5)

    def dma_head():
        a(f"s_lshl_b32 {s_sox}, {s_kc}, 7")
        a(f"s_mul_i32 {s_sow}, {s_kc}, {64*3840}")
        a(f"s_add_u32 {s_xk}, {s_xb}, {s_sox}")
        a(f"s_add_u32 {s_sow}, {s_sow}, {s_wb}")
        a(f"s_add_u32 {s_kc}, {s_kc}, 1")
        a(f"s_cmp_eq_u32 {s_kc}, 10")
        a(f"s_cselect_b32 {s_kc}, 0, {s_kc}")

    def dma_part(c, lo, hi, head=True):
        if c >= NCH:
            return
        sl = ((c + 1) % NS) * SLOT
        if lo == 0 and head:
            dma_head()
        for kind, j in ORDER[lo:hi]:
            if kind == "w":
                a(f"s_add_u32 m0, {s_m0w}, {sl + j*1024}")
                a(f"s_add_u32 {s_so1}, {s_sow}, {j*4*3840}")
                a(f"buffer_load_dwordx4 {v_wo[j >> 1]}, {sW(4)}, {s_so1} offen lds")
            else:
                a(f"s_add_u32 m0, {s_m0x}, {sl + j*1024}")
                if j == 0:
                    a(f"s_max_i32 {s_so1}, {s_xk}, {s_sox}")
                else:
                    a(f"s_add_u32 {s_so1}, {s_xk}, {j*10240}")
                    if j == 1:
                        a(f"s_max_i32 {s_so1}, {s_so1}, {s_sox}")
                a(f"buffer_load_dwordx4 {v_xo[j & 1]}, {sX(4)}, {s_so1} offen lds")

    def karg_rest():
        a(f"s_load_dwordx4 {s_pws(4)}, s[0:1], 80")
        a(f"s_load_dwordx2 {s_pwo(2)}, s[0:1], 16")
        a(f"s_load_dwordx2 {s_po(2)}, s[0:1], 72")

    def common_ids():
        a(f"v_and_b32 {v_lane}, 63, v0")
        a(f"v_mov_b32 {v_smp}, 0")
        a(f"s_and_b32 {s_xcd}, s2, 7")
        a(f"s_lshr_b32 {s_i}, s2, 3")
        a(f"s_xor_b32 {s_w}, {s_w}, 4")
        a(f"s_lshr_b32 {s_n}, {s_i}, 3")
        a(f"s_lshl_b32 {s_n}, {s_n}, 2")
        a(f"s_and_b32 {s_tmp}, {s_i}, 3")
        a(f"s_add_u32 {s_n}, {s_n}, {s_tmp}")
        a(f"s_add_u32 {s_n}, {s_n}, 4")
        a(f"s_bitcmp1_b32 {s_i}, 2")
        a(f"s_cselect_b32 {s_n}, -1, {s_n}")
        a(f"s_cmp_lt_u32 {s_i}, 8")
        a(f"s_cselect_b32 {s_n}, {s_i}, {s_n}")
        a(f"s_lshl_b32 {s_rt2}, {s_xcd}, 1")
        a(f"s_cmp_ge_u32 {s_n}, 10")
        a(f"s_addc_u32 {s_rt2}, {s_rt2}, 0")
        a(f"s_sub_u32 {s_ct}, {s_n}, 10")
        a(f"s_cmp_ge_u32 {s_n}, 10")
        a(f"s_cselect_b32 {s_ct}, {s_ct}, {s_n}")
        a(f"s_mul_i32 {s_mb}, {s_xcd}, 20")
        a(f"s_add_u32 {s_mb}, {s_mb}, {s_n}")
        a(f"s_and_b32 {s_mb}, {s_mb}, 255")
        a(f"s_lshl_b32 {s_mb}, {s_mb}, 9")
        a(f"s_add_u32 {s_mb}, {s_mb}, {FL_OFF}")

    s_pos = s_half

    def main_ids():
        a(f"s_lshr_b32 {s_rt}, {s_xcd}, 1")
        a(f"s_mul_i32 {s_rt}, {s_rt}, 3")
        a(f"s_lshr_b32 {s_tmp}, {s_i}, 3")
        a(f"s_add_u32 {s_rt}, {s_rt}, {s_tmp}")
        a(f"s_sub_u32 {s_rt}, {s_rt}, 1")
        a(f"s_and_b32 {s_hg}, {s_xcd}, 1")
        a(f"s_lshl_b32 {s_hg}, {s_hg}, 3")
        a(f"s_and_b32 {s_tmp}, {s_i}, 7")
        a(f"s_lshl_b32 {s_tmp}, {s_tmp}, 2")
        a(f"s_lshr_b32 {s_tmp}, 0x64317520, {s_tmp}")
        a(f"s_and_b32 {s_tmp}, {s_tmp}, 7")
        a(f"s_add_u32 {s_hg}, {s_hg}, {s_tmp}")
        a(f"s_and_b32 {s_pos}, {s_i}, 3")
        a(f"s_and_b32 {s_tmp}, {s_i}, 4")
        a(f"s_lshl_b32 {s_tmp}, {s_tmp}, 1")
        a(f"s_add_u32 {s_pos}, {s_pos}, {s_tmp}")
        a(f"s_and_b32 {s_tmp}, {s_xcd}, 1")
        a(f"s_lshl_b32 {s_tmp}, {s_tmp}, 2")
        a(f"s_add_u32 {s_pos}, {s_pos}, {s_tmp}")

    a("s_cmp_ge_u32 s2, 256")
    a("s_cbranch_scc1 K_EXIT")
    a(f"s_load_dwordx2 {sX(2)}, s[0:1], 0")
    a(f"s_load_dwordx2 {sW(2)}, s[0:1], 8")
    karg_rest()
    a(f"v_readfirstlane_b32 {s_w}, v0")
    stamp_init(a)
    a(f"s_mov_b32 {sX+2}, 0x{X_BYTES:x}")
    a(f"s_mov_b32 {sX+3}, 0x20000")
    a(f"s_lshr_b32 {s_w}, {s_w}, 6")
    a("s_cmp_ge_u32 s2, 64")
    a("s_cbranch_scc1 K_MAIN")
    a(f"s_getpc_b64 {s_pc(2)}")
    a.label("K_PC")
    a("s_lshr_b32 s3, s2, 3")
    a("s_mul_i32 s3, s3, K_CPL")
    a(f"v_add_u32 {v_t0}, s3, v0")
    a(f"v_lshlrev_b32 {v_t0}, 7, {v_t0}")
    a(f"v_min_u32 {v_t0}, K_CODE_END-K_PC-4, {v_t0}")
    a(f"v_cmp_gt_u32 vcc, K_CPL, v0")
    a("s_and_saveexec_b64 %s, vcc" % sO(2))
    a("s_cbranch_execz K_NOPF")
    a(f"global_load_dword {v_pf}, {v_t0}, {s_pc(2)}")
    a.label("K_NOPF")
    a("s_mov_b64 exec, -1")
    a("s_branch K_OTHER")
    a.label("K_MAIN")
    a(f"s_cmp_ge_u32 {s_w}, 4")
    a("s_cbranch_scc1 K_OTHER")
    stamp(a, "role")
    PERM_ = [0, 2, 5, 7, 1, 3, 4, 6]
    tab = lambda L: sum(v << (4 * k) for k, v in enumerate(L))
    a(f"s_bfe_u32 {s_tmp}, s2, 0x20001")
    a(f"s_mul_i32 {s_xb}, {s_tmp}, {3*RROWS*1280}")
    a(f"s_lshr_b32 {s_t2}, s2, 6")
    a(f"s_mul_i32 {s_tmp}, {s_t2}, {RROWS*1280}")
    a(f"s_add_u32 {s_xb}, {s_xb}, {s_tmp}")
    a(f"s_mul_i32 {s_tmp}, {s_w}, {48*1280}")
    a(f"s_add_u32 {s_xb}, {s_xb}, {s_tmp}")
    a(f"s_sub_u32 {s_xb}, {s_xb}, {(RROWS+16)*1280}")
    a(f"v_bfe_u32 {v_t1}, v0, 4, 2")
    a(f"s_lshr_b32 {s_tmp}, s2, 1")
    a(f"s_and_b32 {s_tmp}, {s_tmp}, 28")
    a(f"s_or_b32 {s_tmp}, {s_tmp}, 0x40000")
    a(f"v_lshlrev_b32 {v_t0}, 1, {v_t1}")
    a(f"v_sub_u32 {v_t0}, v0, {v_t0}")
    a(f"s_bfe_u32 {s_kc}, 0x{tab([(P('ROTH', 3) * p) % 10 for p in PERM_]):x}, {s_tmp}")
    a(f"s_bfe_u32 {s_hg}, 0x{tab(PERM_):x}, {s_tmp}")
    a(f"v_and_b32 {v_t0}, 15, {v_t0}")
    a(f"v_mul_u32_u24 {v_t3}, 3840, {v_t1}")
    a(f"s_and_b32 {s_tmp}, s2, 7")
    a(f"s_lshl2_add_u32 {s_tmp}, {s_t2}, {s_tmp}")
    a(f"s_add_u32 {s_kc}, {s_kc}, {s_tmp}")
    a(f"s_mov_b32 {s_t2}, 0x00a55a")
    a(f"v_subrev_u32 {v_t3}, 160, {v_t3}")
    a(f"s_mul_i32 {s_tmp}, {s_kc}, 205")
    a(f"s_lshr_b32 {s_tmp}, {s_tmp}, 11")
    a(f"s_mul_i32 {s_tmp}, {s_tmp}, 10")
    a(f"s_sub_u32 {s_kc}, {s_kc}, {s_tmp}")
    for jj in range(2):
        if jj:
            a(f"v_xor_b32 {v_t0}, 8, {v_t0}")
        a(f"v_mul_u32_u24 {v_t2}, 52, {v_t0}")
        a(f"v_lshrrev_b32 {v_t2}, 5, {v_t2}")
        a(f"v_and_b32 {v_t2}, 24, {v_t2}")
        a(f"v_bfe_u32 {v_t2}, {s_t2}, {v_t2}, 8")
        a(f"v_add_u32 {v_t2}, {v_t2}, {v_t0}")
        a(f"v_lshl_add_u32 {v_wo[jj]}, {v_t2}, 4, {v_t3}")
        a(f"v_add_u32 {v_t2}, 1, {v_t0}")
        a(f"v_lshrrev_b32 {v_t2}, 4, {v_t2}")
        a(f"v_lshl_add_u32 {v_wo[jj]}, {v_t2}, 28, {v_wo[jj]}")
    a("s_bitcmp1_b32 s2, 0")
    a(f"s_cselect_b32 {s_tmp}, 8, 0")
    a(f"s_add_u32 {s_hg}, {s_hg}, {s_tmp}")
    a(f"s_mul_i32 {s_wb}, {s_hg}, 80")
    a(f"s_mul_i32 {s_tmp}, {s_w}, {16*3840}")
    a(f"s_add_u32 {s_wb}, {s_wb}, {s_tmp}")
    a(f"s_lshl_b32 {s_m0w}, {s_w}, 12")
    a(f"s_add_u32 {s_m0w}, {s_m0w}, {XREG}")
    a(f"s_mul_i32 {s_m0x}, {s_w}, 6144")
    a(f"s_mov_b32 {sW+2}, 0x{640*3840:x}")
    a(f"s_mov_b32 {sW+3}, 0x20000")
    a(f"v_xor_b32 {v_t1}, {v_t1}, v0")
    a(f"v_and_b32 {v_t1}, 7, {v_t1}")
    a(f"v_bfe_u32 {v_t0}, v0, 3, 3")
    a(f"v_mul_u32_u24 {v_t0}, 1280, {v_t0}")
    a(f"v_lshl_add_u32 {v_xo[0]}, {v_t1}, 4, {v_t0}")
    a(f"v_xor_b32 {v_xo[1]}, 64, {v_xo[0]}")
    dma_head()
    stamp(a, "setup")
    a("s_waitcnt lgkmcnt(0)")
    stamp(a, "karg")
    dma_part(0, 0, 10, head=False)
    dma_part(1, 0, HS)
    stamp(a, "issued")
    a(f"s_mov_b32 {s_lw}, {s_w}")
    if not P("LLATE", 0):
        common_ids()
        main_ids()
    a("s_branch K_LOADER")

    a.label("K_OTHER")
    common_ids()
    a(f"v_mov_b32 {v_t1}, {YB + 16}")
    a(f"ds_write2_b32 {v_t1}, {v_smp}, {v_smp} offset0:6 offset1:7")
    a(f"ds_write2_b32 {v_t1}, {v_smp}, {v_smp} offset0:8 offset1:9")
    a(f"ds_write2_b32 {v_t1}, {v_smp}, {v_smp} offset0:0 offset1:1")
    a(f"ds_write2_b32 {v_t1}, {v_smp}, {v_smp} offset0:2 offset1:3")
    a(f"ds_write2_b32 {v_t1}, {v_smp}, {v_smp} offset0:4 offset1:5")
    a(f"s_cmp_lt_u32 {s_i}, 8")
    a("s_cbranch_scc1 K_AUX")
    a("s_branch K_CONS")
    a.label("K_LOADER")

    def zpoll(k):
        a(f"v_mov_b32 {v_t2}, {ZW2*4}")
        a(f"s_mov_b32 {s_tmp}, {SPIN}")
        a.label(f"K_ZPOLL{k}")
        a(f"v_readfirstlane_b32 {s_t2}, {v_smp}")
        a("s_nop 3")
        a(f"s_sub_u32 {s_tmp}, {s_tmp}, 1")
        a(f"s_cselect_b32 {s_t2}, {NZ}, {s_t2}")
        a(f"s_cmp_ge_u32 {s_t2}, {NZ}")
        a(f"s_cbranch_scc1 K_ZOK{k}")
        if k == 7:
            a(f"s_sleep {P('ZSLEEP', 8)}")
        a(f"global_load_dword {v_smp}, {v_t2}, {DBG(2)} {SC_POLL}")
        a("s_waitcnt vmcnt(0)")
        a(f"s_branch K_ZPOLL{k}")
        a.label(f"K_ZOK{k}")

    def mb_sample(vaddr):
        a(f"v_lshl_add_u32 {vaddr}, {v_lane}, 2, {s_mb}")
        a(f"global_load_dword {v_smp}, {vaddr}, {WS(2)} offset:256 {SC_POLL}")
        a(f"v_and_b32 {vaddr}, 0xfffffe04, {vaddr}")
        a(f"global_load_dword {v_pf}, {vaddr}, {WS(2)} offset:128 {SC_POLL}")

    def wo_voff(v_wo):
        a(f"v_lshrrev_b32 {v_t0}, 3, {v_lane}")
        a(f"v_mul_u32_u24 {v_t0}, 1280, {v_t0}")
        a(f"v_lshrrev_b32 {v_t1}, 2, {v_lane}")
        a(f"v_and_b32 {v_t1}, 4, {v_t1}")
        a(f"v_and_b32 {v_t2}, 7, {v_lane}")
        a(f"v_xor_b32 {v_t1}, {v_t1}, {v_t2}")
        a(f"v_lshl_add_u32 {v_t0}, {v_t1}, 4, {v_t0}")
        a(f"s_lshl_b32 {s_t2}, {s_ct}, 7")
        a(f"v_add_u32 {v_wo}, {s_t2}, {v_t0}")
        a(f"v_lshrrev_b32 {v_t3}, 5, {v_lane}")
        a(f"v_mul_u32_u24 {v_t3}, {2*51200 - 4*1280}, {v_t3}")
        a(f"v_add_u32 {v_t3}, {v_t3}, {v_wo}")

    def wo_blocks(v_wo, s_k, late, s_src, s_dst, s_o, thr=0):
        a(f"s_lshl_b32 {s_src}, {s_k}, 2")
        a(f"s_lshr_b32 {s_src}, 0x{0x6431 if late else 0x7520:x}, {s_src}")
        a(f"s_and_b32 {s_src}, {s_src}, 7")
        a(f"s_mul_i32 {s_src}, {s_src}, 51200")
        a(f"s_lshl_b32 {s_dst}, {s_k}, 12")

        def one(v, so, m):
            a(f"s_add_u32 {s_o}, {s_src}, {so}")
            a(f"s_add_u32 m0, {s_dst}, {WO_L + late*40960 + m}")
            a(f"s_waitcnt vmcnt({thr-1})" if thr else "s_nop 0")
            a(f"buffer_load_dwordx4 {v}, {sWO(4)}, {s_o} offen lds")

        for b in range(2):
            for r in range(4):
                one(v_wo, b*8*51200 + (0, 8, 20, 28)[r]*1280, b*20480 + r*1024)
        a(f"s_and_b32 {s_src}, {s_k}, 1")
        a(f"s_mul_i32 {s_src}, {s_src}, {(3 if late else 5)*51200}")
        a(f"s_lshr_b32 {s_dst}, {s_k}, 1")
        a(f"s_mul_i32 {s_dst}, {s_dst}, {20*1280}")
        a(f"s_add_u32 {s_src}, {s_src}, {s_dst}")
        a(f"s_lshl_b32 {s_dst}, {s_k}, 10")
        for b in range(2):
            one(v_t3, (b*8 + late)*51200 + 16*1280, b*20480 + 16384)

    v_row, v_g, v_r, v_c = V.many(4)
    v_lo, v_hi, v_va, v_os, v_ot, v_neg, v_wv, v_fo, v_ow, v_ox, v_or, v_hq = V.many(12)
    v_b0, v_b1, v_bp, v_ps = V.many(4, 4)
    s_tg = S.a()
    s_g0 = S.a(2)
    s_c = S.a(2)
    s_sc = S.a(2)
    s_oo = S.many(3)

    def lane_consts():
        a(f"v_and_b32 {v_row}, 15, {v_lane}")
        a(f"v_lshrrev_b32 {v_g}, 4, {v_lane}")
        a(f"v_bfe_u32 {v_r}, {v_lane}, 2, 2")
        a(f"v_and_b32 {v_c}, 3, {v_lane}")

    def att_consts():
        srd(a, sO, WS, O_BYTES, O_OFF)
        a(f"s_lshr_b32 {s_tmp}, {s_w}, 1")
        a(f"s_mul_i32 {s_tmp}, {s_tmp}, 3")
        a(f"s_mul_i32 {s_tg}, {s_rt}, {MT-1}")
        a(f"s_add_u32 {s_tg}, {s_tg}, {s_tmp}")
        a(f"s_mul_i32 {s_tmp}, {s_tmp}, {TP}")
        a(f"s_and_b32 {s_t2}, {s_w}, 1")
        a(f"s_mul_i32 {s_c}, {s_t2}, 40")
        a(f"s_add_u32 {s_tmp}, {s_tmp}, {s_c}")
        a(f"s_add_u32 {s_tmp}, {s_tmp}, {QKV_BASE}")
        a(f"v_mul_u32_u24 {v_hi}, {PITCH}, {v_row}")
        a(f"v_lshl_add_u32 {v_lo}, {v_g}, 3, {v_hi}")
        a(f"v_add_u32 {v_lo}, {s_tmp}, {v_lo}")
        a(f"v_add3_u32 {v_hi}, {v_hi}, 32, {s_tmp}")
        a(f"s_sub_u32 {s_c}, {240 - 160 - 32}, {s_c}")
        a(f"v_add_u32 {v_t0}, {s_c}, {v_hi}")
        a(f"v_cmp_eq_u32 vcc, 0, {v_g}")
        a("s_nop 1")
        a(f"v_cndmask_b32 {v_hq}, {v_t0}, {v_hi}, vcc")
        a(f"v_lshl_add_u32 {v_va}, {v_g}, 2, {v_r}")
        a(f"v_mul_u32_u24 {v_va}, {PITCH}, {v_va}")
        a(f"v_lshl_add_u32 {v_va}, {v_c}, 3, {v_va}")
        a(f"v_add_u32 {v_va}, {s_tmp}, {v_va}")
        a(f"v_mov_b32 {v_neg}, 0x{NEG:x}")
        a(f"v_lshlrev_b32 {v_t0}, 2, {v_g}")
        a(f"v_sub_u32 {v_t0}, {v_row}, {v_t0}")
        a(f"s_cmp_eq_u32 {s_tg}, 0")
        a(f"s_cselect_b32 {s_tmp}, 0x{NEG:x}, 0")
        for r in range(4):
            a(f"v_subrev_u32 {v_t1}, {r}, {v_t0}")
            a(f"v_and_b32 {v_t2}, 0x80000001, {v_t1}")
            a(f"v_cmp_eq_u32 vcc, 0, {v_t2}")
            a("s_nop 1")
            a(f"v_cndmask_b32 {v_b1+r}, {v_neg}, 0, vcc")
            a(f"v_cmp_eq_u32 vcc, 0x80000000, {v_t2}")
            a("s_nop 1")
            a(f"v_cndmask_b32 {v_b0+r}, {v_neg}, 0, vcc")
            a(f"v_add_f32 {v_bp+r}, {s_tmp}, {v_b0+r}")
        for p, vb in enumerate((v_b0, v_b1)):
            for k in range(2):
                lo = 0x0c0c0000 | ((2 * k + 1) << 8) | (2 * k)
                hi = 0x00000c0c | ((2 * k + 1) << 24) | ((2 * k) << 16)
                a(f"v_mov_b32 {v_t1}, 0x0c0c0c0c")
                a(f"v_mov_b32 {v_t2}, 0x{lo:x}")
                a(f"v_cmp_eq_u32 vcc, 0, {vb+2*k}")
                a(f"v_mov_b32 {v_t3}, 0x{hi:x}")
                a("s_nop 0")
                a(f"v_cndmask_b32 {v_t1}, {v_t1}, {v_t2}, vcc")
                a(f"v_cmp_eq_u32 vcc, 0, {vb+2*k+1}")
                a("s_nop 1")
                a(f"v_cndmask_b32 {v_ps+2*p+k}, {v_t1}, {v_t3}, vcc")
        a(f"s_mul_i32 {s_tmp}, {s_rt}, 11")
        a(f"s_add_u32 {s_t2}, {s_tmp}, 10")
        a(f"s_lshr_b32 {s_tmp}, {s_tmp}, 3")
        a(f"s_lshr_b32 {s_t2}, {s_t2}, 3")
        a(f"s_min_u32 {s_t2}, {s_t2}, 15")
        a(f"s_sub_u32 {s_t2}, {s_t2}, {s_tmp}")
        a(f"s_add_u32 {s_t2}, {s_t2}, 1")
        a(f"s_mul_i32 {s_t2}, {s_t2}, 10")
        a(f"s_bfm_b32 {s_fl}, {s_t2}, 0")
        a(f"v_mul_u32_u24 {v_t0}, 205, {v_lane}")
        a(f"v_lshrrev_b32 {v_t0}, 11, {v_t0}")
        a(f"v_add_u32 {v_t0}, {s_tmp}, {v_t0}")
        a(f"v_mul_u32_u24 {v_t0}, {8*187}, {v_t0}")
        a(f"v_lshrrev_b32 {v_t0}, 11, {v_t0}")
        a(f"v_sub_u32 {v_t0}, {s_rt}, {v_t0}")
        a(f"v_and_b32 {v_t0}, 1, {v_t0}")
        a(f"v_lshlrev_b32 {v_t0}, 6, {v_t0}")
        a(f"v_lshl_add_u32 {v_t0}, {v_lane}, 9, {v_t0}")
        a(f"s_mul_i32 {s_tmp}, {s_tmp}, 5120")
        a(f"s_lshl_b32 {s_t2}, {s_pos}, 2")
        a(f"s_add_u32 {s_tmp}, {s_tmp}, {s_t2}")
        a(f"s_add_u32 {s_tmp}, {s_tmp}, {FL_OFF}")
        a(f"v_add_u32 {v_fo}, {s_tmp}, {v_t0}")
        if P("ODENSE", 1):
            OB = STG
            a(f"s_lshr_b32 {s_tmp}, {s_w}, 1")
            a(f"s_mul_i32 {s_tmp}, {s_tmp}, 3")
            a(f"s_and_b32 {s_t2}, {s_w}, 1")
            a(f"s_lshl_b32 {s_t2}, {s_t2}, 3")
            a(f"v_lshl_add_u32 {v_t0}, {v_lane}, 4, {s_t2}")
            a(f"s_lshl_b32 {s_t2}, {s_tmp}, 10")
            a(f"s_add_u32 {s_t2}, {s_t2}, {OB}")
            a(f"v_add_u32 {v_ow}, {s_t2}, {v_t0}")
            a(f"s_lshl_b32 {s_t2}, {s_tmp}, 8")
            a(f"s_add_u32 {s_t2}, {s_t2}, {OB + 12288}")
            a(f"v_add_u32 {v_ox}, {s_t2}, {v_t0}")
            a(f"s_lshl_b32 {s_t2}, {s_w}, 10")
            a(f"s_add_u32 {s_t2}, {s_t2}, {OB}")
            a(f"v_lshl_add_u32 {v_or}, {v_lane}, 4, {s_t2}")
            a(f"s_mul_i32 {s_oo[0]}, {s_rt}, {MT-1}")
            a(f"s_add_u32 {s_tmp}, {s_oo[0]}, {s_w}")
            a(f"s_lshr_b32 {s_t2}, {s_tmp}, 2")
            a(f"s_mul_i32 {s_t2}, {s_t2}, {80 - 4}")
            a(f"s_add_u32 {s_tmp}, {s_tmp}, {s_t2}")
            a(f"s_lshr_b32 {s_oo[1]}, {s_pos}, 2")
            a(f"s_add_u32 {s_t2}, {s_oo[1]}, {s_pos}")
            a(f"s_lshl2_add_u32 {s_tmp}, {s_t2}, {s_tmp}")
            a(f"s_lshl_b32 {s_tmp}, {s_tmp}, 10")
            a(f"v_lshl_add_u32 {v_os}, {v_lane}, 4, {s_tmp}")
            a(f"v_add_u32 {v_t1}, {2*81920}, {v_os}")
            a(f"s_sub_u32 {s_tmp}, {s_w}, 4")
            a(f"s_lshl_b32 {s_tmp}, {s_tmp}, 2")
            a(f"v_add_u32 {v_t2}, {s_tmp}, {v_g}")
            a(f"v_add_u32 {v_t3}, {s_oo[0]}, {v_t2}")
            a(f"v_lshrrev_b32 {v_t0}, 2, {v_t3}")
            a(f"v_mul_u32_u24 {v_t0}, {80 - 4}, {v_t0}")
            a(f"v_add_lshl_u32 {v_t0}, {v_t0}, {v_t3}, 10")
            a(f"v_lshl_add_u32 {v_t0}, {v_row}, 4, {v_t0}")
            a(f"s_mul_i32 {s_t2}, {s_oo[1]}, {5*4096 - 1024}")
            a(f"s_lshl_b32 {s_tmp}, {s_pos}, 8")
            a(f"s_add_u32 {s_t2}, {s_t2}, {s_tmp}")
            a(f"s_add_u32 {s_t2}, {s_t2}, {4*4096}")
            a(f"v_add_u32 {v_t0}, {s_t2}, {v_t0}")
            a(f"v_mov_b32 {v_t3}, 0x10000000")
            a(f"v_cmp_gt_u32 vcc, {MT-1}, {v_t2}")
            a("s_nop 1")
            a(f"v_cndmask_b32 {v_t0}, {v_t3}, {v_t0}, vcc")
            a(f"s_cmp_lt_u32 {s_w}, 3")
            a("s_cselect_b64 vcc, -1, 0")
            a("s_nop 1")
            a(f"v_cndmask_b32 {v_ot}, {v_t0}, {v_t1}, vcc")
        a(f"s_mov_b64 {s_g0(2)}, 0xffff")
        a(f"s_mov_b32 {s_c}, 0x{LOG2E if P('RLOG', 1) else SCALE_L2E:x}")
        a(f"s_mov_b32 {s_c+1}, {s_c}")
        a(f"s_mov_b32 {s_sc}, 0x{f32bits(20 ** -0.5):x}")
        a(f"s_mov_b32 {s_sc+1}, {s_sc}")

    mV2 = V.mark()
    mS2 = S.mark()

    def loader_consts():
        if P("LLATE", 0):
            common_ids()
            main_ids()
        srd(a, sWO, s_pwo, 640 * 1280)
        lane_consts()
        att_consts()

    PZI = P("PZI", 8)
    LCI = P("LCI", 0)
    if not P("LLATE", 0):
        loader_consts()
    for c in range(NCH):
        outst = (HS if c + 1 < NCH else 0) + (4 if SENT and c == PZI + 1 else 0)
        a(f"s_waitcnt vmcnt({outst})")
        stamp(a, f"w{c}")
        a("s_barrier")
        stamp(a, f"c{c}")
        dma_part(c + 1, HS, 10)
        dma_part(c + 2, 0, HS)
        stamp(a, f"i{c}")
        if P("LLATE", 0) and c == LCI:
            loader_consts()
        if SENT and c == PZI:
            pz = V.a(4)
            for e in range(4):
                a(f"v_mov_b32 {pz+e}, -1")
            a(f"v_subrev_u32 {v_t0}, 81920, {v_os}")
            a(f"s_cmp_eq_u32 {s_w}, 7")
            a(f"s_cselect_b32 {s_tmp}, 0, 81920")
            a(f"buffer_store_dwordx4 {pz(4)}, {v_t0}, {sO(4)}, 0 offen {SC_ST}")
            a(f"buffer_store_dwordx4 {pz(4)}, {v_os}, {sO(4)}, 0 offen {SC_ST}")
            a(f"buffer_store_dwordx4 {pz(4)}, {v_os}, {sO(4)}, {s_tmp} offen {SC_ST}")
            a(f"buffer_store_dwordx4 {pz(4)}, {v_ot}, {sO(4)}, 0 offen {SC_ST}")
    a(f"s_cmp_eq_u32 {s_w}, 4")
    a("s_cbranch_scc1 K_NOSMP")
    a(f"v_mov_b32 {v_t0}, {ZW2*4}")
    a(f"global_load_dword {v_smp}, {v_t0}, {DBG(2)} {SC_POLL}")
    a.label("K_NOSMP")
    a(f"s_cmp_eq_u32 {s_n}, -1")
    a("s_cbranch_scc1 K_NOLT")
    wo_voff(v_wv)
    wo_blocks(v_wv, s_lw, 0, s_sox, s_sow, s_tmp)
    a("s_waitcnt vmcnt(10)")
    a("s_barrier")
    wo_blocks(v_wv, s_lw, 1, s_sox, s_sow, s_tmp)
    a("s_branch K_JOIN2")
    a.label("K_NOLT")
    a("s_waitcnt vmcnt(0)")
    stamp(a, "loopend")
    a("s_branch K_JOIN")

    V.release(mV2)
    S.release(mS2)
    a.label("K_CONS")
    main_ids()
    lane_consts()
    s_mh, s_nh = S.many(2)
    a(f"s_lshr_b32 {s_mh}, {s_w}, 1")
    a(f"s_and_b32 {s_nh}, {s_w}, 1")
    v_aa = [V.many(2) for _ in range(2)]
    v_ba = [V.many(4) for _ in range(2)]
    v_wa = V.a()
    a(f"v_lshrrev_b32 {v_t0}, 1, {v_row}")
    a(f"v_xor_b32 {v_t0}, {v_t0}, {v_g}")
    a(f"v_lshlrev_b32 {v_t0}, 4, {v_t0}")
    a(f"v_lshl_add_u32 {v_t0}, {v_row}, 7, {v_t0}")
    a(f"s_mul_i32 {s_tmp}, {s_mh}, {MH*2048}")
    a(f"v_add_u32 {v_aa[0][0]}, {s_tmp}, {v_t0}")
    a(f"v_xor_b32 {v_aa[0][1]}, 64, {v_aa[0][0]}")
    for ks in range(2):
        a(f"v_add_u32 {v_aa[1][ks]}, {2*SLOT}, {v_aa[0][ks]}")
    a(f"v_and_b32 {v_t0}, 1, {v_g}")
    a(f"v_lshl_or_b32 {v_t0}, {v_t0}, 2, {v_r}")
    a(f"v_lshl_add_u32 {v_t1}, {v_g}, 3, {v_r}")
    a(f"v_lshlrev_b32 {v_t1}, 8, {v_t1}")
    a(f"v_lshl_add_u32 {v_t1}, {v_c}, 3, {v_t1}")
    a(f"v_add_u32 {v_t1}, {XREG}, {v_t1}")
    a(f"s_lshl_b32 {s_tmp}, {s_nh}, 2")
    a(f"v_add_u32 {v_t0}, {s_tmp}, {v_t0}")
    for tt in range(4):
        a(f"v_add_u32 {v_t2}, {tt}, {v_t0}")
        a(f"v_and_b32 {v_t2}, 7, {v_t2}")
        a(f"v_lshl_add_u32 {v_ba[0][tt]}, {v_t2}, 5, {v_t1}")
        a(f"v_add_u32 {v_ba[1][tt]}, {2*SLOT}, {v_ba[0][tt]}")
    a(f"v_mul_u32_u24 {v_wa}, {PITCH}, {v_row}")
    a(f"v_lshl_add_u32 {v_wa}, {v_g}, 3, {v_wa}")
    a(f"s_mul_i32 {s_tmp}, {s_mh}, {MH*TP}")
    a(f"s_lshl_b32 {s_t2}, {s_nh}, 7")
    a(f"s_add_u32 {s_tmp}, {s_tmp}, {s_t2}")
    a(f"s_add_u32 {s_tmp}, {s_tmp}, {QKV_BASE}")
    a(f"v_add_u32 {v_wa}, {s_tmp}, {v_wa}")
    a("s_waitcnt lgkmcnt(0)")
    srd(a, sWO, s_pwo, 640 * 1280)
    att_consts()
    acc = [V.many(4, 4) for _ in range(MH)]
    fa = [V.many(MH, 4) for _ in range(2)]
    fb = [V.many(4, 4) for _ in range(2)]

    def read_ops(c, ks):
        sl = (c + 1) % NS
        sp, so = sl >> 1, (sl & 1) * SLOT
        B, A = [], []
        for tt in range(4):
            B.append([f"ds_read_b64_tr_b16 {(fb[ks][tt]+2*h)(2)}, {v_ba[sp][tt]} offset:{so + ks*8192 + h*1024}"
                      for h in range(2)])
        for m in range(MH):
            A.append(f"ds_read_b128 {fa[ks][m](4)}, {v_aa[sp][ks]} offset:{so + m*2048}")
        return B[0] + [A[0]] + B[1] + [A[1]] + B[2] + [A[2]] + B[3] + A[3:]

    def mfma_block(ks, first, fillers, post=None):
        k = 0
        idx = 0
        order = [(m, tt) for m in range(MH) for tt in range(4)]
        if P("MORD", 2) == 1:
            order = [(m, tt) for tt in range(4) for m in range(MH)]
        if P("MORD", 2) == 2:
            order = [(m, tt if m % 2 == 0 else 3 - tt) for m in range(MH) for tt in range(4)]
        if P("MORD", 2) == 3:
            order = [(m if tt % 2 == 0 else MH - 1 - m, tt) for tt in range(4) for m in range(MH)]
        for m, tt in order:
            if True:
                a(f"{MFMA} {acc[m][tt](4)}, {fb[ks][tt](4)}, {fa[ks][m](4)}, {'0' if first else acc[m][tt](4)}")
                if k < len(fillers):
                    a(fillers[k])
                    k += 1
                if post:
                    post(idx)
                idx += 1
        assert k == len(fillers)

    tmpw = V.many(4, 2)

    def wr_tile(idx):
        m, tt = idx // 4, idx % 4
        t = tmpw[idx % 4]
        a(f"v_cvt_pk_bf16_f32 {t}, {acc[m][tt]}, {acc[m][tt]+1}")
        a(f"v_cvt_pk_bf16_f32 {t+1}, {acc[m][tt]+2}, {acc[m][tt]+3}")
        a(f"ds_write_b64 {v_wa}, {t(2)} offset:{m*TP + tt*32}")

    def warm_call(ret, c):
        if not P("WARM", 1):
            return
        for k in range(3):
            a(f"s_cmp_eq_u32 {s_w}, {k}")
            a(f"s_cbranch_scc1 K_CH{c}{k}")
        a(f"s_branch K_CH{c}3")
        a.label(ret)

    stamp(a, "csetup")
    warm_call("K_WRET_M", "M")
    stamp(a, "warmed")
    if P("CPRIO", 2):
        a(f"s_setprio {P('CPRIO', 2)}")
    a("s_barrier")
    stamp(a, "c0")
    for line in read_ops(0, 0):
        a(line)
    for c in range(NCH):
        a.comment("chunk %d" % c)
        if c == 5:
            stamp(a, "c5")
        if c in (3, 8):
            stamp(a, f"k{c}")
        a("s_waitcnt lgkmcnt(0)")
        if c == NCH - 1 and P("LASTR", 1):
            M0 = P("LASTM", 4)
            seq = [(m, tt, 0) for m in range(M0) for tt in range(4)]
            seq += [(m, tt, 1) for m in range(M0) for tt in range(4)]
            for m in range(M0, MH):
                seq += [(m, tt, 0) for tt in range(4)] + [(m, tt, 1) for tt in range(4)]
            fill = read_ops(c, 1)
            done = []
            for pos, (m, tt, ks) in enumerate(seq):
                if pos == 4 * M0:
                    a("s_waitcnt lgkmcnt(0)")
                    stamp(a, "loopend")
                a(f"{MFMA} {acc[m][tt](4)}, {fb[ks][tt](4)}, {fa[ks][m](4)}, {acc[m][tt](4)}")
                if pos < len(fill):
                    a(fill[pos])
                if ks == 1:
                    done.append((len(a.lines), m * 4 + tt))
                if done and len(a.lines) - done[0][0] >= 8:
                    wr_tile(done.pop(0)[1])
            a("s_nop 7")
            for _, idx in done:
                wr_tile(idx)
            continue
        mfma_block(0, c == 0, read_ops(c, 1))
        a("s_waitcnt lgkmcnt(0)")
        if c < NCH - 1:
            a("s_barrier")
            mfma_block(1, False, read_ops(c + 1, 0))
        else:
            stamp(a, "loopend")
            LAG = 8
            mfma_block(1, False, [], post=lambda idx: wr_tile(idx - LAG) if idx >= LAG else None)
            a("s_nop 3")
            for idx in range(4 * MH - LAG, 4 * MH):
                wr_tile(idx)
    a("s_waitcnt vmcnt(0) lgkmcnt(0)")

    if P("CPRIO", 2):
        a("s_setprio 0")
    a.label("K_JOIN")
    a("s_barrier")
    a.label("K_JOIN2")
    stamp(a, "join")
    V.release(mV2)
    S.release(mS2)
    EF = os.environ.get("EARLYF", "a3" if SENT else "")

    def hint(name):
        if EF != name:
            return
        a(f"s_cmp_lg_u32 {s_w}, 5")
        a("s_cbranch_scc1 K_NOHINT")
        zpoll(9)
        a(f"v_mov_b32 {v_t1}, 1")
        a(f"s_mov_b32 exec_lo, {s_fl}")
        a("s_mov_b32 exec_hi, 0")
        a(f"global_store_dword {v_fo}, {v_t1}, {WS(2)} {SC_FLAG}")
        a("s_mov_b64 exec, -1")
        a.label("K_NOHINT")

    hint("join")
    NU = 3
    U = range(NU)
    qf = V.many(NU, 4)
    kf = V.many(NU + 1, 4)
    vf = [V.a(2 * (NU + 1), 4) for _ in range(2)]
    sc = [V.many(2, 4) for _ in U]
    pf = V.many(NU, 4)
    oc = [V.many(2, 4) for _ in U]
    ee = V.many(NU, 2)
    mx, sm = V.many(NU, 2), V.many(NU, 2)
    mt = V.many(NU)
    st = V.many(NU, 4)
    Q = LgkmQueue(a)

    def rdk(t):
        a(f"ds_read_b64 {kf[t](2)}, {v_lo} offset:{t*TP}"); Q.issue(("k", t))
        a(f"ds_read_b64 {(kf[t]+2)(2)}, {v_hi} offset:{t*TP}"); Q.issue(("k", t))

    rdk(0)
    for u in U:
        a(f"ds_read_b64 {qf[u](2)}, {v_lo} offset:{(u+1)*TP + 160}"); Q.issue(("q", u))
        a(f"ds_read_b64 {(qf[u]+2)(2)}, {v_hq} offset:{(u+1)*TP + 160}"); Q.issue(("q", u))
        rdk(u + 1)
    vrd = [f"ds_read_b64_tr_b16 {(vf[dt]+2*t)(2)}, {v_va} offset:{t*TP + 80 + 32*dt}" for t in range(NU + 1) for dt in range(2)]
    assert P("ZSP", 1)
    for u in U:
        Q.need(("q", u), ("k", u + 1))
        a(f"{MFMA} {sc[u][0](4)}, {kf[u](4)}, {qf[u](4)}, {(v_bp if u == 0 else v_b0)(4)}")
        a(f"{MFMA} {sc[u][1](4)}, {kf[u+1](4)}, {qf[u](4)}, {v_b1(4)}")
    stamp(a, "a1")
    hint("a1")
    for l in vrd:
        a(l)
    for u in U:
        s0, s1 = sc[u]
        a(f"v_max3_f32 {ee[u]}, {s0}, {s0+1}, {s1}")
        a(f"v_max3_f32 {ee[u]+1}, {s0+2}, {s0+3}, {s1+2}")
        a(f"v_max_f32 {ee[u]}, {ee[u]}, {s1+1}")
        a(f"v_max_f32 {ee[u]+1}, {ee[u]+1}, {s1+3}")
    RL = P("RLOG", 1)
    if RL:
        for rep in range(2):
            for u in U:
                a(f"v_cvt_pk_bf16_f32 {ee[u]+1}, {ee[u]}, {ee[u]+1}")
            for u in U:
                a(f"v_lshlrev_b32 {ee[u]}, 16, {ee[u]+1}")
                a(f"v_and_b32 {ee[u]+1}, 0xffff0000, {ee[u]+1}")
            if rep == 0:
                for u in U:
                    a(f"v_pk_mul_f32 {ee[u](2)}, {ee[u](2)}, {s_sc(2)}")
    for u in U:
        a(f"v_max_f32 {mx[u]}, {ee[u]}, {ee[u]+1}")

    def xreduce(regs, tmps, op):
        A, B, C = regs
        ta, tb, tc = tmps
        a(f"v_mov_b32 {tc}, {C}")
        a(f"v_permlane16_swap_b32 {A}, {B}")
        a("s_nop 0")
        a(f"v_permlane16_swap_b32 {C}, {tc}")
        a(f"{op} {A}, {A}, {B}")
        a(f"{op} {C}, {C}, {tc}")
        a(f"v_mov_b32 {B}, {A}")
        a(f"v_mov_b32 {tc}, {C}")
        a("s_nop 0")
        a(f"v_permlane32_swap_b32 {A}, {B}")
        a(f"v_permlane32_swap_b32 {C}, {tc}")
        a(f"{op} {A}, {A}, {B}")
        a(f"v_mov_b32 {B}, {A}")
        a(f"{op} {C}, {C}, {tc}")
        a("s_nop 0")
        a(f"v_permlane16_swap_b32 {A}, {B}")

    xreduce(mx, mt, "v_max_f32")
    for u in U:
        a(f"v_pk_add_f32 {ee[u](2)}, {ee[u](2)}, {mx[u](2)} op_sel_hi:[1,0] neg_lo:[0,1] neg_hi:[0,1]")
    for u in U:
        a(f"v_pk_mul_f32 {ee[u](2)}, {ee[u](2)}, {s_c(2)}")
    for u in U:
        a(f"v_exp_f32 {ee[u]}, {ee[u]}")
        a(f"v_exp_f32 {ee[u]+1}, {ee[u]+1}")
    a("s_nop 0")
    for u in U:
        a(f"v_add_f32 {sm[u]}, {ee[u]}, {ee[u]+1}")
    stamp(a, "a2")
    hint("a2")
    xreduce(sm, mt, "v_add_f32")
    for u in U:
        a(f"v_rcp_f32 {sm[u]}, {sm[u]}")
    a("s_waitcnt lgkmcnt(0)")
    for u in U:
        a(f"v_pk_mul_f32 {ee[u](2)}, {ee[u](2)}, {sm[u](2)} op_sel_hi:[1,0]")
    for u in U:
        a(f"v_cvt_pk_bf16_f32 {ee[u]}, {ee[u]}, {ee[u]+1}")
    for u in U:
        for k in range(4):
            a(f"v_perm_b32 {pf[u]+k}, {ee[u]}, {ee[u]}, {v_ps+k}")
        if u > 0:
            for dt in range(2):
                a(f"{MFMA} {oc[u-1][dt](4)}, {(vf[dt]+2*(u-1))(4)}, {pf[u-1](4)}, 0")
    a("s_nop 0")
    for dt in range(2):
        a(f"{MFMA} {oc[NU-1][dt](4)}, {(vf[dt]+2*(NU-1))(4)}, {pf[NU-1](4)}, 0")
    if P("ODENSE", 1):
        stamp(a, "a3")
        hint("a3")
        a("s_nop 1")
        for u in U:
            a(f"v_cvt_pk_bf16_f32 {st[u]}, {oc[u][0]}, {oc[u][0]+1}")
            a(f"v_cvt_pk_bf16_f32 {st[u]+1}, {oc[u][0]+2}, {oc[u][0]+3}")
            a(f"v_cvt_pk_bf16_f32 {st[u]+2}, {oc[u][1]}, {oc[u][1]+1}")
            a(f"v_cvt_pk_bf16_f32 {st[u]+3}, {oc[u][1]+2}, {oc[u][1]+3}")
            a(f"ds_write_b64 {v_ow}, {st[u](2)} offset:{u*1024}")
        a(f"s_mov_b64 exec, {s_g0(2)}")
        for u in U:
            a(f"ds_write_b64 {v_ox}, {(st[u]+2)(2)} offset:{u*256}")
        a("s_mov_b64 exec, -1")
        a("s_waitcnt lgkmcnt(0)")
        stamp(a, "a4")
        hint("a4")
        a("s_barrier")
        stamp(a, "a5")
        hint("a5")
        a(f"ds_read_b128 {st[0](4)}, {v_or}")
        a(f"ds_read_b128 {st[1](4)}, {v_or} offset:8192")
        a("s_waitcnt lgkmcnt(1)")
        if SENT:
            a(f"v_min_u32 {st[0]}, -2, {st[0]}")
        a(f"buffer_store_dwordx4 {st[0](4)}, {v_os}, {sO(4)}, 0 offen {SC_ST}")
        a("s_waitcnt lgkmcnt(0)")
        if SENT:
            a(f"v_min_u32 {st[1]}, -2, {st[1]}")
        a(f"buffer_store_dwordx4 {st[1](4)}, {v_ot}, {sO(4)}, 0 offen {SC_ST}")
    a.label("K_ATT_DONE")
    stamp(a, "attdone")
    hint("att")
    a(f"s_cmp_eq_u32 {s_n}, -1")
    a("s_cbranch_scc1 %s" % ("K_END" if SENT else "K_NOS6"))
    a(f"s_cmp_lt_u32 {s_w}, 4")
    a("s_cbranch_scc1 K_P2_EARLY")
    a(f"s_cmp_eq_u32 {s_w}, 7")
    a("s_cbranch_scc1 K_P2_W7")
    a(f"s_cmp_lg_u32 {s_w}, 6")
    a("s_cbranch_scc1 K_NOS6")
    zpoll(2)
    mb_sample(v_t0)
    if SENT:
        a("s_waitcnt vmcnt(4)")
        a("s_barrier")
        a("s_branch K_P2_HELP")
        a.label("K_NOS6")
        a("s_waitcnt vmcnt(2)")
        a("s_barrier")
    else:
        a.label("K_NOS6")
        a(f"s_cmp_lg_u32 {s_w}, 5")
        a("s_cbranch_scc1 K_NOFL")
        zpoll(0)
        a(f"v_mov_b32 {v_t1}, 1")
        a(f"s_mov_b32 exec_lo, {s_fl}")
        a("s_mov_b32 exec_hi, 0")
        a("s_setprio 3")
        a("s_waitcnt vmcnt(0)")
        a("s_barrier")
        if not EF:
            a(f"global_store_dword {v_fo}, {v_t1}, {WS(2)} {SC_FLAG}")
        a("s_setprio 0")
        a("s_mov_b64 exec, -1")
        a("s_branch K_FLAGGED")
        a.label("K_NOFL")
        a("s_waitcnt vmcnt(0)")
        a("s_barrier")
        stamp(a, "drained")
        a.label("K_FLAGGED")
        a(f"s_cmp_eq_u32 {s_n}, -1")
        a("s_cbranch_scc1 K_END")
    a("s_branch K_P2_HELP")

    seg_aux0 = len(a.lines)
    S.release(mS)
    V.release(mV)
    a.label("K_AUX")
    GA, UP, DN = 0, 40960, 81920
    KEYS = 122880
    KSEL = KEYS + 1024
    PRE = KSEL + 64
    HB = PRE + 1024
    WV = HB + 1024
    assert WV + 4096 <= STG
    s_j = S.a()
    s_pm = S.a(8)
    s_pg = S.a(2)
    sR, sGW = sW, sO
    sG, sU, sD = S.many(3, 4)
    s_so, s_m0, s_k1, s_k2, s_m1 = S.many(5)
    s_t3 = S.a(3)
    a(f"s_load_dwordx8 {s_pm(8)}, s[0:1], 32")
    a(f"s_load_dwordx2 {s_pg(2)}, s[0:1], 64")
    a(f"s_mul_i32 {s_j}, {s_xcd}, 7")
    a(f"s_add_u32 {s_j}, {s_j}, {s_i}")
    a(f"s_sub_u32 {s_j}, {s_j}, 1")
    a(f"s_cmp_lt_u32 {s_j}, {NSL}")
    a(f"s_cselect_b32 {s_j}, {s_j}, 63")
    a(f"s_cmp_eq_u32 {s_i}, 0")
    a(f"s_cselect_b32 {s_j}, 63, {s_j}")
    v_row, v_xo, v_c16, v_go, v_do = V.many(5)
    xr = V.a(160)
    vk = V.a(4)
    a(f"s_lshl_b32 {s_tmp}, {s_xcd}, 3")
    a(f"s_add_u32 {s_tmp}, {s_tmp}, {s_i}")
    a(f"s_lshl_b32 {s_tmp}, {s_tmp}, 5")
    a(f"s_lshl2_add_u32 {s_tmp}, {s_w}, {s_tmp}")
    a(f"v_lshrrev_b32 {v_row}, 4, {v_lane}")
    a(f"v_add_u32 {v_row}, {s_tmp}, {v_row}")
    a(f"v_and_b32 {v_c16}, 15, {v_lane}")
    a(f"v_lshlrev_b32 {v_c16}, 4, {v_c16}")
    a(f"v_mul_u32_u24 {v_xo}, 1280, {v_row}")
    a(f"v_add_u32 {v_xo}, {v_xo}, {v_c16}")
    a(f"v_lshlrev_b32 {v_t0}, 4, {v_lane}")
    a(f"v_lshrrev_b32 {v_t1}, 2, {v_lane}")
    a(f"v_mul_u32_u24 {v_go}, 3456, {v_t1}")
    a(f"v_and_b32 {v_t1}, 3, {v_lane}")
    a(f"v_lshl_add_u32 {v_go}, {v_t1}, 4, {v_go}")
    a(f"s_mul_i32 {s_tmp}, {s_w}, {5*55296}")
    a(f"s_lshl_b32 {s_so}, {s_j}, 6")
    a(f"s_add_u32 {s_tmp}, {s_tmp}, {s_so}")
    a(f"v_add_u32 {v_go}, {s_tmp}, {v_go}")
    a(f"s_mul_i32 {s_m0}, {s_w}, 5120")
    a(f"s_add_u32 {s_m1}, {s_m0}, {UP}")
    a(f"s_bitcmp1_b32 {s_j}, 0")
    a(f"s_cselect_b32 {s_tmp}, {s_m0}, {s_m1}")
    a(f"s_cselect_b32 {s_m0}, {s_m1}, {s_m0}")
    a(f"s_mov_b32 {s_m1}, {s_tmp}")
    a("s_waitcnt lgkmcnt(0)")
    srd(a, sR, s_pm, 1280)
    srd(a, sGW, s_pg, 1280)
    a(f"s_cmp_lg_u32 {s_i}, 0")
    a("s_cbranch_scc1 K_AUX_NOZ")
    srd(a, sG, WS, ZBYTES, FL_OFF)
    a(f"v_lshlrev_b32 {v_t1}, 4, v0")
    for e in range(4):
        a(f"v_mov_b32 {vk+e}, 0")
    a(f"s_lshl_b32 {s_tmp}, {s_xcd}, 14")
    a(f"s_add_u32 {s_so}, {s_tmp}, 8192")
    a(f"buffer_store_dwordx4 {vk(4)}, {v_t1}, {sG(4)}, {s_tmp} offen {SC_FLAG}")
    a(f"buffer_store_dwordx4 {vk(4)}, {v_t1}, {sG(4)}, {s_so} offen {SC_FLAG}")
    a.label("K_AUX_NOZ")
    a(f"s_cmp_lt_u32 {s_w}, 6")
    a("s_cbranch_scc1 K_AUX_R1")
    a(f"s_cmp_eq_u32 {s_w}, 7")
    a("s_cbranch_scc1 K_AUX_R0")
    a(f"s_mov_b32 m0, {WV}")
    a("s_nop 0")
    a(f"buffer_load_dwordx4 {v_t0}, {sR(4)}, 0 offen lds")
    a(f"buffer_load_dwordx4 {v_t0}, {sR(4)}, 0 offen offset:1024 lds")
    a("s_branch K_AUX_R1")
    a.label("K_AUX_R0")
    a(f"s_mov_b32 m0, {WV + 2048}")
    a("s_nop 0")
    a(f"buffer_load_dwordx4 {v_t0}, {sGW(4)}, 0 offen lds")
    a(f"buffer_load_dwordx4 {v_t0}, {sGW(4)}, 0 offen offset:1024 lds")
    a.label("K_AUX_R1")
    for j in range(5):
        a(f"buffer_load_dwordx4 {(xr+4*j)(4)}, {v_xo}, {sX(4)}, 0 offen offset:{j*256}")
    srd(a, sWO, s_pwo, 640 * 1280)
    a(f"s_bitcmp1_b32 {s_j}, 0")
    a(f"s_cselect_b64 {sG(2)}, {(s_pm+4)(2)}, {(s_pm+2)(2)}")
    a(f"s_cselect_b64 {sU(2)}, {(s_pm+2)(2)}, {(s_pm+4)(2)}")
    a(f"s_cmp_eq_u32 {s_j}, 63")
    a(f"s_cselect_b32 {sG+2}, 0, {640*3456}")
    a(f"s_mov_b32 {sG+3}, 0x20000")
    a(f"s_mov_b32 {sU+2}, {640*3456}")
    a(f"s_mov_b32 {sU+3}, 0x20000")

    def gu(k):
        q = k % 5
        a(f"s_add_u32 m0, {s_m0 if k < 5 else s_m1}, {q*1024}")
        a(f"s_mov_b32 {s_so}, {q*55296}")
        a(f"buffer_load_dwordx4 {v_go}, {(sG if k < 5 else sU)(4)}, {s_so} offen {FNT} lds")

    NE = P("NE", 2)
    for k in range(NE):
        gu(k)
    a(f"v_add_u32 {v_c16}, {WV}, {v_c16}")
    ar, ag = xr + 60, xr + 61
    a(f"v_mov_b32 {ar}, 0")
    a(f"v_mov_b32 {ag}, 0")
    a(f"s_waitcnt vmcnt({5 + NE})")
    a("s_barrier")
    a(f"s_cmp_lg_u32 {s_i}, 0")
    a("s_cbranch_scc1 K_AUX_NOM")
    a(f"s_cmp_lg_u32 {s_w}, 0")
    a("s_cbranch_scc1 K_AUX_NOM")
    a(f"v_mov_b32 {v_t0}, {ZW2*4}")
    a(f"v_mov_b32 {v_t1}, 1")
    a("s_mov_b64 exec, 1")
    a(f"global_atomic_add {v_t0}, {v_t1}, {DBG(2)} {SC_FLAG}")
    a("s_mov_b64 exec, -1")
    a("s_waitcnt vmcnt(1)")
    a.label("K_AUX_NOM")
    for j in range(5):
        a(f"ds_read_b128 {(xr+20+4*j)(4)}, {v_c16} offset:{j*256}")
        a(f"ds_read_b128 {(xr+40+4*j)(4)}, {v_c16} offset:{2048 + j*256}")
    for j in range(5):
        a(f"s_waitcnt vmcnt({4 - j + NE}) lgkmcnt({8 - 2*j})")
        for e in range(4):
            a(f"v_dot2c_f32_bf16 {ar}, {xr+4*j+e}, {xr+20+4*j+e}")
            a(f"v_dot2c_f32_bf16 {ag}, {xr+4*j+e}, {xr+40+4*j+e}")
    a("s_nop 2")
    for dpp in ("quad_perm:[1,0,3,2]", "quad_perm:[2,3,0,1]", "row_half_mirror", "row_mirror"):
        for v in (ar, ag):
            a(f"v_add_f32_dpp {v}, {v}, {v} {dpp} row_mask:0xf bank_mask:0xf")
        a("s_nop 0")
    bf16r(a, v_t0, ar)
    a(f"v_ashrrev_i32 {v_t1}, 31, {v_t0}")
    a(f"v_or_b32 {v_t1}, 0x80000000, {v_t1}")
    a(f"v_xor_b32 {v_t0}, {v_t0}, {v_t1}")
    a(f"v_and_b32 {v_t0}, 0xffff0000, {v_t0}")
    a(f"v_sub_u32 {v_t1}, 0x87ff, {v_row}")
    a(f"v_or_b32 {ar}, {v_t0}, {v_t1}")
    a(f"v_and_b32 {v_t2}, 31, {v_row}")
    a(f"v_lshlrev_b32 {v_t1}, 2, {v_t2}")
    a(f"v_add_u32 {v_t1}, {KEYS}, {v_t1}")
    a(f"ds_write_b32 {v_t1}, {ar}")
    bf16r(a, ag, ag)
    sigmoid(a, ag, ag, v_t3)
    a(f"v_cvt_pk_bf16_f32 {ag}, {ag}, {ag}")
    a(f"v_or_b32 {ag}, 0x8000, {ag}")
    a(f"v_lshlrev_b32 {v_t1}, 1, {v_t2}")
    a(f"v_add_u32 {v_t1}, {KEYS + 128}, {v_t1}")
    a(f"ds_write_b16 {v_t1}, {ag}")
    a("s_waitcnt lgkmcnt(0)")
    a("s_barrier")
    stamp(a, "scored")
    srd(a, sD, WS, ZBYTES, FL_OFF)
    a(f"s_cmp_lg_u32 {s_w}, 4")
    a("s_cbranch_scc1 K_AUX_G0")
    a(f"v_and_b32 {v_t1}, 31, {v_lane}")
    a(f"v_lshlrev_b32 {v_t1}, 2, {v_t1}")
    a(f"v_add_u32 {v_t1}, {KEYS}, {v_t1}")
    a(f"ds_read_b32 {v_t0}, {v_t1}")
    a("s_waitcnt lgkmcnt(0)")
    wave_top2(a, v_t0, v_t1, s_k1, s_k2, s_t3)
    a(f"v_mov_b32 {vk}, {s_k1}")
    a(f"v_mov_b32 {vk+1}, {s_k2}")
    zpoll(3)
    a("s_lshl_b32 %s, s2, 3" % s_tmp)
    a(f"s_add_u32 {s_tmp}, {s_tmp}, {KMB}")
    a(f"v_lshlrev_b32 {v_t1}, 9, {v_lane}")
    a(f"buffer_store_dwordx2 {vk(2)}, {v_t1}, {sD(4)}, {s_tmp} offen {SC_FLAG}")
    stamp(a, "pub")
    a.label("K_AUX_G0")
    a(f"s_cmp_lg_u32 {s_w}, 5")
    a("s_cbranch_scc1 K_AUX_G1")
    a(f"v_and_b32 {v_t1}, 3, {v_lane}")
    a(f"v_lshlrev_b32 {v_t1}, 4, {v_t1}")
    a(f"v_add_u32 {v_t0}, {KEYS + 128}, {v_t1}")
    a(f"ds_read_b128 {vk(4)}, {v_t0}")
    a(f"v_lshrrev_b32 {v_t0}, 2, {v_lane}")
    a(f"v_lshl_add_u32 {v_t1}, {v_t0}, 9, {v_t1}")
    zpoll(4)
    a(f"s_lshr_b32 {s_tmp}, {s_i}, 2")
    a(f"s_lshl1_add_u32 {s_tmp}, {s_xcd}, {s_tmp}")
    a(f"s_mul_i32 {s_tmp}, {s_tmp}, 5120")
    a(f"s_and_b32 {s_so}, {s_i}, 3")
    a(f"s_lshl_b32 {s_so}, {s_so}, 6")
    a(f"s_add_u32 {s_tmp}, {s_tmp}, {s_so}")
    a("s_mov_b32 exec_hi, 0xff")
    a("s_waitcnt lgkmcnt(0)")
    a(f"buffer_store_dwordx4 {vk(4)}, {v_t1}, {sD(4)}, {s_tmp} offen offset:256 {SC_FLAG}")
    a("s_mov_b64 exec, -1")
    a.label("K_AUX_G1")
    a(f"s_cmp_lg_u32 {s_j}, 63")
    a("s_cbranch_scc1 K_AUX_FFN1")
    a("s_waitcnt vmcnt(0)")
    a("s_barrier")
    a(f"s_cmp_lt_u32 {s_w}, 4")
    a("s_cbranch_scc1 K_P2")
    a(f"s_cmp_lg_u32 {s_i}, 0")
    a("s_cbranch_scc1 K_AUX_NT")
    a(f"s_mul_i32 {s_tmp}, {s_w}, 160")
    a(f"s_sub_u32 {s_tmp}, {s_tmp}, 640")
    a(f"v_lshrrev_b32 {v_t0}, 1, {v_lane}")
    a(f"v_add_u32 {v_t0}, {s_tmp}, {v_t0}")
    a(f"v_mul_u32_u24 {v_t0}, 1280, {v_t0}")
    a(f"v_and_b32 {v_t1}, 1, {v_lane}")
    a(f"v_lshl_add_u32 {v_t0}, {v_t1}, 7, {v_t0}")
    for k in range(5):
        a(f"s_mov_b32 {s_so}, {k*32*1280}")
        a(f"buffer_load_dword {vk}, {v_t0}, {sWO(4)}, {s_so} offen offset:1024")
    a("s_waitcnt vmcnt(0)")
    a.label("K_AUX_NT")
    a(f"s_cmp_lg_u32 {s_w}, 6")
    a("s_cbranch_scc1 K_P2")
    zpoll(6)
    a(f"v_mov_b32 {v_smp}, 0")
    a("s_branch K_P2")
    a.label("K_AUX_FFN1")
    for k in range(NE, 10):
        gu(k)
    srd(a, sU, WS, YP_BYTES, YP_OFF)
    a(f"s_cmp_ge_u32 {s_w}, 4")
    a("s_cbranch_scc1 K_FFN_C")
    srd(a, sD, s_pm + 6, 1728 * 1280)
    a(f"s_mul_i32 {s_tmp}, {s_j}, 40960")
    a(f"s_mul_i32 {s_m0}, {s_w}, 10240")
    a(f"s_add_u32 {s_tmp}, {s_tmp}, {s_m0}")
    a(f"v_lshl_add_u32 {v_do}, {v_lane}, 4, {s_tmp}")
    for q in range(10):
        a(f"s_add_u32 m0, {s_m0}, {DN + q*1024}")
        a(f"s_mov_b32 {s_so}, {q*1024}")
        a(f"buffer_load_dwordx4 {v_do}, {sD(4)}, {s_so} offen {FNTD} lds")
    a(f"s_mul_i32 {s_tmp}, {s_j}, 5120")
    a(f"s_mul_i32 {s_so}, {s_w}, 1280")
    a(f"s_add_u32 {s_tmp}, {s_tmp}, {s_so}")
    a(f"v_lshlrev_b32 {v_t0}, 4, {v_lane}")
    a(f"buffer_store_dwordx4 {xr(4)}, {v_t0}, {sU(4)}, {s_tmp} offen {SC_ST}")
    a("s_mov_b64 exec, 0xffff")
    a(f"buffer_store_dwordx4 {xr(4)}, {v_t0}, {sU(4)}, {s_tmp} offen offset:1024 {SC_ST}")
    a("s_mov_b64 exec, -1")
    a("s_waitcnt vmcnt(12)")
    a("s_barrier")
    a("s_branch K_P2_EARLY")

    a.label("K_FFN_C")
    wf, xf, df = xr, xr + 80, xr
    v_g, v_wa, v_da, v_ka, v_gy = V.many(5)
    a(f"v_lshrrev_b32 {v_g}, 4, {v_lane}")
    a(f"v_bfe_u32 {v_t0}, {v_lane}, 2, 2")
    a(f"v_lshl_add_u32 {v_t0}, {v_g}, 3, {v_t0}")
    a(f"v_and_b32 {v_t1}, 3, {v_lane}")
    a(f"v_lshlrev_b32 {v_t1}, 3, {v_t1}")
    a(f"v_lshl_add_u32 {v_wa}, {v_t0}, 6, {v_t1}")
    a(f"s_bfe_u32 {s_tmp}, {s_w}, 0x10001")
    a(f"s_mul_i32 {s_tmp}, {s_tmp}, 40960")
    a(f"s_and_b32 {s_so}, {s_w}, 1")
    a(f"s_lshl_b32 {s_so}, {s_so}, 5")
    a(f"s_add_u32 {s_tmp}, {s_tmp}, {s_so}")
    a(f"s_add_u32 {s_tmp}, {s_tmp}, {GA}")
    a(f"v_add_u32 {v_wa}, {s_tmp}, {v_wa}")
    a(f"v_mul_u32_u24 {v_da}, 1280, {v_t0}")
    a(f"s_and_b32 {s_tmp}, {s_w}, 3")
    a(f"s_mul_i32 {s_tmp}, {s_tmp}, 320")
    a(f"s_add_u32 {s_tmp}, {s_tmp}, {DN}")
    a(f"v_add3_u32 {v_da}, {v_da}, {v_t1}, {s_tmp}")
    a(f"v_mov_b32 {v_ka}, {KSEL}")
    a(f"v_mov_b32 {v_gy}, {YB}")
    a(f"s_cmp_lg_u32 {s_w}, 4")
    a("s_cbranch_scc1 K_AUX_POLLED")
    a(f"s_lshl_b32 {s_so}, {s_j}, 9")
    a(f"s_add_u32 {s_so}, {s_so}, {KMB}")
    a(f"v_lshlrev_b32 {v_t1}, 3, {v_lane}")
    a(f"s_mov_b32 {s_tmp}, {SPIN}")
    a.label("K_AUX_POLL")
    a(f"buffer_load_dwordx2 {vk(2)}, {v_t1}, {sD(4)}, {s_so} offen {SC_POLL}")
    a("s_waitcnt vmcnt(0)")
    a(f"v_min_u32 {v_t0}, {vk}, {vk+1}")
    a(f"v_cmp_eq_u32 vcc, 0, {v_t0}")
    a("s_cbranch_vccz K_AUX_GOT")
    a(f"s_sleep {P('KSLEEP', 6)}")
    a(f"s_sub_u32 {s_tmp}, {s_tmp}, 1")
    a(f"s_cmp_lg_u32 {s_tmp}, 0")
    a("s_cbranch_scc1 K_AUX_POLL")
    a.label("K_AUX_GOT")
    wave_max_u32(a, vk, v_t1, s_k1, s_t3)
    a(f"v_cmp_ne_u32 vcc, {s_k1}, {vk}")
    a("s_nop 1")
    a(f"v_cndmask_b32 {v_t0}, {vk+1}, {vk}, vcc")
    wave_max_u32(a, v_t0, v_t1, s_k2, s_t3)
    a(f"v_mov_b32 {vk}, {s_k1}")
    a(f"v_mov_b32 {vk+1}, {s_k2}")
    a(f"ds_write_b64 {v_ka}, {vk(2)}")
    a(f"s_mul_i32 {s_so}, {s_j}, {3*512}")
    a(f"v_lshlrev_b32 {v_t1}, 9, {v_lane}")
    a(f"s_cmp_eq_u32 {s_j}, {NSL-1}")
    a("s_cselect_b64 exec, 1, 7")
    a(f"buffer_store_dwordx2 {vk(2)}, {v_t1}, {sD(4)}, {s_so} offen offset:128 {SC_FLAG}")
    a("s_mov_b64 exec, -1")
    a("s_waitcnt lgkmcnt(0)")
    a("s_branch K_AUX_D")
    a.label("K_AUX_POLLED")
    a("s_waitcnt vmcnt(0)")
    a.label("K_AUX_D")
    a("s_barrier")
    stamp(a, "dmad")
    a("s_setprio 3")
    a(f"v_mov_b32 {v_smp}, {NZ}")

    def fgate(name, off, val):
        a(f"s_mov_b32 {s_tmp}, {SPIN*8}")
        a.label(f"K_FG{name}")
        a(f"ds_read_b32 {v_t0}, {v_gy} offset:{off}")
        a("s_sleep 1")
        a(f"s_sub_u32 {s_tmp}, {s_tmp}, 1")
        a("s_waitcnt lgkmcnt(0)")
        a(f"v_readfirstlane_b32 {s_t2}, {v_t0}")
        a("s_nop 3")
        a(f"s_cselect_b32 {s_t2}, {val}, {s_t2}")
        a(f"s_cmp_lt_u32 {s_t2}, {val}")
        a(f"s_cbranch_scc1 K_FG{name}")

    a(f"ds_read_b64 {vk(2)}, {v_ka}")
    a(f"v_and_b32 {v_t0}, 1, {v_lane}")
    a(f"v_cmp_eq_u32 vcc, 1, {v_t0}")
    a("s_waitcnt lgkmcnt(0)")
    a(f"v_cndmask_b32 {v_t2}, {vk}, {vk+1}, vcc")
    a(f"v_and_b32 {v_t1}, 0x7ff, {v_t2}")
    a(f"v_sub_u32 {v_t1}, 2047, {v_t1}")
    a(f"v_mul_u32_u24 {v_xo}, 1280, {v_t1}")
    a(f"v_lshl_add_u32 {v_xo}, {v_g}, 4, {v_xo}")
    a("s_mov_b32 exec_lo, 0x00030003")
    a("s_mov_b32 exec_hi, 0x00030003")
    for q in range(20):
        a(f"buffer_load_dwordx4 {(xf+4*q)(4)}, {v_xo}, {sX(4)}, 0 offen offset:{q*64}")
    a("s_mov_b64 exec, -1")
    for q in range(20):
        for h in range(2):
            a(f"ds_read_b64_tr_b16 {(wf+4*q+2*h)(2)}, {v_wa} offset:{q*2048 + h*256}")
    pacc = V.many(2, 4)
    v_pa, v_hr, v_hs, v_hw, v_yo = V.many(5)
    a(f"v_and_b32 {v_t0}, 1, {v_lane}")
    a(f"v_lshlrev_b32 {v_pa}, 6, {v_t0}")
    a(f"v_lshl_add_u32 {v_pa}, {v_g}, 4, {v_pa}")
    a(f"s_and_b32 {s_tmp}, {s_w}, 3")
    a(f"s_lshl_b32 {s_tmp}, {s_tmp}, 7")
    a(f"v_add3_u32 {v_hr}, {v_pa}, {s_tmp}, {v_ka}")
    a(f"v_add_u32 {v_pa}, {PRE - KSEL}, {v_hr}")
    a(f"v_add_u32 {v_hr}, {HB - KSEL}, {v_hr}")
    a(f"v_lshrrev_b32 {v_t0}, 5, {v_lane}")
    a(f"v_bfe_u32 {v_t1}, {v_lane}, 4, 1")
    a(f"v_lshl_add_u32 {v_t1}, {v_t1}, 1, {v_t0}")
    a(f"v_lshlrev_b32 {v_t1}, 6, {v_t1}")
    a(f"v_and_b32 {v_t2}, 15, {v_lane}")
    a(f"v_lshl_add_u32 {v_t1}, {v_t2}, 2, {v_t1}")
    a(f"v_add_u32 {v_hs}, {PRE}, {v_t1}")
    a(f"v_lshlrev_b32 {v_t2}, 1, {v_lane}")
    a(f"s_add_u32 {s_tmp}, {s_tmp}, {HB}")
    a(f"v_add_u32 {v_hw}, {s_tmp}, {v_t2}")
    a(f"v_and_b32 {v_t0}, 1, {v_lane}")
    a(f"v_mul_u32_u24 {v_t0}, 2560, {v_t0}")
    a(f"v_lshl_add_u32 {v_yo}, {v_g}, 4, {v_t0}")
    a(f"s_mul_i32 {s_tmp}, {s_j}, 5120")
    a(f"s_and_b32 {s_so}, {s_w}, 3")
    a(f"s_mul_i32 {s_so}, {s_so}, 640")
    a(f"s_add_u32 {s_so}, {s_so}, {s_tmp}")
    a(f"v_mov_b32 {v_t1}, 1")
    a("s_waitcnt lgkmcnt(0)")
    a("s_barrier")
    stamp(a, "polled")
    for q in range(20):
        if q % 4 == 0:
            a(f"s_waitcnt vmcnt({16 - q})")
        a(f"{MFMA} {pacc[q&1](4)}, {(wf+4*q)(4)}, {(xf+4*q)(4)}, {'0' if q < 2 else pacc[q&1](4)}")
    a("s_nop 7")
    for r in range(4):
        a(f"v_add_f32 {pacc[0]+r}, {pacc[0]+r}, {pacc[1]+r}")
    a("s_mov_b32 exec_lo, 0x00030003")
    a("s_mov_b32 exec_hi, 0x00030003")
    a(f"ds_write_b128 {v_pa}, {pacc[0](4)}")
    a("s_mov_b64 exec, 1")
    a(f"ds_add_u32 {v_gy}, {v_t1} offset:52")
    a("s_mov_b64 exec, -1")
    a(f"s_cmp_lg_u32 {s_w}, 6")
    a("s_cbranch_scc1 K_NOS6B")
    mb_sample(v_t2)
    a.label("K_NOS6B")
    fgate("P", 52, 4)
    hv = V.a(4)
    stamp(a, "pre")
    a(f"ds_read_b32 {hv}, {v_hs}")
    a(f"ds_read_b32 {hv+2}, {v_hs} offset:256")
    for q in range(7):
        for h in range(2):
            a(f"ds_read_b64_tr_b16 {(df+4*q+2*h)(2)}, {v_da} offset:{q*32 + h*5120}")
    a("s_waitcnt lgkmcnt(14)")
    bf16r(a, hv, hv)
    bf16r(a, hv + 2, hv + 2)
    sigmoid(a, hv + 1, hv, hv + 1)
    a(f"v_mul_f32 {hv}, {hv}, {hv+1}")
    bf16r(a, hv, hv)
    a(f"v_mul_f32 {hv}, {hv}, {hv+2}")
    a(f"v_cvt_pk_bf16_f32 {hv}, {hv}, {hv}")
    a(f"ds_write_b16 {v_hw}, {hv}")
    a("s_waitcnt lgkmcnt(0)")
    a(f"ds_read_b128 {hv(4)}, {v_hr}")
    for q in range(7, 10):
        for h in range(2):
            a(f"ds_read_b64_tr_b16 {(df+4*q+2*h)(2)}, {v_da} offset:{q*32 + h*5120}")
    a("s_waitcnt lgkmcnt(6)")
    for q in range(10):
        if q >= 7:
            a(f"s_waitcnt lgkmcnt({2 * (9 - q)})")
        a(f"{MFMA} {(xf+4*q)(4)}, {(df+4*q)(4)}, {hv(4)}, 0")
    a("s_mov_b32 exec_lo, 0x00030003")
    a("s_mov_b32 exec_hi, 0x00030003")
    for q in range(10):
        a(f"buffer_store_dwordx4 {(xf+4*q)(4)}, {v_yo}, {sU(4)}, {s_so} offen offset:{q*64} {SC_ST}")
    a("s_mov_b64 exec, -1")
    a(f"s_lshl_b32 {s_tmp}, {s_j}, 3")
    a(f"s_add_u32 {s_tmp}, {s_tmp}, {s_w}")
    a(f"s_lshl_b32 {s_tmp}, {s_tmp}, 2")
    a(f"s_add_u32 {s_tmp}, {s_tmp}, {FL_OFF + YFL - 16}")
    a(f"v_mov_b32 {v_t0}, {s_tmp}")
    a(f"v_mov_b32 {v_t1}, 1")
    a("s_waitcnt vmcnt(0)")
    stamp(a, "ydone")
    a("s_mov_b64 exec, 1")
    a(f"global_store_dword {v_t0}, {v_t1}, {WS(2)} {SC_FLAG}")
    a("s_mov_b64 exec, -1")
    a("s_branch K_P2")
    seg_aux1 = len(a.lines)

    S.release(mS)
    V.release(mV)
    sG, sY, sOut = sW, S.a(4), S.a(4)
    s_so, s_tg, s_row0, s_c10 = S.many(4)
    s_sel = S.a(4)
    s_k1, s_k2 = S.many(2)
    s_t3 = S.a(3)
    RO = P("P2RO", 6)
    s_lo = S.many(RO)
    s_rem, s_bud, s_stg = S.many(3)
    v_l3, v_g, v_xo, v_go, v_fa, v_da, v_sr, v_yb = V.many(8)
    xv = V.a(8)
    gv = V.many(2, 2)
    vsel = V.a(4)
    bx = V.a(16)
    mV3 = V.mark()
    RM = P("RMIX", 0)

    GOL = YB + 1024

    def epi_pre():
        L = []
        for i in range(8):
            L += [f"v_lshlrev_b32 {bx+2*i}, 16, {xv+i}", f"v_and_b32 {bx+2*i+1}, 0xffff0000, {xv+i}"]
        return L
    v_r, v_c, v_sw, v_wo = V.many(4)
    v_oo = V.many(2)
    PERM = [0, 2, 5, 7, 1, 3, 4, 6]
    HGT = [[8 * (u & 1) + PERM[4 * (u >> 1) + i] for i in range(4)] for u in range(4)]
    vn, va = V.many(2), V.many(2)
    v_ma, v_m = V.many(2)

    of = [V.many(2, 4) for _ in range(RO)]
    acc = V.many(2, 16)
    fb = [V.many(4, 4) for _ in range(3)]
    bxt = V.many(4, 2)

    def p2_common():
        a(f"s_lshl_b32 {s_row0}, {s_rt2}, 7")
        a(f"v_lshrrev_b32 {v_l3}, 3, {v_lane}")
        a(f"v_lshrrev_b32 {v_g}, 4, {v_lane}")
        a(f"v_mov_b32 {v_yb}, {YB}")
        a(f"s_lshl_b32 {s_tg}, {s_rt2}, 3")
        a(f"s_add_u32 {s_tg}, {s_tg}, {s_w}")
        a(f"s_mul_i32 {s_tmp}, {s_tg}, 20480")
        a(f"s_lshl_b32 {s_t2}, {s_ct}, 7")
        a(f"s_add_u32 {s_tmp}, {s_tmp}, {s_t2}")
        a(f"v_and_b32 {v_t0}, 7, {v_lane}")
        a(f"v_lshlrev_b32 {v_t0}, 4, {v_t0}")
        a(f"v_mul_u32_u24 {v_t2}, 1280, {v_l3}")
        a(f"v_add3_u32 {v_xo}, {v_t0}, {v_t2}, {s_tmp}")
        a(f"s_lshl_b32 {s_tmp}, {s_w}, 7")
        a(f"s_add_u32 {s_tmp}, {s_tmp}, {GOL}")
        a(f"v_lshl_add_u32 {v_go}, {v_l3}, 3, {s_tmp}")
        a(f"s_mov_b32 {s_c10}, 10240")
        srd(a, sO, WS, O_BYTES, O_OFF)
        srd(a, sOut, s_po, X_BYTES)
        a(f"v_mul_u32_u24 {v_t1}, {SP}, {v_l3}")
        a(f"v_add_u32 {v_t1}, {v_t0}, {v_t1}")
        a(f"s_mov_b32 {s_stg}, {STG}")
        a(f"s_cmp_ge_u32 {s_i}, 8")
        a(f"s_cselect_b32 {s_stg}, {QKV_BASE}, {s_stg}")
        a(f"s_mul_i32 {s_tmp}, {s_w}, {16*SP}")
        a(f"s_add_u32 {s_tmp}, {s_tmp}, {s_stg}")
        a(f"v_add_u32 {v_sr}, {s_tmp}, {v_t1}")

    def p2_gemm_setup():
        a(f"v_bfe_u32 {v_r}, {v_lane}, 2, 2")
        a(f"v_and_b32 {v_c}, 3, {v_lane}")
        a(f"s_add_u32 {s_tmp}, {s_tg}, {s_w}")
        a(f"s_lshr_b32 {s_t2}, {s_tmp}, 2")
        a(f"s_mul_i32 {s_t2}, {s_t2}, {80 - 4}")
        a(f"s_add_u32 {s_tmp}, {s_tmp}, {s_t2}")
        a(f"s_lshl_b32 {s_tmp}, {s_tmp}, 10")
        a(f"v_and_b32 {v_t0}, 15, {v_lane}")
        a(f"v_lshl_add_u32 {v_t0}, {v_t0}, 4, {s_tmp}")
        a(f"v_lshrrev_b32 {v_t1}, 5, {v_lane}")
        a(f"v_lshl_add_u32 {v_t0}, {v_t1}, 8, {v_t0}")
        a(f"v_and_b32 {v_t2}, 1, {v_g}")
        a(f"v_lshl_add_u32 {v_oo[0]}, {v_t2}, 10, {v_t0}")
        a(f"v_mov_b32 {v_oo[1]}, 0x1f000")
        assert WO_L == 0
        a(f"v_lshl_add_u32 {v_t0}, {v_t1}, 2, {v_r}")
        a(f"v_lshlrev_b32 {v_t0}, 7, {v_t0}")
        a(f"v_lshl_add_u32 {v_t0}, {v_c}, 3, {v_t0}")
        a(f"v_lshl_add_u32 {v_t0}, {v_t2}, 5, {v_t0}")
        a(f"v_lshrrev_b32 {v_t2}, 1, {v_r}")
        a(f"v_lshl_add_u32 {vn[0]}, {v_t2}, 6, {v_t0}")
        a(f"v_xor_b32 {vn[1]}, 64, {vn[0]}")
        a(f"v_and_b32 {v_t0}, 31, {v_lane}")
        a(f"v_mul_u32_u24 {v_t0}, {SP}, {v_t0}")
        a(f"v_lshl_add_u32 {v_t0}, {v_t1}, 3, {v_t0}")
        a(f"s_mul_i32 {s_tmp}, {s_w}, {32*SP}")
        a(f"s_add_u32 {s_tmp}, {s_tmp}, {s_stg}")
        a(f"v_add_u32 {v_sw}, {s_tmp}, {v_t0}")

    def p2_gemm_setup2():
        a(f"s_lshl_b32 {s_tmp}, {s_rt2}, 3")
        a(f"s_mul_i32 {s_t2}, {s_tmp}, 187")
        a(f"s_lshr_b32 {s_t2}, {s_t2}, 11")
        a(f"s_add_u32 {s_t2}, {s_t2}, 1")
        a(f"s_mul_i32 {s_t2}, {s_t2}, 11")
        a(f"s_add_u32 {s_tmp}, {s_tg}, {s_w}")
        a(f"s_add_u32 {s_tmp}, {s_tmp}, 1")
        a(f"s_cmp_ge_u32 {s_tmp}, {s_t2}")
        a(f"s_cselect_b32 {s_so}, 24, 16")
        a(f"s_cmp_gt_u32 {s_tmp}, {s_t2}")
        a(f"s_cselect_b32 {s_so}, 20, {s_so}")
        a(f"v_add_u32 {v_ma}, {s_so}, {v_yb}")
        for r in range(RO):
            a(f"s_mov_b32 {s_lo[r]}, -1")
        a(f"s_mov_b32 {s_rem}, 0xfffff")
        a(f"s_mov_b32 {s_bud}, {SPIN}")
        for m in range(2):
            for e in range(16):
                a(f"v_mov_b32 {acc[m]+e}, 0")

    def lgate(name, off, val, sleep=0):
        a(f"s_mov_b32 {s_tmp}, {SPIN*8}")
        a.label(f"K_P2_G{name}")
        a(f"ds_read_b32 {v_t0}, {v_yb} offset:{off}")
        if sleep:
            a(f"s_sleep {sleep}")
        a(f"s_sub_u32 {s_tmp}, {s_tmp}, 1")
        a("s_waitcnt lgkmcnt(0)")
        a(f"v_readfirstlane_b32 {s_t2}, {v_t0}")
        a("s_nop 3")
        a(f"s_cselect_b32 {s_t2}, {val}, {s_t2}")
        a(f"s_cmp_lt_u32 {s_t2}, {val}")
        a(f"s_cbranch_scc1 K_P2_G{name}")

    def xloads():
        a(f"buffer_load_dwordx4 {xv(4)}, {v_xo}, {sX(4)}, 0 offen")
        a(f"buffer_load_dwordx4 {(xv+4)(4)}, {v_xo}, {sX(4)}, {s_c10} offen")

    a.label("K_P2_EARLY")
    p2_common()
    xloads()
    p2_gemm_setup()
    p2_gemm_setup2()
    if SENT:
        a(f"s_cmp_ge_u32 {s_i}, 8")
        a("s_cbranch_scc1 K_P2_NW")
    a("s_waitcnt vmcnt(2)")
    a.label("K_P2_NW")
    a("s_barrier")
    stamp(a, "drained")
    a(f"s_cmp_lt_u32 {s_i}, 8")
    a("s_cbranch_scc1 K_P2_AUXW")
    a.label("K_P2_GEMM")
    a(f"s_setprio {P('GPRIO', 2)}")
    stamp(a, "p2in")
    spin = Asm()
    s_rdy, s_p = s_sel + 2, s_sel + 3
    assert RO % 3 == 0
    a(f"ds_read_b32 {v_m}, {v_ma}")
    a("s_waitcnt lgkmcnt(0)")
    stamp(a, "p2rdy")
    if P("P2LOG", 0):
        a("s_mov_b32 m0, 0")
        a("s_memrealtime s[78:79]")
        V.high = 256
    for r in range(RO):
        c = (r + 1) % RO
        rd = [f"ds_read_b64_tr_b16 {(fb[(c+2) % 3][t]+2*h)(2)}, {va[t >> 1]} offset:{(t & 1)*1024 + h*2048}" for t in range(4) for h in range(2)]
        rfl = f"v_readfirstlane_b32 {s_rdy}, {v_m}"
        mrd = f"ds_read_b32 {v_m}, {v_ma}"
        sand = f"s_and_b32 {s_t2}, {s_rdy}, {s_rem}"
        ff1 = f"s_ff1_i32_b32 {s_p}, {s_t2}"
        shl = f"s_lshl_b32 {s_lo[r]}, {s_p}, 12"
        clr = f"s_bitset0_b32 {s_rem}, {s_p}"
        ld = [f"buffer_load_dwordx4 {of[r][m](4)}, {v_oo[0]}, {sO(4)}, {s_lo[r]} offen offset:{m*512} {SC_LD}" for m in range(2)]
        ad = [f"v_and_or_b32 {va[t]}, {s_lo[(c+2) % RO]}, {v_oo[1]}, {vn[t]}" for t in range(2)]
        fill = [[rfl, mrd, ad[0], sand, rd[0], ff1, rd[1], shl], [ld[0], rd[2], ad[1], rd[3], rd[4]], [ld[1], rd[5], rd[6], rd[7], clr], []]
        a.label(f"K_IT{r}")
        a(f"s_cmp_lt_i32 {s_lo[c]}, 0")
        a(f"s_cbranch_scc1 K_SK{r}")
        a(f"s_waitcnt vmcnt({2*(RO-2)}) lgkmcnt(8)")
        if P("P2LOG", 0):
            a("v_writelane_b32 v251, s78, m0")
            a("s_memrealtime s[78:79]")
            a(f"v_writelane_b32 v252, {s_lo[c]}, m0")
            a(f"v_writelane_b32 v253, {s_rdy}, m0")
            a(f"v_writelane_b32 v250, {s_rem}, m0")
            a("s_add_u32 m0, m0, 1")
        if SENT:
            a(f"v_max_u32 {v_t0}, {of[c][0]}, {of[c][1]}")
            a(f"v_cmp_eq_u32 vcc, -1, {v_t0}")
            a(f"s_cbranch_vccnz K_FX{r}")
            a.label(f"K_GO{r}")
            spin.label(f"K_FX{r}")
            spin(f"s_sub_u32 {s_bud}, {s_bud}, 1")
            spin(f"s_cbranch_scc1 K_GO{r}")
            spin(f"s_lshr_b32 {s_p}, {s_lo[c]}, 12")
            spin(f"s_bitset1_b32 {s_rem}, {s_p}")
        for k, (nh, kh) in enumerate(((0, 0), (1, 0), (0, 1), (1, 1))):
            a(f"v_mfma_f32_32x32x16_bf16 {acc[nh](16)}, {fb[c % 3][2*nh + kh](4)}, {of[c][kh](4)}, {acc[nh](16)}")
            for l in fill[k]:
                a(l)
        if r == RO - 1:
            a("s_branch K_IT0")
        spin.label(f"K_SK{r}")
        spin("s_waitcnt lgkmcnt(8)")
        for l in (rfl, mrd, sand):
            spin(l)
        spin(f"s_cbranch_scc0 K_NUL{r}")
        spin.label(f"K_BK{r}")
        for l in [ff1, shl] + ld + [clr] + ad + rd:
            spin(l)
        spin(f"s_branch K_IT{c}")
        spin.label(f"K_NUL{r}")
        oth = [s_lo[j] for j in range(RO) if j not in (r, c)]
        spin(f"s_and_b32 {s_p}, {oth[0]}, {oth[1]}")
        for o in oth[2:]:
            spin(f"s_and_b32 {s_p}, {s_p}, {o}")
        spin(f"s_cmp_lt_i32 {s_p}, 0")
        spin(f"s_cbranch_scc0 K_PC{r}")
        spin(f"s_cmp_eq_u32 {s_rem}, 0")
        spin("s_cbranch_scc1 K_P2_MM")
        spin.label(f"K_SPN{r}")
        spin("s_waitcnt lgkmcnt(0)")
        spin(f"v_readfirstlane_b32 {s_rdy}, {v_m}")
        spin(f"ds_read_b32 {v_m}, {v_ma}")
        spin(f"s_and_b32 {s_t2}, {s_rdy}, {s_rem}")
        spin(f"s_cbranch_scc0 K_SPN{r}")
        spin(f"s_branch K_BK{r}")
        spin.label(f"K_PC{r}")
        spin(f"s_cmp_eq_u32 {s_rem}, 0")
        spin(f"s_cbranch_scc1 K_BK{r}")
        for _ in range(P("NPACE", 1)):
            spin("s_waitcnt lgkmcnt(0)")
            for l in (rfl, mrd, sand):
                spin(l)
            spin(f"s_cbranch_scc1 K_BK{r}")
        spin(f"s_branch K_BK{r}")
    if P("SPNEAR", 1):
        a.lines += spin.lines
        spin.lines = []
    a.label("K_P2_MM")
    seg_f0 = seg_f1 = len(a.lines)
    stamp(a, "p2mm")
    if P("P2LOG", 0):
        a("s_lshl_b32 s77, s2, 2")
        a(f"s_add_u32 s77, s77, {s_w}")
        a("s_lshl_b32 s77, s77, 10")
        a("s_add_u32 s77, s77, 0x%x" % (STAMP_OFF + 0x100000))
        a(f"v_lshl_add_u32 v254, {v_lane}, 4, s77")
        a(f"global_store_dwordx4 v254, v[250:253], {WS(2)}")
    for nh in range(2):
        for jq in range(4):
            tr = bxt[jq]
            a(f"v_cvt_pk_bf16_f32 {tr}, {acc[nh]+4*jq}, {acc[nh]+4*jq+1}")
            a(f"v_cvt_pk_bf16_f32 {tr+1}, {acc[nh]+4*jq+2}, {acc[nh]+4*jq+3}")
            a(f"ds_write_b64 {v_sw}, {tr(2)} offset:{nh*64 + jq*16}")
    for l in epi_pre():
        a(l)

    seg_h0 = len(a.lines)
    a.label("K_P2")
    a(f"s_cmp_ge_u32 {s_w}, 4")
    a("s_cbranch_scc1 K_P2_HELP")
    p2_common()
    xloads()
    p2_gemm_setup()
    p2_gemm_setup2()
    a.label("K_P2_AUXW")
    wo_voff(v_wo)
    wo_blocks(v_wo, s_w, 0, s_k1, s_k2, s_so, P("THR", 6))
    wo_blocks(v_wo, s_w, 1, s_k1, s_k2, s_so, P("THR", 6))
    warm_call("K_WRET_A", "A")
    a(f"v_mov_b32 {v_t1}, 1")
    a("s_waitcnt vmcnt(0)")
    a("s_mov_b64 exec, 1")
    a(f"ds_add_u32 {v_yb}, {v_t1} offset:44")
    a("s_mov_b64 exec, -1")
    lgate("WA", 44, 4)
    a("s_branch K_P2_GEMM")
    V.release(mV3)
    a.label("K_P2_HELP")
    a(f"s_setprio {P('HPRIO', 3)}")
    a(f"s_cmp_eq_u32 {s_w}, 7")
    a("s_cbranch_scc1 K_P2_W7")
    p2_common()
    srd(a, sY, WS, YP_BYTES, YP_OFF)
    vs = V.a(4)
    yq = V.many(14, 4)
    v_one = V.a()
    a(f"v_mov_b32 {v_one}, 1")
    xloads()
    a(f"s_cmp_lg_u32 {s_w}, 6")
    a("s_cbranch_scc1 K_P2_HW")
    a(f"s_mov_b32 {s_tmp}, {SPIN}")
    a("s_waitcnt vmcnt(2)")
    a.label("K_P2_DPOLL")
    a(f"v_min_u32 {v_t0}, {v_smp}, {v_pf}")
    a(f"v_cmp_eq_u32 vcc, 0, {v_t0}")
    a("s_cbranch_vccz K_P2_DOK")
    a(f"s_cmp_eq_u32 {s_tmp}, {SPIN}")
    a("s_cbranch_scc1 K_P2_DNS")
    a(f"s_sleep {P('DSLEEP', 12)}")
    a.label("K_P2_DNS")
    mb_sample(v_da)
    a(f"s_sub_u32 {s_tmp}, {s_tmp}, 1")
    a("s_waitcnt vmcnt(0)")
    a(f"s_cmp_lg_u32 {s_tmp}, 0")
    a("s_cbranch_scc1 K_P2_DPOLL")
    a.label("K_P2_DOK")
    a(f"v_readlane_b32 {s_k1}, {v_pf}, 0")
    a(f"v_readlane_b32 {s_k2}, {v_pf}, 1")
    a("s_nop 1")
    for t, sk in enumerate((s_k1, s_k2)):
        a(f"s_and_b32 {s_tmp}, {sk}, 0x7ff")
        a(f"s_sub_u32 {s_tmp}, 2047, {s_tmp}")
        a(f"v_mov_b32 {vs+t}, {s_tmp}")
        a(f"v_mov_b32 {v_t2}, {sk}")
        a(f"v_and_b32 {v_t2}, 0xffff0000, {v_t2}")
        a(f"v_ashrrev_i32 {v_t3}, 31, {v_t2}")
        a(f"v_not_b32 {v_t3}, {v_t3}")
        a(f"v_or_b32 {v_t3}, 0x80000000, {v_t3}")
        a(f"v_xor_b32 {v_t2}, {v_t2}, {v_t3}")
        a(f"v_and_b32 {v_t2}, 0xffff0000, {v_t2}")
        sigmoid(a, v_t2, v_t2, v_t3)
        bf16r(a, vs + 2 + t, v_t2)
    a(f"ds_write_b128 {v_yb}, {vs(4)}")
    a(f"ds_write_b32 {v_yb}, {v_one} offset:40")
    a(f"v_lshl_add_u32 {v_da}, {v_lane}, 4, {v_yb}")
    a(f"v_lshlrev_b32 {yq[0]}, 16, {v_smp}")
    a(f"v_and_b32 {yq[0]}, 0x7fff0000, {yq[0]}")
    a(f"v_and_b32 {yq[0]+2}, 0x7fff0000, {v_smp}")
    for e in (0, 2):
        a(f"v_sub_f32 {yq[0]+e+1}, 1.0, {yq[0]+e}")
        bf16r(a, yq[0] + e + 1, yq[0] + e + 1)
    a(f"ds_write_b128 {v_da}, {yq[0](4)} offset:{GOL - YB}")
    a("s_branch K_P2_E")
    a.label("K_P2_HW")
    lgate("S2", 40, 1, 1)
    a(f"ds_read_b128 {vsel(4)}, {v_yb}")
    a("s_waitcnt lgkmcnt(0)")
    a(f"s_cmp_eq_u32 {s_w}, 4")
    a("s_cselect_b64 vcc, -1, 0")
    a("s_nop 1")
    a(f"v_cndmask_b32 {v_t0}, {vsel+1}, {vsel}, vcc")
    a(f"v_cndmask_b32 {v_t3}, {vsel+3}, {vsel+2}, vcc")
    a("s_nop 0")
    a(f"v_readfirstlane_b32 {s_k1}, {v_t0}")
    a("s_nop 3")
    a(f"s_sub_u32 {s_tmp}, {s_k1}, {s_row0}")
    a(f"s_cmp_lt_u32 {s_tmp}, 128")
    a("s_cbranch_scc0 K_P2_E")
    a(f"v_min_u32 {v_t1}, {NSL-1}, {v_lane}")
    a(f"v_lshlrev_b32 {v_t1}, 5, {v_t1}")
    a(f"v_add_u32 {v_t1}, {FL_OFF + YFL}, {v_t1}")
    lgate("Y", 20, P("YG", 0x400), 1)
    a(f"s_mov_b32 {s_tmp}, {SPIN}")
    a.label("K_P2_YPOLL")
    a(f"global_load_dwordx4 {vs(4)}, {v_t1}, {WS(2)} {SC_POLL}")
    a(f"s_sub_u32 {s_tmp}, {s_tmp}, 1")
    a("s_waitcnt vmcnt(0)")
    a(f"v_and_b32 {v_t0}, {vs}, {vs+1}")
    a(f"v_and_b32 {v_t0}, {v_t0}, {vs+2}")
    a(f"v_and_b32 {v_t0}, {v_t0}, {vs+3}")
    a(f"v_cmp_ne_u32 vcc, 1, {v_t0}")
    a("s_cbranch_vccz K_P2_YGO")
    a(f"s_sleep {P('YSLEEP', 8)}")
    a(f"s_cmp_lg_u32 {s_tmp}, 0")
    a("s_cbranch_scc1 K_P2_YPOLL")
    a.label("K_P2_YGO")
    a(f"v_and_b32 {v_t0}, 15, {v_lane}")
    a(f"v_lshlrev_b32 {v_t0}, 4, {v_t0}")
    a(f"v_mul_u32_u24 {v_t2}, 5120, {v_g}")
    a(f"s_sub_u32 {s_k2}, {s_w}, 4")
    a(f"s_mul_i32 {s_t2}, {s_k2}, 2560")
    a(f"s_lshl_b32 {s_tmp}, {s_ct}, 8")
    a(f"s_add_u32 {s_tmp}, {s_tmp}, {s_t2}")
    a(f"v_add3_u32 {v_t1}, {v_t0}, {v_t2}, {s_tmp}")
    NQ = (NSL + 3) // 4
    for q in range(NQ):
        a(f"s_mov_b32 {s_so}, {q*20480}")
        a(f"buffer_load_dwordx4 {yq[q](4)}, {v_t1}, {sY(4)}, {s_so} offen {SC_LD}")
    for q in range(1, NQ):
        a(f"s_waitcnt vmcnt({NQ-1-q})")
        for e in range(4):
            a(f"v_add_f32 {vs+e}, {(vs if q > 1 else yq[0])+e}, {yq[q]+e}")
    for swap in ("v_permlane16_swap_b32", "v_permlane32_swap_b32"):
        for e in range(4):
            a(f"v_mov_b32 {yq[0]+e}, {vs+e}")
        a("s_nop 0")
        for e in range(4):
            a(f"{swap} {vs+e}, {yq[0]+e}")
        for e in range(4):
            a(f"v_add_f32 {vs+e}, {vs+e}, {yq[0]+e}")
    for e in range(4):
        bf16r(a, vs + e, vs + e)
        a(f"v_mul_f32 {vs+e}, {v_t3}, {vs+e}")
        bf16r(a, vs + e, vs + e)
    a(f"s_lshl_b32 {s_tmp}, {s_k2}, 8")
    a(f"s_add_u32 {s_tmp}, {s_tmp}, {YB + 256}")
    a(f"v_add_u32 {v_t0}, {s_tmp}, {v_t0}")
    a(f"ds_write_b128 {v_t0}, {vs(4)}")
    a("s_branch K_P2_E")
    a.label("K_P2_W7")
    a(f"s_lshl_b32 {s_tg}, {s_rt2}, 3")
    a(f"s_mul_i32 {s_k1}, {s_tg}, 187")
    a(f"s_lshr_b32 {s_k1}, {s_k1}, 11")
    a(f"s_add_u32 {s_tmp}, {s_tg}, 7")
    a(f"s_mul_i32 {s_k2}, {s_tmp}, 187")
    a(f"s_lshr_b32 {s_k2}, {s_k2}, 11")
    a(f"s_sub_u32 {s_k2}, {s_k2}, {s_k1}")
    a(f"s_lshl_b32 {s_k2}, {s_k2}, 4")
    a(f"s_or_b32 {s_k2}, {s_k2}, 15")
    a(f"v_and_b32 {v_fa}, 31, {v_lane}")
    a(f"v_mul_u32_u24 {v_t0}, 52, {v_fa}")
    a(f"v_lshrrev_b32 {v_t0}, 8, {v_t0}")
    a(f"v_sub_u32 {v_fa}, {v_fa}, {v_t0}")
    a(f"v_lshrrev_b32 {v_t0}, 5, {v_lane}")
    a(f"v_lshl_add_u32 {v_fa}, {v_t0}, 4, {v_fa}")
    a(f"v_and_b32 {v_fa}, {s_k2}, {v_fa}")
    a(f"v_lshl_add_u32 {v_fa}, {v_fa}, 2, {s_mb}")
    zpoll(1)
    a(f"global_load_dword {v_smp}, {v_fa}, {WS(2)} {SC_POLL}")
    s_mm, s_tb, s_ma, s_tq = sY, sY + 2, s_sel, s_sel + 2
    a(f"s_mov_b32 {s_mm}, 0x7bdef")
    a(f"s_mov_b32 {s_mm+1}, {s_mm}")
    a(f"s_mov_b32 {s_tb}, 0x84210")
    a(f"s_mov_b32 {s_tb+1}, {s_tb}")
    a(f"v_mov_b32 {v_yb}, {YB}")
    a(f"s_cmp_lt_u32 {s_i}, 8")
    a("s_cbranch_scc1 K_P2_W7A")
    a(f"s_waitcnt vmcnt({3 if SENT else 1})")
    a("s_barrier")
    a(f"s_setprio {P('HPRIO', 3)}")
    a.label("K_P2_W7A")
    stamp(a, "fin")

    def publish():
        a(f"v_cmp_eq_u32 vcc, 1, {v_smp}")
        a(f"s_and_b64 {s_ma(2)}, vcc, {s_mm(2)}")
        a(f"s_lshl_b64 {s_tq(2)}, {s_ma(2)}, 1")
        a(f"s_and_b64 {s_tq(2)}, {s_tq(2)}, {s_ma(2)}")
        a(f"s_lshl_b64 vcc, {s_tq(2)}, 2")
        a(f"s_and_b64 {s_tq(2)}, {s_tq(2)}, vcc")
        a(f"s_lshl_b64 {s_tq(2)}, {s_tq(2)}, 1")
        a(f"s_and_b64 {s_tq(2)}, {s_tq(2)}, {s_tb(2)}")
        a(f"s_or_b64 {s_ma(2)}, {s_ma(2)}, {s_tq(2)}")
        a(f"s_and_b32 {s_k1}, {s_ma}, {s_ma+1}")
        a(f"v_mov_b32 {vs}, {s_ma}")
        a(f"v_mov_b32 {vs+1}, {s_ma+1}")
        a(f"v_mov_b32 {vs+2}, {s_k1}")
        a(f"ds_write_b96 {v_yb}, {vs(3)} offset:16")

    a("s_waitcnt vmcnt(0)")
    publish()
    a(f"global_load_dword {v_smp}, {v_fa}, {WS(2)} {SC_POLL}")
    p2_common()
    xloads()
    a(f"s_mov_b32 {s_tmp}, {SPIN}")
    a("s_waitcnt vmcnt(2)")
    a.label("K_P2_FCHK")
    publish()
    a(f"s_cmp_eq_u32 {s_k1}, 0xfffff")
    a("s_cbranch_scc1 K_P2_FGO")
    a(f"s_cmp_lg_u64 {s_ma(2)}, 0")
    a("s_cbranch_scc1 K_P2_FS")
    a(f"s_sleep {P('FSLEEP0', 16)}")
    a.label("K_P2_FS")
    a(f"s_sleep {P('FSLEEP', 6)}")
    a(f"global_load_dword {v_smp}, {v_fa}, {WS(2)} {SC_POLL}")
    a(f"s_sub_u32 {s_tmp}, {s_tmp}, 1")
    a("s_waitcnt vmcnt(0)")
    a("s_cbranch_scc0 K_P2_FCHK")
    for e in range(3):
        a(f"v_mov_b32 {vs+e}, -1")
    a(f"ds_write_b96 {v_yb}, {vs(3)} offset:16")
    a.label("K_P2_FGO")
    stamp(a, "fgo")
    a.label("K_P2_E")
    a("s_setprio 0")
    a("s_waitcnt vmcnt(0)")
    for l in epi_pre():
        a(l)
    a("s_branch K_P2_E2")
    seg_h1 = len(a.lines)

    V.release(mV3)
    a.label("K_P2_E2")
    av = V.a(8)
    yt = V.a(12)
    ta = V.a(4)
    a("s_waitcnt vmcnt(0) lgkmcnt(0)")
    s_r16 = S.a()
    a(f"s_lshl_b32 {s_r16}, {s_tg}, 4")
    a("s_barrier")
    stamp(a, "p2e")
    a(f"ds_read_b64 {vsel(2)}, {v_yb}")
    a(f"ds_read_b64 {gv[0](2)}, {v_go}")
    a(f"ds_read_b128 {av(4)}, {v_sr}")
    a(f"ds_read_b64 {gv[1](2)}, {v_go} offset:64")
    a(f"ds_read_b128 {(av+4)(4)}, {v_sr} offset:{8*SP}")
    a("s_waitcnt lgkmcnt(4)")
    for k in range(2):
        a(f"v_readfirstlane_b32 {s_sel+k}, {vsel+k}")
    rare = Asm()
    for t in range(2):
        a(f"s_sub_u32 {s_tmp}, {s_sel+t}, {s_r16}")
        a(f"s_cmp_lt_u32 {s_tmp}, 16")
        a(f"s_cbranch_scc1 K_YROW{t}")
        a.label(f"K_NOY{t}")
        r_ = rare
        r_.label(f"K_YROW{t}")
        r_(f"v_and_b32 {v_t0}, 7, {v_lane}")
        r_(f"v_lshlrev_b32 {v_t0}, 5, {v_t0}")
        r_(f"v_add_u32 {v_t0}, {YB + 256 + t*256}, {v_t0}")
        r_(f"ds_read_b128 {yt(4)}, {v_t0}")
        r_(f"ds_read_b128 {(yt+4)(4)}, {v_t0} offset:16")
        r_(f"s_and_b32 {s_t2}, {s_tmp}, 7")
        r_(f"v_cmp_eq_u32 vcc, {s_t2}, {v_l3}")
        r_(f"s_cmp_ge_u32 {s_tmp}, 8")
        r_(f"s_cbranch_scc1 K_YR1_{t}")
        for j in range(2):
            if j:
                r_.label(f"K_YR1_{t}")
            r_("s_waitcnt lgkmcnt(0)")
            for i in range(8):
                tt_ = yt + 8 + (i & 3)
                r_(f"v_add_f32 {tt_}, {bx+8*j+i}, {yt+i}")
                bf16r(r_, tt_, tt_)
                r_(f"v_cndmask_b32 {bx+8*j+i}, {bx+8*j+i}, {tt_}, vcc")
            r_(f"s_branch K_NOY{t}")
    OSC = os.environ.get("OUT_SC", "sc1")
    for j in range(2):
        a(f"s_waitcnt lgkmcnt({3-2*j})")
        for i in range(4):
            b_ = bx + 8 * j + 2 * i
            a(f"v_pk_mul_f32 {b_(2)}, {b_(2)}, {gv[j](2)} op_sel:[0,1] op_sel_hi:[1,1]")
        a(f"s_waitcnt lgkmcnt({2-2*j})")
        for i in range(4):
            r = av + 4 * j + i
            t = ta + 2 * (i & 1)
            a(f"v_lshlrev_b32 {t}, 16, {r}")
            a(f"v_and_b32 {t+1}, 0xffff0000, {r}")
            a(f"v_pk_fma_f32 {t(2)}, {t(2)}, {gv[j](2)}, {(bx+8*j+2*i)(2)} op_sel_hi:[1,0,1]")
            a(f"v_cvt_pk_bf16_f32 {r}, {t}, {t+1}")
        a(f"buffer_store_dwordx4 {(av+4*j)(4)}, {v_xo}, {sOut(4)}, {'0' if j == 0 else s_c10} offen {OSC}")
    a.label("K_END")
    stamp_flush(a, 0, WS, "K_STX")
    a.label("K_EXIT")
    a("s_endpgm")
    L = a.lines
    a.lines = L[:seg_aux0] + L[seg_aux1:seg_f0] + L[seg_f1:seg_h0] + L[seg_h1:] + rare.lines + spin.lines + L[seg_f0:seg_f1] \
        + L[seg_h0:seg_h1]
    a.label("K_CHEND")
    a.lines += L[seg_aux0:seg_aux1]
    a.label("K_CODE_END")
    return V.high, S.high


def kd(name, vg, sg):
    vg = (vg + 7) // 8 * 8
    return """.amdhsa_kernel %s
  .amdhsa_next_free_vgpr %d
  .amdhsa_next_free_sgpr %d
  .amdhsa_accum_offset %d
  .amdhsa_group_segment_fixed_size 0
  .amdhsa_kernarg_size 96
  .amdhsa_user_sgpr_count 2
  .amdhsa_user_sgpr_kernarg_segment_ptr 1
  .amdhsa_system_sgpr_workgroup_id_x 1
.end_amdhsa_kernel""" % (name, vg, 100 if STAMP else max(sg, 16), vg)


ENTRY_OFF = 0x300


def is_instr(l):
    return l.startswith("    ") and not l.strip().startswith(";")


def sizes_of(head, body, tail):
    import subprocess, tempfile, re
    fix = ["K_CH%s%d:" % (c, k) for k in range(4) for c in "MA"] + ["K_CPL = 32"]
    with tempfile.TemporaryDirectory() as d:
        open(d + "/t.s", "w").write("\n".join(head + body + fix + ["s_endpgm"] + tail) + "\n")
        subprocess.run(["clang", "-x", "assembler", "-target", "amdgcn-amd-amdhsa", "-mcpu=gfx950", "-c",
                        d + "/t.s", "-o", d + "/t.o"], check=True)
        dis = subprocess.run(["llvm-objdump", "-d", d + "/t.o"], capture_output=True, text=True, check=True).stdout
    addrs = [int(m.group(1), 16) for m in re.finditer(r"// ([0-9A-F]{12}):", dis)]
    n = sum(map(is_instr, body))
    assert len(addrs) == n + 1, (len(addrs), n)
    return [addrs[i + 1] - addrs[i] for i in range(n)]


def layout(head, body, tail):
    sz = sizes_of(head, body, tail)
    out, stubs = [], []
    addr, last, k = ENTRY_OFF, ENTRY_OFF, 0
    dead, on, D1, DF = False, False, P("WD1", 512), P("WDF", 960)
    for idx, l in enumerate(body):
        if l.startswith("K_LOADER:"):
            on = bool(P("WARM", 1))
        if l.startswith("K_CHEND:"):
            on = False
        if l.startswith("K_P2_EARLY:"):
            a0 = len(stubs)
        if not is_instr(l):
            if l.endswith(":") and dead and on and addr - last >= D1 and (addr & 4095) <= 4096 - 64 and not l.startswith(("K_WRET", "K_CONS", "K_YR", "K_NOLT", "K_LOADER")):
                out.append(("stub", len(stubs))); stubs.append(addr); last = addr; addr += 8
            if l.endswith(":"):
                dead = False
            out.append(l)
            continue
        n = sz[k]; k += 1
        if (addr & 4095) + n + 4 > 4096 and P("WPAGE", 1):
            lab = "K_PG%d" % (addr >> 12)
            out.append("    s_branch " + lab)
            out.append(".p2align 12")
            addr = (addr + 4 + 4095) & ~4095
            if on:
                out.append(("stub", len(stubs))); stubs.append(addr); addr += 8
            last = addr
            out.append(lab + ":")
        elif DF and on and addr - last >= DF and (addr & 4095) < 4096 - 64:
            lab = "K_J%x" % addr
            out.append("    s_branch " + lab)
            out.append(("stub", len(stubs))); stubs.append(addr + 4); last = addr + 4; addr += 12
            out.append(lab + ":")
        out.append(l)
        addr += n
        op = l.split()[0]
        dead = op in ("s_branch", "s_endpgm")
    res = []
    ns = len(stubs)
    for o in out:
        if isinstance(o, tuple):
            j = o[1]
            for c, j0 in (("M", 0), ("A", a0)):
                if 0 <= j - j0 < 4:
                    res.append("K_CH%s%d:" % (c, j - j0))
                res.append("K_ST%s%d:" % (c, j))
                res.append("    s_branch " + ("K_ST%s%d" % (c, j + 4) if j + 4 < ns else "K_WRET_" + c))
        else:
            res.append(o)
    assert ns >= 4 or not P("WARM", 1)
    cpl = -(-(addr - ENTRY_OFF) // 1024)
    assert cpl <= 64
    print("code bytes", addr - ENTRY_OFF, "stubs", [hex(x) for x in stubs])
    return ["K_CPL = %d" % cpl] + res


def main():
    a = Asm()
    for l in HEADER:
        a.raw(l)
    a.raw("; @launch grid=(256,1,1) block=(512,1,1) lds=%d" % LDS_BYTES)
    a.raw('.amdgcn_target "amdgcn-amd-amdhsa--gfx950"')
    a.raw(".text")
    head = a.lines
    a.lines = []
    v1, s1 = gen(a)
    body = a.lines
    tail = ['.section .rodata,"a"', ".p2align 6", kd(KNAME, v1, s1)]
    a.lines = head + layout(head, body, tail) + tail
    out = sys.argv[1] if len(sys.argv) > 1 else os.path.join(os.path.dirname(os.path.abspath(__file__)), "..", NAME + ".s")
    open(out, "w").write(a.text())
    print("wrote", out, "v%d s%d" % (v1, s1))


if __name__ == "__main__":
    main()
```

```python
import sys, os, subprocess, ctypes
sys.path.insert(0, "code"); sys.path.insert(0, "cdna_kernels")
import numpy as np
import cdna_launch as cl
hip = cl._hip
NIT = 10

def gen(var):
    L = ["; @launch grid=(160,1,1) block=(512,1,1) lds=163840", '.amdgcn_target "amdgcn-amd-amdhsa--gfx950"', ".text", ".p2align 8", ".globl t_kernel", ".type t_kernel,@function", "t_kernel:"]
    a = L.append
    a("s_load_dwordx2 s[8:9], s[0:1], 0")
    a("s_load_dwordx2 s[4:5], s[0:1], 88")
    a("v_readfirstlane_b32 s3, v0")
    a("s_lshr_b32 s3, s3, 6")
    a("s_mov_b32 s10, 0x280000")
    a("s_mov_b32 s11, 0x20000")
    a("v_and_b32 v1, 63, v0")
    a("s_and_b32 s6, s2, 15")
    a("s_mul_i32 s6, s6, 163840")
    tok = var in ("V1", "V1s", "V1p")
    if tok:
        a("s_lshr_b32 s7, s3, 2"); a("s_mul_i32 s7, s7, 81920"); a("s_add_u32 s6, s6, s7"); a("s_and_b32 s7, s3, 3"); a("s_lshl_b32 s7, s7, 10")
    else:
        a("s_bfe_u32 s7, s3, 0x10001"); a("s_mul_i32 s7, s7, 81920"); a("s_add_u32 s6, s6, s7"); a("s_and_b32 s7, s3, 1"); a("s_lshl_b32 s7, s7, 11")
    a("s_add_u32 s6, s6, s7")
    a("v_lshl_add_u32 v2, v1, 4, s6")
    a("v_mov_b32 v3, 0x1f000")
    for t in range(4):
        a("v_lshlrev_b32 v%d, %d, v1" % (4 + t, 4 if "p" in var else 3))
    a("v_mov_b32 v12, 158720")
    a("v_mov_b32 v13, 0")
    a("ds_write_b32 v12, v13")
    for r in range(200):
        a("v_mov_b32 v%d, 0" % (16 + r))
    for r in range(6):
        a("s_mov_b32 s%d, 0" % (20 + r))
    a("s_mov_b32 s30, -1"); a("s_mov_b32 s31, 0"); a("s_mov_b32 s33, 0")
    a("s_lshl_b32 s36, s3, 11"); a("s_add_u32 s36, s36, 73728")
    a("v_lshl_add_u32 v14, v1, 4, s36"); a("v_add_u32 v14, 8192, v14")
    a("s_waitcnt lgkmcnt(0)")
    a("s_barrier")
    if var.startswith("V0"):
        a("s_cmp_ge_u32 s3, 4"); a("s_cbranch_scc1 DONE")
    if var == "V3":
        a("s_cmp_ge_u32 s3, 4"); a("s_cbranch_scc1 LOADER")
    a("s_mov_b32 s34, %d" % (NIT + 2 if var != "V2" else NIT // 2 + 2))
    a("LOOP:")
    a("s_cmp_eq_u32 s34, %d" % (NIT if var != "V2" else NIT // 2)); a("s_cbranch_scc0 NOST"); a("s_memtime s[40:41]"); a("NOST:")
    OF, ACC, FB = 16, 64, 96
    for r in range(6):
        c = (r + 1) % 6
        nl = 1 if tok else 2
        of = lambda s, m: "v[%d:%d]" % (OF + 8 * s + 4 * m, OF + 8 * s + 4 * m + 3)
        fb = lambda b, t, n=4, o=0: "v[%d:%d]" % (FB + 16 * b + 4 * t + o, FB + 16 * b + 4 * t + o + n - 1)
        rfl, mrd = "v_readfirstlane_b32 s31, v13", "ds_read_b32 v13, v12"
        pick = ["s_add_u32 s33, s33, 1", "s_cmp_eq_u32 s33, 20", "s_cselect_b32 s33, 0, s33", "s_lshl_b32 s%d, s33, 12" % (20 + r)]
        ld = ["buffer_load_dwordx4 %s, v2, s[8:11], s%d offen offset:%d sc1" % (of(r, m), 20 + r, 1024 * m) for m in range(nl)]
        na = {"V1": 4, "V1s": 1}.get(var, 1 if "p" in var else 2)
        ad = ["v_and_or_b32 v%d, s%d, v3, v%d" % (8 + t, 20 + (c + 2) % 6, 4 + t) for t in range(na)]
        if "p" in var:
            rd = ["ds_read_b128 %s, v8 offset:%d" % (fb((c + 2) % 3, t), t * 1024) for t in range(4)]
        else:
            rd = ["ds_read_b64_tr_b16 %s, v%d offset:%d" % (fb((c + 2) % 3, t, 2, 2 * h), 8 + (t * na) // 4, (2 * t + h) * 512) for t in range(4) for h in range(2)]
        if var.startswith("V0") and var not in ("V0", "V0n"):
            n = (c + 1) % 6
            top = ["s_cmp_lt_i32 s%d, 0" % (20 + n), "s_cbranch_scc1 DONE"]
            chk = ["s_waitcnt vmcnt(8)", "v_max_u32 v15, v%d, v%d" % (OF + 8 * n, OF + 8 * n + 4), "v_cmp_eq_u32 vcc, -1, v15", "s_cbranch_vccnz DONE"]
            m = [rfl, mrd] if ("h" not in var or r % 2 == 0) else []
            w = "s_waitcnt lgkmcnt(%d)" % len(rd)
            if "p" in var:
                fill = [m + [ad[0]] + pick[:2] + [rd[0]], pick[2:] + [ld[0], rd[1]], [ld[1], rd[2], rd[3]], chk[:3] + top + [chk[3], w]]
                if "b" in var:
                    fill = [m + pick + [ld[0]], [ad[0], rd[0], ld[1], rd[1]], [rd[2], chk[0], chk[1], rd[3], chk[2]], top + [chk[3], w]]
            else:
                fill = [m + [ad[0], pick[0], rd[0], pick[1], rd[1], pick[2], pick[3]], [ld[0], rd[2], ad[1], rd[3], rd[4]], [ld[1], rd[5], rd[6], rd[7]], chk[:3] + top + [chk[3], w]]
                if "b" in var:
                    fill = [m + pick + [ld[0], ad[0]], [rd[0], rd[1], ld[1], ad[1], rd[2]], [rd[3], chk[0], chk[1], rd[4], chk[2], rd[5]], [rd[6], rd[7]] + top + [chk[3], w]]
                if "c" in var:
                    fill = [[ad[0], rd[0], rd[1]] + m + pick[:2], pick[2:] + [ld[0], rd[2], rd[3], ad[1]], [ld[1], rd[4], rd[5], chk[0], chk[1]], [rd[6], chk[2], rd[7]] + top + [chk[3], w]]
            if "u" in var:
                cu = "v_cmp_u_f32 vcc, v%d, v%d" % (OF + 8 * n, OF + 8 * n + 4)
                br = "s_cbranch_vccnz DONE"
                ww = "s_waitcnt vmcnt(8) lgkmcnt(%d)" % len(rd)
                pk = pick[:1] + ["s_cbranch_execz DONE"] + pick[1:]
                if "p" in var:
                    fill = [[ad[0], rd[0]] + pk, [ld[0], rd[1], rd[2]], [ld[1], rd[3]], [ww, cu] + top + [br]]
                elif "d" in var:
                    fill = [pk + [ld[0], rd[0], rd[1]], [ld[1], rd[2], rd[3], rd[4]], [rd[5], rd[6], rd[7]], [ww, cu] + ["v_and_or_b32 v%d, s%d, v3, v%d" % (8 + t, 20 + (c + 3) % 6, 4 + t) for t in range(2)] + top + [br]]
                elif "x" in var:
                    A = ["v_and_or_b32 v%d, s%d, v3, v%d" % (8 + t, 20 + (c + 3) % 6, 4 + t) for t in range(2)]
                    pat = var[4:]
                    tp = [] if "T" in pat else top
                    if "B" in pat: pk = pick[:1] + ["s_nop 0"] + pick[1:]
                    if "1" in pat: fill = [[rd[0], rd[1]] + pk[:3] + [rd[2]], pk[3:] + [ld[0], rd[3], rd[4]], [ld[1], rd[5], rd[6], rd[7]], [ww, cu] + A + tp + [br]]
                    if "2" in pat: fill = [[rd[0], rd[1], rd[2]] + pk, [ld[0], rd[3], rd[4], rd[5]], [ld[1], rd[6], rd[7]], [ww, cu] + A + tp + [br]]
                    if "3" in pat: fill = [[ld[0], rd[0], rd[1], rd[2]], [ld[1], rd[3], rd[4], rd[5]], [rd[6], rd[7]] + pk[:4] + ["s_lshl_b32 s%d, s33, 12" % (20 + c)], [ww, cu] + A + tp + [br]]
                    if "4" in pat: fill = [[ld[0], rd[0], rd[1], rd[2]], [rd[3], rd[4], rd[5]] + pk[:4], [ld[1], rd[6], rd[7], "s_lshl_b32 s%d, s33, 12" % (20 + c)], [ww, cu] + A + tp + [br]]
                    if "5" in pat: fill = [[rd[0], rd[1], ld[0], rd[2]], [rd[3], rd[4], ld[1], rd[5]], [rd[6], rd[7], ww, cu] + A, pk[:4] + ["s_lshl_b32 s%d, s33, 12" % (20 + c)] + tp + [br]]
                    if "6" in pat: fill = [[rd[0], rd[1], rd[2], ld[0]], [rd[3], rd[4], rd[5], ld[1]], [rd[6], rd[7]] + pk[:4] + ["s_lshl_b32 s%d, s33, 12" % (20 + c)], A + [ww, cu] + tp + [br]]
                elif "e" in var:
                    fill = [[rd[0], rd[1]] + pk[:3] + [rd[2]], pk[3:] + [ld[0], rd[3], rd[4]], [ld[1], rd[5], rd[6], rd[7]], [ww, cu] + ["v_and_or_b32 v%d, s%d, v3, v%d" % (8 + t, 20 + (c + 3) % 6, 4 + t) for t in range(2)] + top + [br]]
                else:
                    fill = [[ad[0], rd[0], rd[1]] + pk, [ld[0], rd[2], rd[3], ad[1], rd[4]], [ld[1], rd[5], rd[6], rd[7]], [ww, cu] + top + [br]]
            for k in range(4):
                nh, kh = k & 1, k >> 1
                a("v_mfma_f32_32x32x16_bf16 v[%d:%d], %s, %s, v[%d:%d]" % (ACC + 16 * nh, ACC + 16 * nh + 15, fb(c % 3, 2 * nh + kh), of(c, kh), ACC + 16 * nh, ACC + 16 * nh + 15))
                for x in fill[k]:
                    a(x)
            continue
        a("s_cmp_lt_i32 s%d, 0" % (20 + c)); a("s_cbranch_scc1 DONE")
        if var == "V3":
            ord_ = ["ds_read_b128 %s, v14 offset:%d" % (of((c + 2) % 6, m), ((c + 2) % 6) * 8192 + m * 1024) for m in range(2)]
            a("s_waitcnt lgkmcnt(11)")
            a("v_max_u32 v15, v%d, v%d" % (OF + 8 * c, OF + 8 * c + 4)); a("v_cmp_eq_u32 vcc, -1, v15"); a("s_cbranch_vccnz DONE")
            fill = [[rfl, mrd, pick[3], ad[0], rd[0], rd[1]], [ord_[0], rd[2], ad[1], rd[3], rd[4]], [ord_[1], rd[5], rd[6], rd[7], "ds_write_b32 v12, v13 offset:64"], []]
        elif tok:
            a("s_waitcnt vmcnt(4) lgkmcnt(%d)" % len(rd))
            a("v_cmp_eq_u32 vcc, -1, v%d" % (OF + 8 * c)); a("s_cbranch_vccnz DONE")
            seq = [rfl, mrd] + [ad[0]] + pick + ld
            k = 1
            for i, x in enumerate(rd):
                seq.append(x)
                if k < na and i % 2 == 1:
                    seq.append(ad[k]); k += 1
            n = (len(seq) + 2) // 3
            fill = [seq[:n], seq[n:2 * n], seq[2 * n:], []]
        else:
            a("s_waitcnt vmcnt(8) lgkmcnt(8)")
            if var != "V0n":
                a("v_max_u32 v15, v%d, v%d" % (OF + 8 * c, OF + 8 * c + 4)); a("v_cmp_eq_u32 vcc, -1, v15"); a("s_cbranch_vccnz DONE")
            fill = [[rfl, mrd, ad[0], pick[0], rd[0], pick[1], rd[1], pick[2], pick[3]], [ld[0], rd[2], ad[1], rd[3], rd[4]], [ld[1], rd[5], rd[6], rd[7]], []]
        for k in range(4):
            if tok:
                a("v_mfma_f32_16x16x32_bf16 v[%d:%d], %s, %s, v[%d:%d]" % (ACC + 4 * k, ACC + 4 * k + 3, fb(c % 3, k), of(c, 0), ACC + 4 * k, ACC + 4 * k + 3))
            else:
                nh, kh = k & 1, k >> 1
                a("v_mfma_f32_32x32x16_bf16 v[%d:%d], %s, %s, v[%d:%d]" % (ACC + 16 * nh, ACC + 16 * nh + 15, fb(c % 3, 2 * nh + kh), of(c, kh), ACC + 16 * nh, ACC + 16 * nh + 15))
            for x in fill[k]:
                a(x)
        if var == "V3" and r % 2 == 1:
            a("s_barrier")
    a("s_sub_u32 s34, s34, 1"); a("s_cmp_lg_u32 s34, 0"); a("s_cbranch_scc1 LOOP")
    a("s_memtime s[42:43]")
    a("s_waitcnt vmcnt(0) lgkmcnt(0)")
    a("s_sub_u32 s42, s42, s40")
    a("s_lshl_b32 s6, s2, 3"); a("s_add_u32 s6, s6, s3"); a("s_lshl_b32 s6, s6, 2")
    a("v_mov_b32 v1, s6"); a("v_mov_b32 v2, s42")
    a("global_store_dword v1, v2, s[4:5]")
    a("DONE:")
    a("s_endpgm")
    if var == "V3":
        a("LOADER:")
        a("s_mov_b32 s34, %d" % (3 * (NIT + 2)))
        a("LL:")
        for k in range(2):
            a("s_add_u32 s33, s33, 1"); a("s_cmp_eq_u32 s33, 20"); a("s_cselect_b32 s33, 0, s33"); a("s_lshl_b32 s20, s33, 12")
            a("s_add_u32 m0, s36, %d" % (k * 8192)); a("s_nop 0")
            a("buffer_load_dwordx4 v2, s[8:11], s20 offen sc1 lds")
            a("buffer_load_dwordx4 v2, s[8:11], s20 offen offset:1024 sc1 lds")
        a("s_waitcnt vmcnt(8)")
        a("s_barrier")
        a("s_sub_u32 s34, s34, 1"); a("s_cmp_lg_u32 s34, 0"); a("s_cbranch_scc1 LL")
        a("s_waitcnt vmcnt(0)")
        a("s_endpgm")
    a('.section .rodata,"a"\n.p2align 6\n.amdhsa_kernel t_kernel\n.amdhsa_next_free_vgpr 224\n.amdhsa_next_free_sgpr 100\n.amdhsa_accum_offset 224\n.amdhsa_group_segment_fixed_size 0\n.amdhsa_kernarg_size 96\n.amdhsa_user_sgpr_count 2\n.amdhsa_user_sgpr_kernarg_segment_ptr 1\n.amdhsa_system_sgpr_workgroup_id_x 1\n.end_amdhsa_kernel')
    return "\n".join(L) + "\n"
def build(src, name, path):
    open(path + ".s", "w").write(cl.with_harness_metadata(src, name, 12, launch_lists=True))
    r = subprocess.run(["clang", "-x", "assembler", "-target", "amdgcn-amd-amdhsa", "-mcpu=gfx950", path + ".s", "-o", path + ".co"], capture_output=True, text=True)
    assert r.returncode == 0, r.stderr
    return cl.AsmKernel(path + ".co", name) if os.path.exists("/dev/kfd") else cl.address_register_problem(path + ".co", name)
if not os.path.exists("/dev/kfd"):
    for v in sys.argv[1:]:
        print(v, build(gen(v), "t_kernel", "p2_" + v))
    sys.exit(0)
rng = np.random.RandomState(0)
dat = (rng.randn(2 << 20).astype(np.float32).view(np.uint32) >> 16).astype(np.uint16)
src = cl.DeviceBuffer.from_numpy(dat); ws = cl.DeviceBuffer(4 << 20)
ka = cl.pack_ptr_kernargs([src.ptr] * 11 + [ws.ptr])
for v in sys.argv[1:]:
    k = build(gen(v), "t_kernel", "p2_" + v)
    res = []
    for it in range(6):
        cl.hip_check(hip.hipMemset(ws._ptr, 0, 1 << 20))
        k.launch((160, 1, 1), (512, 1, 1), ka, 163840)
        cl.hip_check(hip.hipDeviceSynchronize())
        t = ws.to_numpy(np.uint32, (160, 8)).astype(float)
        res.append(t.max(axis=1).mean())
    print(v, "clk per step: %.1f" % (np.median(res) / (6 * NIT)))
```

```python
from common import *

KNAME = NAME + "_kernel"
SC_POLL = os.environ.get("SC_POLL", "sc1")
SC_FLAG = os.environ.get("SC_FLAG", "sc1")
SC_ST = os.environ.get("SC_ST", "sc1")
SC_LD = os.environ.get("SC_LD", "sc1")
FNT = os.environ.get("FNT", "")
FNTD = os.environ.get("FNTD", FNT)
FL_OFF = 0x80000
KMB = 160 * 512
ZBYTES = KMB + 1024
ZKB = 10
HUB = 63
NZ = 8
GW0 = 24
MT = 12
MH = 6
RROWS = (MT - 1) * 16
XREG = MT * 2048
SLOT = XREG + 16384
LA = 2
NS = 3
NCH = 10
WO_L = 0
XB = 3 * SLOT
TV = XB + 3072
TVD = TV + 2 * 1664
TS = TVD + 2048
STG = 140288
assert TS + 3072 + 256 <= STG
SP = 144
YB = STG + 8 * 16 * SP
LDS_BYTES = 4 * SLOT
SPIN = 0x20000
SENT = P("SENT", 1)
YCNT = KMB + 512


def gen(a):
    a.raw(".p2align 12")
    a.raw(".p2align 8")
    a.raw(f".globl {KNAME}")
    a.raw(f".type {KNAME},@function")
    a.label(KNAME)
    S = RA("s", 3, 82 if STAMP else 100)
    V = RA("v", 1, 256)
    s_tmp = S.a()
    s_pws = S.a(4)
    s_pwo = S.a(2)
    s_po = S.a(2)
    sX, sW, sO, sWO = S.many(4, 4)
    s_xcd, s_i, s_w, s_rt, s_hg, s_t2, s_n = S.many(7)
    s_half = S.a()
    s_fb = S.a()
    s_fl = S.a()
    s_pc = S.a(2)
    v_lane, v_t0, v_t1, v_t2, v_t3, v_pf, v_smp = V.many(7)
    DBG, WS = s_pws, s_pws + 2

    s_rt2, s_ct = S.many(2)
    s_mb = S.a()
    mS, mV = S.mark(), V.mark()
    s_j, s_pm, s_pg = S.a(), S.a(8), S.a(2)
    S.release(mS)
    s_lw, s_xb, s_m0x, s_m0w, s_sox, s_sow, s_kc, s_wb, s_xk, s_so1 = S.many(10)
    v_xo = V.many(2)
    v_wo = V.many(2)
    ORDER = [("w", 0), ("x", 0), ("w", 1), ("x", 1), ("x", 2), ("w", 2), ("x", 3), ("w", 3), ("x", 4), ("x", 5)]
    HS = P("HSPLIT", 5)

    def dma_head():
        a(f"s_lshl_b32 {s_sox}, {s_kc}, 7")
        a(f"s_mul_i32 {s_sow}, {s_kc}, {64*3840}")
        a(f"s_add_u32 {s_xk}, {s_xb}, {s_sox}")
        a(f"s_add_u32 {s_sow}, {s_sow}, {s_wb}")
        a(f"s_add_u32 {s_kc}, {s_kc}, 1")
        a(f"s_cmp_eq_u32 {s_kc}, 10")
        a(f"s_cselect_b32 {s_kc}, 0, {s_kc}")

    def dma_part(c, lo, hi, head=True):
        if c >= NCH:
            return
        sl = ((c + 2) % NS) * SLOT
        if lo == 0 and head:
            dma_head()
        for kind, j in ORDER[lo:hi]:
            if kind == "w":
                a(f"s_add_u32 m0, {s_m0w}, {sl + j*1024}")
                a(f"s_add_u32 {s_so1}, {s_sow}, {j*4*3840}")
                a(f"buffer_load_dwordx4 {v_wo[j >> 1]}, {sW(4)}, {s_so1} offen lds")
            else:
                a(f"s_add_u32 m0, {s_m0x}, {sl + j*1024}")
                if j == 0:
                    a(f"s_max_i32 {s_so1}, {s_xk}, {s_sox}")
                else:
                    a(f"s_add_u32 {s_so1}, {s_xk}, {j*10240}")
                    if j == 1:
                        a(f"s_max_i32 {s_so1}, {s_so1}, {s_sox}")
                a(f"buffer_load_dwordx4 {v_xo[j & 1]}, {sX(4)}, {s_so1} offen lds")

    def karg_rest():
        a(f"s_load_dwordx4 {s_pws(4)}, s[0:1], 80")
        a(f"s_load_dwordx2 {s_pwo(2)}, s[0:1], 16")
        a(f"s_load_dwordx2 {s_po(2)}, s[0:1], 72")

    def common_ids():
        a(f"v_and_b32 {v_lane}, 63, v0")
        a(f"v_mov_b32 {v_smp}, 0")
        a(f"s_and_b32 {s_xcd}, s2, 7")
        a(f"s_lshr_b32 {s_i}, s2, 3")
        a(f"s_xor_b32 {s_w}, {s_w}, 4")
        a(f"s_lshr_b32 {s_n}, {s_i}, 3")
        a(f"s_lshl_b32 {s_n}, {s_n}, 2")
        a(f"s_and_b32 {s_tmp}, {s_i}, 3")
        a(f"s_add_u32 {s_n}, {s_n}, {s_tmp}")
        a(f"s_add_u32 {s_n}, {s_n}, 4")
        a(f"s_bitcmp1_b32 {s_i}, 2")
        a(f"s_cselect_b32 {s_n}, -1, {s_n}")
        a(f"s_cmp_lt_u32 {s_i}, 8")
        a(f"s_cselect_b32 {s_n}, {s_i}, {s_n}")
        a(f"s_lshl_b32 {s_rt2}, {s_xcd}, 1")
        a(f"s_cmp_ge_u32 {s_n}, 10")
        a(f"s_addc_u32 {s_rt2}, {s_rt2}, 0")
        a(f"s_sub_u32 {s_ct}, {s_n}, 10")
        a(f"s_cmp_ge_u32 {s_n}, 10")
        a(f"s_cselect_b32 {s_ct}, {s_ct}, {s_n}")
        a(f"s_mul_i32 {s_mb}, {s_xcd}, 20")
        a(f"s_add_u32 {s_mb}, {s_mb}, {s_n}")
        a(f"s_and_b32 {s_mb}, {s_mb}, 255")
        a(f"s_lshl_b32 {s_mb}, {s_mb}, 9")
        a(f"s_add_u32 {s_mb}, {s_mb}, {FL_OFF}")

    s_pos = s_half

    def main_ids():
        a(f"s_lshr_b32 {s_rt}, {s_xcd}, 1")
        a(f"s_mul_i32 {s_rt}, {s_rt}, 3")
        a(f"s_lshr_b32 {s_tmp}, {s_i}, 3")
        a(f"s_add_u32 {s_rt}, {s_rt}, {s_tmp}")
        a(f"s_sub_u32 {s_rt}, {s_rt}, 1")
        a(f"s_and_b32 {s_hg}, {s_xcd}, 1")
        a(f"s_lshl_b32 {s_hg}, {s_hg}, 3")
        a(f"s_and_b32 {s_tmp}, {s_i}, 7")
        a(f"s_lshl_b32 {s_tmp}, {s_tmp}, 2")
        a(f"s_lshr_b32 {s_tmp}, 0x64317520, {s_tmp}")
        a(f"s_and_b32 {s_tmp}, {s_tmp}, 7")
        a(f"s_add_u32 {s_hg}, {s_hg}, {s_tmp}")
        a(f"s_and_b32 {s_pos}, {s_i}, 3")
        a(f"s_and_b32 {s_tmp}, {s_i}, 4")
        a(f"s_lshl_b32 {s_tmp}, {s_tmp}, 1")
        a(f"s_add_u32 {s_pos}, {s_pos}, {s_tmp}")
        a(f"s_and_b32 {s_tmp}, {s_xcd}, 1")
        a(f"s_lshl_b32 {s_tmp}, {s_tmp}, 2")
        a(f"s_add_u32 {s_pos}, {s_pos}, {s_tmp}")

    a("s_cmp_ge_u32 s2, 256")
    a("s_cbranch_scc1 K_EXIT")
    a(f"s_load_dwordx2 {sX(2)}, s[0:1], 0")
    a(f"s_load_dwordx2 {sW(2)}, s[0:1], 8")
    karg_rest()
    a(f"v_readfirstlane_b32 {s_w}, v0")
    stamp_init(a)
    a(f"s_mov_b32 {sX+2}, 0x{X_BYTES:x}")
    a(f"s_mov_b32 {sX+3}, 0x20000")
    a(f"s_lshr_b32 {s_w}, {s_w}, 6")
    a("s_cmp_ge_u32 s2, 64")
    a("s_cbranch_scc1 K_MAIN")
    a(f"s_load_dwordx8 {s_pm(8)}, s[0:1], 32")
    a(f"s_load_dwordx2 {s_pg(2)}, s[0:1], 64")
    a(f"s_getpc_b64 {s_pc(2)}")
    a.label("K_PC")
    a("s_lshr_b32 s3, s2, 3")
    a("s_mul_i32 s3, s3, K_CPL")
    a(f"v_add_u32 {v_t0}, s3, v0")
    a(f"v_lshlrev_b32 {v_t0}, 7, {v_t0}")
    a(f"v_min_u32 {v_t0}, K_CODE_END-K_PC-4, {v_t0}")
    a(f"v_cmp_gt_u32 vcc, K_CPL, v0")
    a("s_and_saveexec_b64 %s, vcc" % sO(2))
    a("s_cbranch_execz K_NOPF")
    a(f"global_load_dword {v_pf}, {v_t0}, {s_pc(2)}")
    a.label("K_NOPF")
    a("s_mov_b64 exec, -1")
    a(f"s_cmp_lg_u32 {s_w}, 4")
    a("s_cbranch_scc1 K_AUX")
    a(f"s_min_u32 s3, s2, 8")
    a(f"s_mul_i32 s3, s3, {ZKB*1024}")
    a(f"s_add_u32 {s_t2}, s3, {ZKB*1024}")
    a(f"s_cmp_lt_u32 s2, 8")
    a("s_cbranch_scc1 K_ZS")
    a(f"s_cmp_lg_u32 s2, {HUB}")
    a("s_cbranch_scc1 K_AUX")
    a(f"s_mov_b32 {s_t2}, 0")
    a.label("K_ZS")
    a(f"v_lshlrev_b32 {v_t0}, 4, v0")
    for e in range(4):
        a(f"v_mov_b32 v{8+e}, 0")
    a("s_waitcnt lgkmcnt(0)")
    srd(a, sO, WS, ZBYTES + 4096, FL_OFF - 4096)
    assert 8 * ZKB * 1024 == KMB
    a.label("K_ZL")
    a(f"buffer_store_dwordx4 v[8:11], {v_t0}, {sO(4)}, s3 offen {SC_FLAG}")
    a("s_add_u32 s3, s3, 1024")
    a(f"s_cmp_lt_u32 s3, {s_t2}")
    a("s_cbranch_scc1 K_ZL")
    a("s_branch K_AUX")
    a.label("K_MAIN")
    a(f"s_cmp_ge_u32 {s_w}, 4")
    a("s_cbranch_scc1 K_CONS")
    stamp(a, "role")
    PERM_ = [0, 2, 5, 7, 1, 3, 4, 6]
    tab = lambda L: sum(v << (4 * k) for k, v in enumerate(L))
    a(f"s_bfe_u32 {s_tmp}, s2, 0x20001")
    a(f"s_mul_i32 {s_xb}, {s_tmp}, {3*RROWS*1280}")
    a(f"s_lshr_b32 {s_t2}, s2, 6")
    a(f"s_mul_i32 {s_tmp}, {s_t2}, {RROWS*1280}")
    a(f"s_add_u32 {s_xb}, {s_xb}, {s_tmp}")
    a(f"s_mul_i32 {s_tmp}, {s_w}, {48*1280}")
    a(f"s_add_u32 {s_xb}, {s_xb}, {s_tmp}")
    a(f"s_sub_u32 {s_xb}, {s_xb}, {(RROWS+16)*1280}")
    a(f"v_bfe_u32 {v_t1}, v0, 4, 2")
    a(f"s_lshr_b32 {s_tmp}, s2, 1")
    a(f"s_and_b32 {s_tmp}, {s_tmp}, 28")
    a(f"s_or_b32 {s_tmp}, {s_tmp}, 0x40000")
    a(f"v_lshlrev_b32 {v_t0}, 1, {v_t1}")
    a(f"v_sub_u32 {v_t0}, v0, {v_t0}")
    KT = eval(os.environ.get("KT", "[[(3 * h + 4 * r + 4) % 10 for h in range(8)] for r in range(3)]"))
    kt = [tab([KT[r][p] for p in PERM_]) for r in range(3)]
    a(f"s_mov_b32 {s_kc}, 0x{kt[0]:x}")
    a(f"s_cmp_eq_u32 {s_t2}, 2")
    a(f"s_cselect_b32 {s_kc}, 0x{kt[1]:x}, {s_kc}")
    a(f"s_cmp_eq_u32 {s_t2}, 3")
    a(f"s_cselect_b32 {s_kc}, 0x{kt[2]:x}, {s_kc}")
    a(f"s_bfe_u32 {s_kc}, {s_kc}, {s_tmp}")
    a(f"s_bfe_u32 {s_hg}, 0x{tab(PERM_):x}, {s_tmp}")
    a(f"v_and_b32 {v_t0}, 15, {v_t0}")
    a(f"v_mul_u32_u24 {v_t3}, 3840, {v_t1}")
    a(f"s_lshl_b32 {s_tmp}, s2, 2")
    a(f"s_lshr_b32 {s_tmp}, 0x{tab(eval(os.environ.get('XT', 'list(range(8))'))):x}, {s_tmp}")
    a(f"s_and_b32 {s_tmp}, {s_tmp}, 15")
    a(f"s_add_u32 {s_kc}, {s_kc}, {s_tmp}")
    a(f"s_mov_b32 {s_t2}, 0x00a55a")
    a(f"v_subrev_u32 {v_t3}, 160, {v_t3}")
    a(f"s_sub_u32 {s_tmp}, {s_kc}, 10")
    a(f"s_cselect_b32 {s_kc}, {s_kc}, {s_tmp}")
    for jj in range(2):
        if jj:
            a(f"v_xor_b32 {v_t0}, 8, {v_t0}")
        a(f"v_mul_u32_u24 {v_t2}, 52, {v_t0}")
        a(f"v_lshrrev_b32 {v_t2}, 5, {v_t2}")
        a(f"v_and_b32 {v_t2}, 24, {v_t2}")
        a(f"v_bfe_u32 {v_t2}, {s_t2}, {v_t2}, 8")
        a(f"v_add_u32 {v_t2}, {v_t2}, {v_t0}")
        a(f"v_lshl_add_u32 {v_wo[jj]}, {v_t2}, 4, {v_t3}")
        a(f"v_add_u32 {v_t2}, 1, {v_t0}")
        a(f"v_lshrrev_b32 {v_t2}, 4, {v_t2}")
        a(f"v_lshl_add_u32 {v_wo[jj]}, {v_t2}, 28, {v_wo[jj]}")
    a("s_bitcmp1_b32 s2, 0")
    a(f"s_cselect_b32 {s_tmp}, 8, 0")
    a(f"s_add_u32 {s_hg}, {s_hg}, {s_tmp}")
    a(f"s_mul_i32 {s_wb}, {s_hg}, 80")
    a(f"s_mul_i32 {s_tmp}, {s_w}, {16*3840}")
    a(f"s_add_u32 {s_wb}, {s_wb}, {s_tmp}")
    a(f"s_lshl_b32 {s_m0w}, {s_w}, 12")
    a(f"s_add_u32 {s_m0w}, {s_m0w}, {XREG}")
    a(f"s_mul_i32 {s_m0x}, {s_w}, 6144")
    a(f"s_mov_b32 {sW+2}, 0x{640*3840:x}")
    a(f"s_mov_b32 {sW+3}, 0x20000")
    a(f"v_xor_b32 {v_t1}, {v_t1}, v0")
    a(f"v_and_b32 {v_t1}, 7, {v_t1}")
    a(f"v_bfe_u32 {v_t0}, v0, 3, 3")
    a(f"v_mul_u32_u24 {v_t0}, 1280, {v_t0}")
    a(f"v_lshl_add_u32 {v_xo[0]}, {v_t1}, 4, {v_t0}")
    a(f"v_xor_b32 {v_xo[1]}, 64, {v_xo[0]}")
    dma_head()
    stamp(a, "setup")
    a("s_waitcnt lgkmcnt(0)")
    stamp(a, "karg")
    if P("FIRSTP", 0):
        dma_part(0, 0, 2, head=False)
        a("s_waitcnt vmcnt(1)")
        stamp(a, "f1")
        a("s_waitcnt vmcnt(0)")
        stamp(a, "f2")
        dma_part(0, 2, 4, head=False)
        a("s_waitcnt vmcnt(0)")
        stamp(a, "f3")
        dma_part(0, 4, 10, head=False)
    else:
        dma_part(0, 0, 10, head=False)
    dma_part(1, 0, HS)
    stamp(a, "issued")
    a(f"s_mov_b32 {s_lw}, {s_w}")
    common_ids()
    main_ids()

    def lds_zero():
        a(f"v_mov_b32 {v_t1}, {YB + 16}")
        for k in range(0, 10, 2):
            a(f"ds_write2_b32 {v_t1}, {v_smp}, {v_smp} offset0:{k} offset1:{k+1}")

    a.label("K_LOADER")

    def zpoll(k, offs, val):
        for off in offs:
            a(f"s_load_dword {s_t2}, {DBG(2)}, {off}")
            a("s_waitcnt lgkmcnt(0)")
            a(f"s_cmp_ge_u32 {s_t2}, {val}")
            a(f"s_cbranch_scc1 K_ZO{k}")
            a(f"s_sleep {P('ZSLEEP', 8)}")
        a(f"s_mov_b32 {s_tmp}, {SPIN // 8}")
        a.label(f"K_ZB{k}")
        a(f"s_load_dword {s_t2}, {DBG(2)}, {offs[0]} glc")
        a("s_waitcnt lgkmcnt(0)")
        a(f"s_cmp_ge_u32 {s_t2}, {val}")
        a(f"s_cbranch_scc1 K_ZO{k}")
        a("s_sleep 32")
        a(f"s_sub_u32 {s_tmp}, {s_tmp}, 1")
        a(f"s_cbranch_scc0 K_ZB{k}")
        a.label(f"K_ZO{k}")

    def mb_sample(vaddr):
        a(f"v_lshl_add_u32 {vaddr}, {v_lane}, 2, {s_mb}")
        a(f"global_load_dword {v_smp}, {vaddr}, {WS(2)} offset:256 {SC_POLL}")
        a(f"v_and_b32 {vaddr}, 0xfffffe04, {vaddr}")
        a(f"global_load_dword {v_pf}, {vaddr}, {WS(2)} offset:128 {SC_POLL}")

    def wo_voff(v_wo):
        a(f"v_lshrrev_b32 {v_t0}, 3, {v_lane}")
        a(f"v_mul_u32_u24 {v_t0}, 1280, {v_t0}")
        a(f"v_lshrrev_b32 {v_t1}, 2, {v_lane}")
        a(f"v_and_b32 {v_t1}, 4, {v_t1}")
        a(f"v_and_b32 {v_t2}, 7, {v_lane}")
        a(f"v_xor_b32 {v_t1}, {v_t1}, {v_t2}")
        a(f"v_lshl_add_u32 {v_t0}, {v_t1}, 4, {v_t0}")
        a(f"s_lshl_b32 {s_t2}, {s_ct}, 7")
        a(f"v_add_u32 {v_wo}, {s_t2}, {v_t0}")
        a(f"v_lshrrev_b32 {v_t3}, 5, {v_lane}")
        a(f"v_mul_u32_u24 {v_t3}, {16*1280}, {v_t3}")
        a(f"v_add_u32 {v_t3}, {v_t3}, {v_wo}")

    def wo_blocks(v_wo, s_k, late, s_src, s_dst, s_o, thr=0, hook=None):
        a(f"s_lshl_b32 {s_src}, {s_k}, 2")
        a(f"s_lshr_b32 {s_src}, 0x{0x6431 if late else 0x7520:x}, {s_src}")
        a(f"s_and_b32 {s_src}, {s_src}, 7")
        a(f"s_mul_i32 {s_src}, {s_src}, 51200")
        a(f"s_lshl_b32 {s_dst}, {s_k}, 12")

        def one(v, so, m):
            a(f"s_add_u32 {s_o}, {s_src}, {so}")
            a(f"s_add_u32 m0, {s_dst}, {WO_L + late*40960 + m}")
            a(f"s_waitcnt vmcnt({thr-1})" if thr else "s_nop 0")
            a(f"buffer_load_dwordx4 {v}, {sWO(4)}, {s_o} offen lds")

        for b in range(2):
            for r in range(4):
                one(v_wo, b*8*51200 + (0, 8, 20, 28)[r]*1280, b*20480 + r*1024)
                if hook and 4*b + r == thr - 1:
                    hook()
        a(f"s_lshl_b32 {s_dst}, {s_k}, 10")
        for b in range(2):
            one(v_t3, b*8*51200 + 16*1280, b*20480 + 16384)

    v_row, v_g, v_r, v_c = V.many(4)
    s_q = S.a()

    def lane_consts():
        a(f"v_and_b32 {v_row}, 15, {v_lane}")
        a(f"v_lshrrev_b32 {v_g}, 4, {v_lane}")
        a(f"v_bfe_u32 {v_r}, {v_lane}, 2, 2")
        a(f"v_and_b32 {v_c}, 3, {v_lane}")

    def o_addr(d, vt, sc_):
        a(f"v_lshrrev_b32 {v_t0}, 2, {vt}")
        a(f"v_mul_u32_u24 {v_t0}, {80 - 4}, {v_t0}")
        a(f"v_add_lshl_u32 {v_t0}, {v_t0}, {vt}, 10")
        a(f"v_lshl_add_u32 {v_t0}, {v_row}, 4, {v_t0}")
        a(f"v_add_u32 {d}, {sc_}, {v_t0}")

    def o_consts(s_main, s_tail):
        srd(a, sO, WS, O_BYTES, O_OFF)
        a(f"s_lshr_b32 {s_q}, {s_pos}, 2")
        a(f"s_add_u32 {s_main}, {s_q}, {s_pos}")
        a(f"s_lshl_b32 {s_main}, {s_main}, 12")
        a(f"s_mul_i32 {s_tail}, {s_q}, {5*4096 - 1024}")
        a(f"s_lshl_b32 {s_q}, {s_pos}, 8")
        a(f"s_add_u32 {s_tail}, {s_tail}, {s_q}")
        a(f"s_add_u32 {s_tail}, {s_tail}, {4*4096}")
        a(f"s_mul_i32 {s_q}, {s_rt}, {MT-1}")

    mV2 = V.mark()
    mS2 = S.mark()

    v_os, v_ot, v_wv = V.many(3)
    pz = V.a(4)
    s_z = S.a()
    srd(a, sWO, s_pwo, 640 * 1280)
    lane_consts()
    o_consts(s_tmp, s_t2)
    a(f"s_add_u32 {s_z}, {s_q}, {s_lw}")
    a(f"v_mov_b32 {v_t1}, {s_z}")
    o_addr(v_os, v_t1, s_tmp)
    a(f"v_lshl_add_u32 {v_os}, {v_g}, 8, {v_os}")
    a(f"s_lshl_b32 {s_tmp}, {s_lw}, 2")
    a(f"v_add_u32 {v_t2}, {s_tmp}, {v_g}")
    a(f"v_add_u32 {v_t1}, {s_q}, {v_t2}")
    o_addr(v_ot, v_t1, s_t2)
    a(f"v_mov_b32 {v_t3}, 0x10000000")
    a(f"v_cmp_gt_u32 vcc, {MT-1}, {v_t2}")
    for e in range(4):
        a(f"v_mov_b32 {pz+e}, -1")
    a(f"v_cndmask_b32 {v_ot}, {v_t3}, {v_ot}, vcc")
    wo_voff(v_wv)

    PZI = P("PZI", 4)
    for c in range(NCH):
        outst = (HS if c + 1 < NCH else 0) + (4 if c == PZI + 1 else 0)
        if c == NCH - 1:
            a("s_waitcnt lgkmcnt(0)")
            a(f"s_cmp_ge_u32 {s_z}, {NZ}")
            a("s_cbranch_scc1 K_ZO0")
            zpoll(0, [128], NZ)
            a(f"s_cmp_eq_u32 {s_n}, -1")
            a("s_cbranch_scc1 K_NOLT")
            wo_blocks(v_wv, s_lw, 0, s_sox, s_sow, s_tmp)
            a("s_waitcnt vmcnt(10)")
            a("s_barrier")
            stamp(a, "c9")
            wo_blocks(v_wv, s_lw, 1, s_sox, s_sow, s_tmp)
            a(f"s_mov_b32 {s_w}, {s_lw}")
            a("s_branch K_P2_GM")
            a.label("K_NOLT")
        a(f"s_waitcnt vmcnt({outst})")
        stamp(a, f"w{c}")
        a("s_barrier")
        stamp(a, f"c{c}")
        if c == NCH - 2:
            a(f"s_load_dword {s_z}, {DBG(2)}, 192")
        dma_part(c + 1, HS, 10)
        dma_part(c + 2, 0, HS)
        if c == PZI:
            a(f"s_mov_b32 {s_t2}, 81920")
            a(f"s_cmp_eq_u32 {s_lw}, 3")
            a(f"s_cselect_b32 {s_tmp}, 0, {2*81920}")
            a(f"buffer_store_dwordx4 {pz(4)}, {v_os}, {sO(4)}, 0 offen {SC_ST}")
            a(f"buffer_store_dwordx4 {pz(4)}, {v_os}, {sO(4)}, {s_t2} offen {SC_ST}")
            a(f"buffer_store_dwordx4 {pz(4)}, {v_os}, {sO(4)}, {s_tmp} offen {SC_ST}")
            a(f"buffer_store_dwordx4 {pz(4)}, {v_ot}, {sO(4)}, 0 offen {SC_ST}")
    a("s_branch K_END")

    V.release(mV)
    v_row, v_g, v_r, v_c = V.many(4)
    S.release(mS2)
    a.label("K_CONS")
    DEFER = P("DEFER", 1)
    if DEFER:
        a(f"v_and_b32 {v_lane}, 63, v0")
    else:
        common_ids()
        lds_zero()
        main_ids()
    lane_consts()
    s_mh, s_nh, s_tg = S.many(3)
    s_c, s_sc = S.many(2, 2)
    v_b0, v_b1, v_bp, v_ps = V.many(4, 4)
    v_o = V.many(3)
    v_ot, v_tw, v_tr, v_xb, v_sw1, v_sr1, v_fo, v_cn = V.many(8)
    v_neg = v_fo
    a(f"s_bfe_u32 {s_mh}, {s_w}, 0x10001")
    a(f"s_and_b32 {s_nh}, {s_w}, 1")
    v_aa = [V.many(2) for _ in range(2)]
    v_ba = [V.many(4) for _ in range(2)]
    a(f"v_lshrrev_b32 {v_t0}, 1, {v_row}")
    a(f"v_xor_b32 {v_t0}, {v_t0}, {v_g}")
    a(f"v_lshlrev_b32 {v_t0}, 4, {v_t0}")
    a(f"v_lshl_add_u32 {v_t0}, {v_row}, 7, {v_t0}")
    a(f"s_mul_i32 {s_tmp}, {s_mh}, {MH*2048}")
    a(f"v_add_u32 {v_aa[0][0]}, {s_tmp}, {v_t0}")
    a(f"v_xor_b32 {v_aa[0][1]}, 64, {v_aa[0][0]}")
    for ks in range(2):
        a(f"v_add_u32 {v_aa[1][ks]}, {2*SLOT}, {v_aa[0][ks]}")
    a(f"v_and_b32 {v_t0}, 1, {v_g}")
    a(f"v_lshl_or_b32 {v_t0}, {v_t0}, 2, {v_r}")
    a(f"s_mul_i32 {s_tmp}, {s_nh}, 40")
    a(f"v_lshl_add_u32 {v_t0}, {v_t0}, 5, {s_tmp}")
    a(f"v_lshl_add_u32 {v_t1}, {v_g}, 3, {v_r}")
    a(f"v_lshlrev_b32 {v_t1}, 8, {v_t1}")
    a(f"v_add_u32 {v_t1}, {XREG}, {v_t1}")
    a(f"v_lshl_add_u32 {v_t3}, {v_c}, 3, {v_t0}")
    a(f"s_mul_i32 {s_t2}, {s_nh}, {48 << 24}")
    a(f"s_sub_u32 {s_t2}, 0x{(248 << 24) | (112 << 16) | (192 << 8) | 32:x}, {s_t2}")
    for tt in range(4):
        if tt < 3:
            a(f"v_add_u32 {v_t2}, {(0, 160, 80)[tt]}, {v_t3}")
        else:
            a(f"v_lshlrev_b32 {v_t2}, 3, {v_c}")
            a(f"v_bfe_u32 {v_t2}, {s_t2}, {v_t2}, 8")
            a(f"v_add_u32 {v_t2}, {v_t2}, {v_t0}")
        a(f"v_and_b32 {v_t2}, 255, {v_t2}")
        a(f"v_add_u32 {v_ba[0][tt]}, {v_t2}, {v_t1}")
        a(f"v_add_u32 {v_ba[1][tt]}, {2*SLOT}, {v_ba[0][tt]}")
    cuts = [len(a.lines)]
    if DEFER:
        common_ids()
        lds_zero()
        main_ids()
        cuts.append(len(a.lines))
    a(f"s_or_b32 {s_tg}, {s_rt}, {s_mh}")
    a(f"v_mov_b32 {v_neg}, 0x{NEG:x}")
    a(f"v_lshlrev_b32 {v_t0}, 2, {v_g}")
    a(f"v_sub_u32 {v_t0}, {v_row}, {v_t0}")
    a(f"s_cmp_eq_u32 {s_tg}, 0")
    a(f"s_cselect_b32 {s_tmp}, 0x{NEG:x}, 0")
    for r in range(4):
        a(f"v_subrev_u32 {v_t1}, {r}, {v_t0}")
        a(f"v_and_b32 {v_t2}, 0x80000001, {v_t1}")
        a(f"v_cmp_eq_u32 vcc, 0, {v_t2}")
        a("s_nop 1")
        a(f"v_cndmask_b32 {v_b1+r}, {v_neg}, 0, vcc")
        a(f"v_cmp_eq_u32 vcc, 0x80000000, {v_t2}")
        a("s_nop 1")
        a(f"v_cndmask_b32 {v_b0+r}, {v_neg}, 0, vcc")
        a(f"v_add_f32 {v_bp+r}, {s_tmp}, {v_b0+r}")
    for p, vb in enumerate((v_b0, v_b1)):
        for k in range(2):
            lo = 0x0c0c0000 | ((2 * k + 1) << 8) | (2 * k)
            hi = 0x00000c0c | ((2 * k + 1) << 24) | ((2 * k) << 16)
            a(f"v_mov_b32 {v_t1}, 0x0c0c0c0c")
            a(f"v_mov_b32 {v_t2}, 0x{lo:x}")
            a(f"v_cmp_eq_u32 vcc, 0, {vb+2*k}")
            a(f"v_mov_b32 {v_t3}, 0x{hi:x}")
            a("s_nop 0")
            a(f"v_cndmask_b32 {v_t1}, {v_t1}, {v_t2}, vcc")
            a(f"v_cmp_eq_u32 vcc, 0, {vb+2*k+1}")
            a("s_nop 1")
            a(f"v_cndmask_b32 {v_ps+2*p+k}, {v_t1}, {v_t3}, vcc")
    cuts.append(len(a.lines))
    a(f"s_mul_i32 {s_tmp}, {s_nh}, 1664")
    a(f"s_mul_i32 {s_t2}, {s_mh}, {6*128}")
    a(f"s_add_u32 {s_tmp}, {s_tmp}, {s_t2}")
    a(f"s_add_u32 {s_tmp}, {s_tmp}, {TV}")
    a(f"v_lshl_add_u32 {v_t0}, {v_g}, 2, {v_r}")
    a(f"v_lshl_add_u32 {v_tr}, {v_t0}, 3, {s_tmp}")
    a(f"v_lshl_add_u32 {v_t0}, {v_row}, 3, {s_tmp}")
    a(f"v_lshlrev_b32 {v_t1}, 3, {v_lane}")
    a(f"v_add_u32 {v_t1}, {TVD}, {v_t1}")
    a(f"v_cmp_eq_u32 vcc, 2, {v_g}")
    a(f"s_mul_i32 {s_tmp}, {s_nh}, 1536")
    a(f"s_add_u32 {s_tmp}, {s_tmp}, {XB}")
    a(f"v_cndmask_b32 {v_tw}, {v_t1}, {v_t0}, vcc")
    a(f"v_lshl_add_u32 {v_xb}, {v_lane}, 3, {s_tmp}")
    a(f"s_mul_i32 {s_tmp}, {s_mh}, {6*256}")
    a(f"s_add_u32 {s_tmp}, {s_tmp}, {TS}")
    a(f"s_lshl3_add_u32 {s_t2}, {s_nh}, {s_tmp}")
    a(f"v_lshl_add_u32 {v_sw1}, {v_row}, 4, {s_t2}")
    a(f"v_cmp_eq_u32 vcc, 0, {v_g}")
    a("s_nop 1")
    a(f"v_cndmask_b32 {v_sw1}, {v_t1}, {v_sw1}, vcc")
    a(f"s_mul_i32 {s_t2}, {s_nh}, {3*256}")
    a(f"s_add_u32 {s_tmp}, {s_tmp}, {s_t2}")
    a(f"v_lshl_add_u32 {v_sr1}, {v_lane}, 4, {s_tmp}")
    a(f"v_mov_b32 {v_cn}, {YB}")
    a("s_waitcnt lgkmcnt(0)")
    o_consts(s_c, s_c + 1)
    a(f"s_mul_i32 {s_tmp}, {s_mh}, 6")
    a(f"s_add_u32 {s_q}, {s_q}, {s_tmp}")
    a(f"s_add_u32 {s_q}, {s_q}, 3")
    a(f"s_lshl_b32 {s_tmp}, {s_nh}, 9")
    a(f"s_add_u32 {s_c}, {s_c}, {s_tmp}")
    a(f"v_and_b32 {v_t2}, 1, {v_g}")
    a(f"v_lshrrev_b32 {v_t3}, 1, {v_g}")
    a(f"v_add_u32 {v_t1}, {s_q}, {v_t2}")
    o_addr(v_o[2], v_t1, s_c)
    a(f"v_lshl_add_u32 {v_o[2]}, {v_t3}, 8, {v_o[2]}")
    a(f"v_subrev_u32 {v_t1}, 2, {v_t1}")
    o_addr(v_o[1], v_t1, s_c)
    a(f"v_lshl_add_u32 {v_o[1]}, {v_t3}, 8, {v_o[1]}")
    a(f"v_or_b32 {v_t2}, {s_mh}, {v_t2}")
    a(f"v_cmp_eq_u32 vcc, 0, {v_t2}")
    a(f"v_mov_b32 {v_t3}, 0x10000000")
    a(f"v_subrev_u32 {v_o[0]}, 81920, {v_o[2]}")
    a(f"v_cndmask_b32 {v_o[0]}, {v_o[0]}, {v_t3}, vcc")
    a(f"s_mul_i32 {s_tmp}, {s_nh}, 3")
    a(f"s_add_u32 {s_q}, {s_q}, {s_tmp}")
    a(f"v_add_u32 {v_t1}, {s_q}, {v_g}")
    o_addr(v_ot, v_t1, s_c + 1)
    a(f"v_subrev_u32 {v_ot}, 81920, {v_ot}")
    a(f"v_or_b32 {v_t2}, {s_w}, {v_g}")
    a(f"v_cmp_eq_u32 vcc, 0, {v_t2}")
    a("s_nop 1")
    a(f"v_cndmask_b32 {v_ot}, {v_ot}, {v_t3}, vcc")
    a(f"v_cmp_eq_u32 vcc, 3, {v_g}")
    a("s_nop 1")
    a(f"v_cndmask_b32 {v_ot}, {v_ot}, {v_t3}, vcc")
    cuts.append(len(a.lines))
    a(f"s_mul_i32 {s_tmp}, {s_rt}, 11")
    a(f"s_add_u32 {s_t2}, {s_tmp}, 10")
    a(f"s_lshr_b32 {s_tmp}, {s_tmp}, 3")
    a(f"s_lshr_b32 {s_t2}, {s_t2}, 3")
    a(f"s_min_u32 {s_t2}, {s_t2}, 15")
    a(f"s_sub_u32 {s_t2}, {s_t2}, {s_tmp}")
    a(f"s_add_u32 {s_t2}, {s_t2}, 1")
    a(f"s_mul_i32 {s_t2}, {s_t2}, 10")
    a(f"s_bfm_b32 {s_fl}, {s_t2}, 0")
    a(f"v_mul_u32_u24 {v_t0}, 205, {v_lane}")
    a(f"v_lshrrev_b32 {v_t0}, 11, {v_t0}")
    a(f"v_add_u32 {v_t0}, {s_tmp}, {v_t0}")
    a(f"v_mul_u32_u24 {v_t0}, {8*187}, {v_t0}")
    a(f"v_lshrrev_b32 {v_t0}, 11, {v_t0}")
    a(f"v_sub_u32 {v_t0}, {s_rt}, {v_t0}")
    a(f"v_and_b32 {v_t0}, 1, {v_t0}")
    a(f"v_lshlrev_b32 {v_t0}, 2, {v_t0}")
    a(f"v_lshl_add_u32 {v_t0}, {v_lane}, 9, {v_t0}")
    a(f"s_mul_i32 {s_tmp}, {s_tmp}, 5120")
    a(f"s_add_u32 {s_tmp}, {s_tmp}, {FL_OFF}")
    a(f"v_add_u32 {v_fo}, {s_tmp}, {v_t0}")
    a(f"s_lshr_b32 {s_fb}, {s_pos}, 2")
    a(f"s_add_u32 {s_fb}, {s_fb}, {s_pos}")
    a(f"s_lshl_b32 {s_fb}, 1, {s_fb}")
    a(f"s_cmp_eq_u32 {s_w}, 0")
    a(f"s_cselect_b32 {s_fb}, {s_fb}, 0")
    a(f"s_mov_b32 {s_c}, 0x{LOG2E if P('RL2', 1) else SCALE_L2E:x}")
    a(f"s_mov_b32 {s_c+1}, {s_c}")
    a(f"s_mov_b32 {s_sc}, 0x{f32bits(20 ** -0.5):x}")
    a(f"s_mov_b32 {s_sc+1}, {s_sc}")
    cuts.append(len(a.lines))
    late = []
    if DEFER:
        late = [a.lines[cuts[k]:cuts[k+1]] for k in range(len(cuts) - 1)]
        del a.lines[cuts[0]:]
    acc = [V.many(4, 4) for _ in range(MH)]
    mF = V.mark()
    fa = [V.many(MH, 4) for _ in range(2)]
    fb = [V.many(4, 4) for _ in range(2)]
    vf0 = V.a(14, 2)

    def mm1(m, tt, ks, first=False):
        A, B = (fa[ks][m], fb[ks][tt]) if tt == 2 else (fb[ks][tt], fa[ks][m])
        return f"{MFMA} {acc[m][tt](4)}, {A(4)}, {B(4)}, {'0' if first else acc[m][tt](4)}"

    def read_ops(c, ks):
        sl = (c + 2) % NS
        sp, so = sl >> 1, (sl & 1) * SLOT
        B, A = [], []
        for tt in range(4):
            B.append([f"ds_read_b64_tr_b16 {(fb[ks][tt]+2*h)(2)}, {v_ba[sp][tt]} offset:{so + ks*8192 + h*1024}"
                      for h in range(2)])
        for m in range(MH):
            A.append(f"ds_read_b128 {fa[ks][m](4)}, {v_aa[sp][ks]} offset:{so + m*2048}")
        return B[0] + [A[0]] + B[1] + [A[1]] + B[2] + [A[2]] + B[3] + A[3:]

    def mfma_block(ks, first, fillers, post=None):
        k = 0
        idx = 0
        order = [(m, tt) for m in range(MH) for tt in range(4)]
        if P("MORD", 2) == 1:
            order = [(m, tt) for tt in range(4) for m in range(MH)]
        if P("MORD", 2) == 2:
            order = [(m, tt if m % 2 == 0 else 3 - tt) for m in range(MH) for tt in range(4)]
        if P("MORD", 2) == 3:
            order = [(m if tt % 2 == 0 else MH - 1 - m, tt) for tt in range(4) for m in range(MH)]
        for m, tt in order:
            if True:
                a(mm1(m, tt, ks, first))
                if k < len(fillers):
                    a(fillers[k])
                    k += 1
                if post:
                    post(idx)
                idx += 1
        assert k == len(fillers)

    def warm_call(ret, c):
        if not P("WARM", 1):
            return
        for k in range(3):
            a(f"s_cmp_eq_u32 {s_w}, {k}")
            a(f"s_cbranch_scc1 K_CH{c}{k}")
        a(f"s_branch K_CH{c}3")
        a.label(ret)

    stamp(a, "csetup")
    NPRE = P("NPRE", 4)
    for seg in late[:NPRE]:
        a.lines += seg
    late = late[NPRE:]
    if not DEFER or P("WARMC", -1) < 0:
        warm_call("K_WRET_M", "M")
    stamp(a, "warmed")
    if P("CPRIO", 2):
        a(f"s_setprio {P('CPRIO', 2)}")
    a("s_barrier")
    stamp(a, "c0")
    a.label("K_L0")
    for line in read_ops(0, 0):
        a(line)
    kf = [acc[m][0] for m in range(MH)]
    qf = [acc[m][1] for m in range(MH)]

    def cvt(d, x):
        return f"v_cvt_pk_bf16_f32 {d}, {x}, {x+1}"

    def prep(m):
        k, q, v, t = acc[m]
        L = [cvt(k, k), cvt(k + 1, k + 2), cvt(q, q), cvt(q + 1, q + 2), f"v_mov_b32 {q+2}, 0", f"v_mov_b32 {q+3}, 0",
             cvt(k + 2, t), cvt(k + 3, t + 2), cvt(vf0 + 2*m + 2, v), cvt(vf0 + 2*m + 3, v + 2),
             f"v_permlane16_swap_b32 {k+2}, {q+2}", f"v_permlane16_swap_b32 {k+3}, {q+3}",
             f"ds_write_b64 {v_tw}, {(k+2)(2)} offset:{(m+1)*128}"]
        if m == MH - 1:
            L += [f"s_cmp_lg_u32 {s_mh}, 0", "s_cbranch_scc1 K_NOX",
                  f"ds_write_b64 {v_xb}, {k(2)}", f"ds_write_b64 {v_xb}, {(k+2)(2)} offset:512",
                  f"ds_write_b64 {v_xb}, {(vf0+2*m+2)(2)} offset:1024", f"v_lshl_add_u32 {v_t0}, {s_nh}, 2, {v_cn}",
                  f"ds_write_b32 {v_t0}, {v_cn} offset:28", "K_NOX:"]
        return L

    for c in range(NCH):
        a.comment("chunk %d" % c)
        if c == 5:
            stamp(a, "c5")
        if c in (3, 8, 9):
            stamp(a, f"k{c}")
        a("s_waitcnt lgkmcnt(0)")
        if c == NCH - 1:
            break
        mfma_block(0, c == 0, read_ops(c, 1))
        if DEFER and c == P("WARMC", -1):
            warm_call("K_WRET_M", "M")
        elif late:
            a.lines += late.pop(0)
        a("s_waitcnt lgkmcnt(0)")
        a("s_barrier")
        mfma_block(1, False, read_ops(c + 1, 0))

    EF = os.environ.get("EARLYF", "a3")

    def hint(name):
        stamp(a, name)
        if EF != name:
            return
        a(f"s_cmp_eq_u32 {s_fb}, 0")
        a("s_cbranch_scc1 K_NOHINT")
        a(f"v_mov_b32 {v_t2}, {s_fb}")
        a(f"s_mov_b32 exec_lo, {s_fl}")
        a("s_mov_b32 exec_hi, 0")
        a(f"global_atomic_add {v_fo}, {v_t2}, {WS(2)} {SC_FLAG}")
        a("s_mov_b64 exec, -1")
        a.label("K_NOHINT")

    def cgate(name, vaddr, off, val):
        a(f"s_mov_b32 {s_tmp}, {SPIN*8}")
        a.label(f"K_CG{name}")
        a(f"ds_read_b32 {v_t1}, {vaddr} offset:{off}")
        a(f"s_sub_u32 {s_tmp}, {s_tmp}, 1")
        a("s_waitcnt lgkmcnt(0)")
        a(f"v_readfirstlane_b32 {s_t2}, {v_t1}")
        a(f"s_cselect_b32 {s_t2}, {val}, {s_t2}")
        a(f"s_cmp_lt_u32 {s_t2}, {val}")
        a(f"s_cbranch_scc1 K_CG{name}")

    QU, PU = [2, 3, 4, 5], [0, 1]
    sc = [(fa[0][u], fa[1][u]) for u in range(MH)]
    kx, vf1 = fb[0][0], fb[0][1]
    ex = [fb[1][1] + 2*k for k in range(6)]
    pk = [sc[u][0] for u in range(MH)]

    def smm(u, own):
        k = kf[u] if own else (kf[u-1] if u else kx)
        b = v_b1 if own else (v_bp if u == 1 else v_b0)
        return f"{MFMA} {sc[u][own](4)}, {k(4)}, {qf[u](4)}, {b(4)}"

    def pick(u):
        s0, s1 = sc[u]
        return [f"v_max3_f32 {s0}, {s0}, {s0+1}, {s1}", f"v_max3_f32 {s0+2}, {s0+2}, {s0+3}, {s1+2}",
                f"v_max_f32 {s0}, {s0}, {s1+1}", f"v_max_f32 {s0+1}, {s0+2}, {s1+3}",
                cvt(s0, s0)]

    M0 = P("LASTM", 2)
    MO = list(range(MH - 1, -1, -1))
    seq = [(m, tt, 0) for m in MO[:M0] for tt in range(4)] + [(m, tt, 1) for m in MO[:M0] for tt in range(4)]
    for m in MO[M0:]:
        seq += [(m, tt, 0) for tt in range(4)] + [(m, tt, 1) for tt in range(4)]
    ro = read_ops(NCH - 1, 1)
    rB = [l for l in ro if "tr_b16" in l]
    rA = [l for l in ro if "b128" in l][::-1]
    fill = [(("b", 0), rB[0]), (("b", 0), rB[1]), (("a", 5), rA[0])] + [(("b", k // 2), rB[k]) for k in range(2, 8)] \
        + [(("a", 5 - k), rA[k]) for k in range(1, 6)]
    Q = LgkmQueue(a)
    todo = []
    ALW = ("s_cbr", "ds_write_b", "K_NOX", "v_lshl")

    def drain_todo(n):
        k = 0
        while todo and todo[0][0] <= len(a.lines) and (k < n or todo[0][1].startswith(ALW)):
            l = todo.pop(0)[1]
            if l.startswith("#"):
                ready_at[int(l[1:])] = len(a.lines) + 2
                continue
            a.raw(l) if l.endswith(":") else a(l)
            if l.startswith("ds_write") and "offset:28" not in l and str(v_xb) + "," not in l:
                Q.issue("w")
            k += 1

    ready_at = {}
    sq = [(u, own) for u in (5, 4, 3, 2, 1) for own in (1, 0)] + [(0, 1)]

    def try_score():
        if not sq:
            return False
        u, own = sq[0]
        need = [u] if own else [u, u - 1]
        if any(ready_at.get(t, 1 << 30) > len(a.lines) for t in need):
            return False
        sq.pop(0)
        a(smm(u, own))
        if not own:
            todo.extend([len(a.lines) + 8, l] for l in pick(u))
        return True

    PPG = P("PPG", 2)
    for pos, (m, tt, ks) in enumerate(seq):
        if ks == 1:
            Q.need(("b", tt), ("a", m))
        a(mm1(m, tt, ks))
        for _ in range(2):
            if fill:
                tag, l = fill.pop(0)
                a(l)
                Q.issue(tag)
        if ks == 1 and tt == 3:
            todo.extend([len(a.lines) + 8, l] for l in prep(m) + [f"#{m}"])
        drain_todo(PPG)
        if P("SEARLY", 1) and try_score():
            drain_todo(PPG)
    stamp(a, "join")
    a(f"v_lshl_add_u32 {v_t0}, {s_nh}, 2, {v_cn}")
    a(f"ds_read_b32 {v_t1}, {v_t0} offset:28")
    gate_at = len(a.lines) + P("GATEL", 10)
    while todo or sq or gate_at:
        if gate_at and len(a.lines) >= gate_at and 0 in ready_at:
            gate_at = 0
            a("s_waitcnt lgkmcnt(0)")
            a(f"v_readfirstlane_b32 {s_t2}, {v_t1}")
            a(f"s_cmp_eq_u32 {s_t2}, 0")
            a("s_cbranch_scc1 K_XW")
            a.label("K_XR")
            a(f"ds_read_b64 {kx(2)}, {v_xb}")
            a(f"ds_read_b64 {(kx+2)(2)}, {v_xb} offset:512")
            a(f"ds_read_b64 {vf0(2)}, {v_xb} offset:1024")
            for t in range(7):
                a(f"ds_read_b64_tr_b16 {(vf1+2*t)(2)}, {v_tr} offset:{t*128}")
            continue
        n0 = len(a.lines)
        try_score()
        drain_todo(3)
        if len(a.lines) == n0 and (todo or sq or gate_at) and not (todo and todo[0][1].startswith("#")):
            a("s_nop 0")
    a("s_waitcnt lgkmcnt(8)")
    a(smm(0, 0))
    hint("a1")
    sw16 = lambda x, y: f"v_permlane16_swap_b32 {x}, {y}"
    sw32 = lambda x, y: f"v_permlane32_swap_b32 {x}, {y}"
    for l in (sw16(pk[4], pk[5]), sw16(pk[2], pk[3]), "s_nop 1", sw32(pk[2], pk[4]), sw32(pk[3], pk[5])):
        a(l)

    def unpack(u):
        a(f"v_lshlrev_b32 {ex[u]}, 16, {pk[u]}")
        a(f"v_and_b32 {ex[u]+1}, 0xffff0000, {pk[u]}")

    RL2 = P("RL2", 1)
    for u in (2, 4):
        unpack(u)
    for l in pick(0):
        a(l)
    unpack(3)
    a(sw16(pk[0], pk[1]))
    EO = [2, 4, 3, 5, 0, 1]
    for u in EO[3:]:
        unpack(u)
    if RL2:
        for u in EO:
            a(f"v_pk_mul_f32 {ex[u](2)}, {ex[u](2)}, {s_sc(2)}")
        for u in EO:
            a(cvt(pk[u], ex[u]))
        for u in EO[::-1]:
            unpack(u)
    mq, mp, tp = sc[0][1], sc[0][1] + 2, sc[1][1]
    a(f"v_max3_f32 {mp}, {ex[0]}, {ex[0]+1}, {ex[1]}")
    a(f"v_max3_f32 {mq}, {ex[2]}, {ex[2]+1}, {ex[4]}")
    a(f"v_max_f32 {mp}, {mp}, {ex[1]+1}")
    a(f"v_max3_f32 {mq}, {mq}, {ex[4]+1}, {ex[3]}")
    a(f"v_mov_b32 {tp}, {mp}")
    a(f"v_max3_f32 {mq}, {mq}, {ex[3]+1}, {ex[5]}")
    a(f"v_max_f32 {mq}, {mq}, {ex[5]+1}")
    a(sw32(mp, tp))
    a(f"v_mul_f32 {mq}, {s_c}, {mq}")
    a(f"v_max_f32 {mp}, {mp}, {tp}")
    a(f"v_mul_f32 {mp}, {s_c}, {mp}")
    for u in QU + PU:
        a(f"v_pk_fma_f32 {ex[u](2)}, {ex[u](2)}, {s_c(2)}, {(mq if u >= 2 else mp)(2)} op_sel_hi:[1,1,0] neg_lo:[0,0,1] neg_hi:[0,0,1]")
    for u in PU + QU:
        a(f"v_exp_f32 {ex[u]}, {ex[u]}")
        a(f"v_exp_f32 {ex[u]+1}, {ex[u]+1}")
    hint("a2")
    t2 = sc[1][1] + 2
    a(f"v_pk_add_f32 {mp(2)}, {ex[0](2)}, {ex[1](2)}")
    a(f"v_pk_add_f32 {mq(2)}, {ex[2](2)}, {ex[3](2)}")
    a(f"v_add_f32 {mp}, {mp}, {mp+1}")
    a(f"v_pk_add_f32 {t2(2)}, {ex[4](2)}, {ex[5](2)}")
    a(f"v_mov_b32 {tp}, {mp}")
    a(f"v_pk_add_f32 {mq(2)}, {mq(2)}, {t2(2)}")
    a(f"v_add_f32 {mq}, {mq}, {mq+1}")
    a(sw32(mp, tp))
    a(f"v_rcp_f32 {mq}, {mq}")
    a(f"v_add_f32 {mp}, {mp}, {tp}")
    a(f"v_rcp_f32 {mp}, {mp}")
    for u in QU:
        a(f"v_pk_mul_f32 {ex[u](2)}, {ex[u](2)}, {mq(2)} op_sel_hi:[1,0]")
    for u in PU:
        a(f"v_pk_mul_f32 {ex[u](2)}, {ex[u](2)}, {mp(2)} op_sel_hi:[1,0]")
    for u in (2, 4, 3, 5, 0, 1):
        a(cvt(pk[u], ex[u]))
    for l in (sw32(pk[2], pk[4]), sw32(pk[3], pk[5]), sw16(pk[0], pk[1]), "s_waitcnt lgkmcnt(0)", sw16(pk[2], pk[3]), sw16(pk[4], pk[5])):
        a(l)
    hint("a3")
    pf = qf
    oc = [(acc[m][2], acc[m][3]) for m in range(MH)]

    def pv(u):
        for dt, vf in ((1, vf1), (0, vf0)):
            a(f"{MFMA} {oc[u][dt](4)}, {(vf+2*u)(4)}, {pf[u](4)}, 0")

    def outp(q):
        st = kf[2*q]
        for j in range(2):
            a(cvt(st + 2*j, oc[2*q+j][0]))
        for j in range(2):
            a(cvt(st + 2*j + 1, oc[2*q+j][0] + 2))
        a("s_nop 0")
        a(sw16(st, st + 2))
        a(sw16(st + 1, st + 3))
        a(f"v_min_u32 {st}, -2, {st}")
        a(f"buffer_store_dwordx4 {st(4)}, {v_o[q]}, {sO(4)}, 0 offen {SC_ST}")

    def tail(u):
        t = kf[u | 1] + 2 * (u & 1)
        a(cvt(t, oc[u][1]))
        a(cvt(t + 1, oc[u][1] + 2))
        a(f"ds_write_b64 {v_sw1}, {t(2)} offset:{u*256}")

    for u in range(MH):
        for k in range(4):
            a(f"v_perm_b32 {pf[u]+k}, {pk[u]}, {pk[u]}, {v_ps+k}")
        if u > 0:
            pv(u - 1)
        if u > 2:
            tail(u - 3)
    a(f"v_mov_b32 {v_t1}, 1")
    pv(MH - 1)
    hint("a4")
    a(f"v_lshl_add_u32 {v_t0}, {s_mh}, 2, {v_cn}")
    for u in range(3, MH):
        if u == MH - 1:
            a("s_nop 0")
        tail(u)
    a("s_mov_b64 exec, 1")
    a(f"ds_add_u32 {v_t0}, {v_t1} offset:48")
    a("s_mov_b64 exec, -1")
    outp(0)
    outp(1)
    a(f"ds_read_b32 {v_t1}, {v_t0} offset:48")
    a(f"ds_read_b128 {kx(4)}, {v_sr1}")
    hint("a5")
    outp(2)
    a("s_waitcnt lgkmcnt(0)")
    a(f"v_readfirstlane_b32 {s_t2}, {v_t1}")
    a(f"s_cmp_lt_u32 {s_t2}, 2")
    a("s_cbranch_scc1 K_TW")
    a.label("K_TR")
    a(f"v_min_u32 {kx}, -2, {kx}")
    a(f"buffer_store_dwordx4 {kx(4)}, {v_ot}, {sO(4)}, 0 offen {SC_ST}")
    stamp(a, "attdone")
    a(f"s_cmp_eq_u32 {s_n}, -1")
    a("s_cbranch_scc1 K_END")
    a(f"s_add_u32 {s_w}, {s_w}, 4")
    a("s_branch K_P2_HELP")
    a.label("K_XW")
    cgate("X", v_t0, 28, 1)
    a("s_branch K_XR")
    a.label("K_TW")
    cgate("T", v_t0, 48, 2)
    a(f"ds_read_b128 {kx(4)}, {v_sr1}")
    a("s_waitcnt lgkmcnt(0)")
    a("s_branch K_TR")

    seg_aux0 = len(a.lines)
    S.release(mS)
    V.release(mV)
    a.label("K_AUX")
    GA, UP, DN = 0, 40960, 81920
    KEYS = 122880
    KSEL = KEYS + 1024
    PRE = KSEL + 64
    HB = PRE + 1024
    WV = HB + 1024
    assert WV + 4 * 4096 <= YB
    s_j = S.a()
    s_pm = S.a(8)
    s_pg = S.a(2)
    sR, sGW = sW, sO
    sG, sU, sD = S.many(3, 4)
    s_k1 = S.a(2)
    s_k2 = s_k1 + 1
    s_so, s_m0, s_m1 = S.many(3)
    s_t3 = S.a(3)

    def aux_ids():
        common_ids()
        a(f"s_mul_i32 {s_j}, {s_xcd}, 7")
        a(f"s_add_u32 {s_j}, {s_j}, {s_i}")
        a(f"s_sub_u32 {s_j}, {s_j}, 1")
        a(f"s_cmp_lt_u32 {s_j}, {NSL}")
        a(f"s_cselect_b32 {s_j}, {s_j}, 63")
        a(f"s_cmp_eq_u32 {s_i}, 0")
        a(f"s_cselect_b32 {s_j}, 63, {s_j}")

    v_row, v_xo, v_c16, v_go, v_do, v_gy = V.many(6)
    xr = V.a(160)
    vk = V.a(4)

    def fgate(name, off, val):
        a(f"s_mov_b32 {s_tmp}, {SPIN*8}")
        a.label(f"K_FG{name}")
        a(f"ds_read_b32 {v_t0}, {v_gy} offset:{off}")
        a("s_sleep 1")
        a(f"s_sub_u32 {s_tmp}, {s_tmp}, 1")
        a("s_waitcnt lgkmcnt(0)")
        a(f"v_readfirstlane_b32 {s_t2}, {v_t0}")
        a("s_nop 3")
        a(f"s_cselect_b32 {s_t2}, {val}, {s_t2}")
        a(f"s_cmp_lt_u32 {s_t2}, {val}")
        a(f"s_cbranch_scc1 K_FG{name}")

    a(f"s_cmp_ge_u32 {s_w}, 4")
    a("s_cbranch_scc1 K_AUX_L")
    a(f"s_and_b32 {s_tmp}, s2, 7")
    a(f"s_lshr_b32 {s_so}, s2, 3")
    a(f"s_lshl3_add_u32 {s_tmp}, {s_tmp}, {s_so}")
    a(f"s_lshl_b32 {s_tmp}, {s_tmp}, 5")
    a(f"s_lshl3_add_u32 {s_tmp}, {s_w}, {s_tmp}")
    a(f"v_bfe_u32 {v_row}, v0, 4, 2")
    a(f"v_add_u32 {v_row}, {s_tmp}, {v_row}")
    a(f"v_and_b32 {v_c16}, 15, v0")
    a(f"v_lshlrev_b32 {v_c16}, 4, {v_c16}")
    a(f"v_mul_u32_u24 {v_xo}, 1280, {v_row}")
    a(f"v_add_u32 {v_xo}, {v_xo}, {v_c16}")
    a(f"v_and_b32 {v_t0}, 63, v0")
    a(f"v_lshlrev_b32 {v_t0}, 4, {v_t0}")
    a(f"s_lshl_b32 {s_m0}, {s_w}, 12")
    a(f"s_add_u32 {s_m0}, {s_m0}, {WV}")
    a(f"s_mov_b32 {s_so}, {4*1280}")
    a(f"s_mov_b32 m0, {s_m0}")
    a("s_waitcnt lgkmcnt(0)")
    srd(a, sR, s_pm, 1280)
    srd(a, sGW, s_pg, 1280)
    a(f"buffer_load_dwordx4 {v_t0}, {sR(4)}, 0 offen lds")
    a(f"buffer_load_dwordx4 {v_t0}, {sR(4)}, 0 offen offset:1024 lds")
    a(f"s_add_u32 m0, {s_m0}, 2048")
    a(f"v_add_u32 {v_c16}, {s_m0}, {v_c16}")
    a(f"buffer_load_dwordx4 {v_t0}, {sGW(4)}, 0 offen lds")
    a(f"buffer_load_dwordx4 {v_t0}, {sGW(4)}, 0 offen offset:1024 lds")
    for j in range(5):
        for h in range(2):
            a(f"buffer_load_dwordx4 {(xr+8*j+4*h)(4)}, {v_xo}, {sX(4)}, {s_so if h else 0} offen offset:{j*256}")
    stamp(a, "rissued")
    a("s_barrier")
    aux_ids()
    srd(a, sWO, s_pwo, 640 * 1280)
    srd(a, sD, WS, ZBYTES, FL_OFF)
    srd(a, sU, WS, YP_BYTES, YP_OFF)
    ar, ag = [xr + 80, xr + 81], [xr + 82, xr + 83]
    for v in ar + ag:
        a(f"v_mov_b32 {v}, 0")
    a(f"v_mov_b32 {v_gy}, {YB}")
    a("s_waitcnt vmcnt(10)")
    for j in range(5):
        a(f"ds_read_b128 {(xr+40+4*j)(4)}, {v_c16} offset:{j*256}")
        a(f"ds_read_b128 {(xr+60+4*j)(4)}, {v_c16} offset:{2048 + j*256}")
    for j in range(5):
        a(f"s_waitcnt vmcnt({8 - 2*j}) lgkmcnt({8 - 2*j})")
        for e in range(4):
            for h in range(2):
                a(f"v_dot2c_f32_bf16 {ar[h]}, {xr+8*j+4*h+e}, {xr+40+4*j+e}")
                a(f"v_dot2c_f32_bf16 {ag[h]}, {xr+8*j+4*h+e}, {xr+60+4*j+e}")
    a("s_nop 2")
    for dpp in ("quad_perm:[1,0,3,2]", "quad_perm:[2,3,0,1]", "row_half_mirror", "row_mirror"):
        for v in ar + ag:
            a(f"v_add_f32_dpp {v}, {v}, {v} {dpp} row_mask:0xf bank_mask:0xf")
    a(f"v_and_b32 {v_t2}, 31, {v_row}")
    a(f"v_lshlrev_b32 {v_go}, 2, {v_t2}")
    a(f"v_add_u32 {v_go}, {KEYS}, {v_go}")
    a(f"v_lshlrev_b32 {v_do}, 1, {v_t2}")
    a(f"v_add_u32 {v_do}, {KEYS + 128}, {v_do}")
    for h in range(2):
        bf16r(a, v_t0, ar[h])
        a(f"v_ashrrev_i32 {v_t1}, 31, {v_t0}")
        a(f"v_or_b32 {v_t1}, 0x80000000, {v_t1}")
        a(f"v_xor_b32 {v_t0}, {v_t0}, {v_t1}")
        a(f"v_and_b32 {v_t0}, 0xffff0000, {v_t0}")
        a(f"v_sub_u32 {v_t1}, 0x{0x87ff - 4*h:x}, {v_row}")
        a(f"v_or_b32 {ar[h]}, {v_t0}, {v_t1}")
        a(f"ds_write_b32 {v_go}, {ar[h]} offset:{16*h}")
        bf16r(a, ag[h], ag[h])
        sigmoid(a, ag[h], ag[h], v_t3)
        a(f"v_cvt_pk_bf16_f32 {ag[h]}, {ag[h]}, {ag[h]}")
        a(f"v_or_b32 {ag[h]}, 0x8000, {ag[h]}")
        a(f"ds_write_b16 {v_do}, {ag[h]} offset:{8*h}")
    a(f"v_mov_b32 {v_t1}, 1")
    a("s_mov_b64 exec, 1")
    a(f"ds_add_u32 {v_gy}, {v_t1} offset:48")
    a("s_mov_b64 exec, -1")
    stamp(a, "scored")
    a(f"s_cmp_ge_u32 {s_w}, 6")
    a("s_cbranch_scc1 K_AUX_G1")
    fgate("R", 48, 4)
    a(f"s_cmp_lg_u32 {s_w}, 4")
    a("s_cbranch_scc1 K_AUX_G0")
    a(f"v_and_b32 {v_t1}, 31, {v_lane}")
    a(f"v_lshlrev_b32 {v_t1}, 2, {v_t1}")
    a(f"v_add_u32 {v_t1}, {KEYS}, {v_t1}")
    a(f"ds_read_b32 {v_t0}, {v_t1}")
    a("s_waitcnt lgkmcnt(0)")
    wave_top2(a, v_t0, v_t1, s_k1, s_k2, s_t3)
    zpoll(3, [0, 64], 1)
    a("s_lshl_b32 %s, s2, 3" % s_tmp)
    a(f"s_add_u32 {s_tmp}, {s_tmp}, {FL_OFF + KMB}")
    a(f"s_atomic_add_x2 {s_k1(2)}, {WS(2)}, {s_tmp}")
    stamp(a, "pub")
    a(f"s_cmp_lg_u32 s2, {HUB}")
    a("s_cbranch_scc1 K_AUX_G1")
    a(f"s_mov_b32 {s_so}, {KMB}")
    a(f"v_lshlrev_b32 {v_t1}, 3, {v_lane}")
    a(f"s_mov_b32 {s_tmp}, {SPIN}")
    a.label("K_AUX_POLL")
    a(f"buffer_load_dwordx2 {vk(2)}, {v_t1}, {sD(4)}, {s_so} offen {SC_POLL}")
    a("s_waitcnt vmcnt(0)")
    a(f"v_min_u32 {v_t0}, {vk}, {vk+1}")
    a(f"v_cmp_eq_u32 vcc, 0, {v_t0}")
    a("s_cbranch_vccz K_AUX_GOT")
    a(f"s_sleep {P('KSLEEP', 2)}")
    a(f"s_sub_u32 {s_tmp}, {s_tmp}, 1")
    a(f"s_cmp_lg_u32 {s_tmp}, 0")
    a("s_cbranch_scc1 K_AUX_POLL")
    a.label("K_AUX_GOT")
    a("s_waitcnt lgkmcnt(0)")
    wave_max_u32(a, vk, v_t1, s_k1, s_t3)
    a(f"v_cmp_ne_u32 vcc, {s_k1}, {vk}")
    a("s_nop 1")
    a(f"v_cndmask_b32 {v_t0}, {vk+1}, {vk}, vcc")
    wave_max_u32(a, v_t0, v_t1, s_k2, s_t3)
    a(f"v_mov_b32 {vk}, {s_k1}")
    a(f"v_mov_b32 {vk+1}, {s_k2}")
    fgate("Z", 36, 1)
    a(f"v_lshlrev_b32 {v_t1}, 9, {v_lane}")
    a(f"s_mov_b32 {sD+2}, {KMB}")
    for k in range(3):
        a(f"s_mov_b32 {s_so}, {k*64*512}")
        a(f"buffer_store_dwordx2 {vk(2)}, {v_t1}, {sD(4)}, {s_so} offen offset:128 {SC_FLAG}")
    a(f"v_mov_b32 {v_t1}, 16")
    a(f"ds_write_b32 {v_gy}, {v_t1} offset:48")
    stamp(a, "hub")
    a("s_branch K_AUX_G1")
    a.label("K_AUX_G0")
    a(f"v_and_b32 {v_t1}, 3, {v_lane}")
    a(f"v_lshlrev_b32 {v_t1}, 4, {v_t1}")
    a(f"v_add_u32 {v_t0}, {KEYS + 128}, {v_t1}")
    a(f"ds_read_b128 {vk(4)}, {v_t0}")
    a(f"v_lshrrev_b32 {v_t0}, 2, {v_lane}")
    a(f"v_lshl_add_u32 {v_t1}, {v_t0}, 9, {v_t1}")
    a(f"s_sleep {P('BSLEEP', 12)}")
    zpoll(4, [128], NZ)
    a(f"v_mov_b32 {v_t0}, 1")
    a(f"ds_write_b32 {v_gy}, {v_t0} offset:36")
    a(f"s_lshr_b32 {s_tmp}, {s_i}, 2")
    a(f"s_lshl1_add_u32 {s_tmp}, {s_xcd}, {s_tmp}")
    a(f"s_mul_i32 {s_tmp}, {s_tmp}, 5120")
    a(f"s_and_b32 {s_so}, {s_i}, 3")
    a(f"s_lshl_b32 {s_so}, {s_so}, 6")
    a(f"s_add_u32 {s_tmp}, {s_tmp}, {s_so}")
    a("s_mov_b32 exec_hi, 0xff")
    a("s_waitcnt lgkmcnt(0)")
    a(f"buffer_store_dwordx4 {vk(4)}, {v_t1}, {sD(4)}, {s_tmp} offen offset:256 {SC_FLAG}")
    a("s_mov_b64 exec, -1")
    a.label("K_AUX_G1")
    a(f"s_cmp_lg_u32 {s_j}, 63")
    a("s_cbranch_scc1 K_FFN_C")
    a(f"s_cmp_lg_u32 {s_i}, 0")
    a("s_cbranch_scc1 K_AUX_NT")
    a(f"s_mul_i32 {s_tmp}, {s_w}, 160")
    a(f"s_sub_u32 {s_tmp}, {s_tmp}, 640")
    a(f"v_lshrrev_b32 {v_t0}, 1, {v_lane}")
    a(f"v_add_u32 {v_t0}, {s_tmp}, {v_t0}")
    a(f"v_mul_u32_u24 {v_t0}, 1280, {v_t0}")
    a(f"v_and_b32 {v_t1}, 1, {v_lane}")
    a(f"v_lshl_add_u32 {v_t0}, {v_t1}, 7, {v_t0}")
    for k in range(5):
        a(f"s_mov_b32 {s_so}, {k*32*1280}")
        a(f"buffer_load_dword {v_t3}, {v_t0}, {sWO(4)}, {s_so} offen offset:1024")
    a.label("K_AUX_NT")
    fgate("Z2", 36, 1)
    a("s_waitcnt vmcnt(0)")
    a("s_branch K_P2")

    a.label("K_AUX_L")
    aux_ids()
    lds_zero()
    a(f"v_lshrrev_b32 {v_t1}, 2, {v_lane}")
    a(f"v_mul_u32_u24 {v_go}, 3456, {v_t1}")
    a(f"v_and_b32 {v_t1}, 3, {v_lane}")
    a(f"v_lshl_add_u32 {v_go}, {v_t1}, 4, {v_go}")
    a(f"s_mul_i32 {s_tmp}, {s_w}, {10*55296}")
    a(f"s_lshl_b32 {s_so}, {s_j}, 6")
    a(f"s_add_u32 {s_tmp}, {s_tmp}, {s_so}")
    a(f"v_add_u32 {v_go}, {s_tmp}, {v_go}")
    a(f"s_mul_i32 {s_k1}, {s_w}, 10240")
    a(f"s_add_u32 {s_m1}, {s_k1}, {UP}")
    a(f"s_bitcmp1_b32 {s_j}, 0")
    a(f"s_cselect_b32 {s_m0}, {s_m1}, {s_k1}")
    a(f"s_cselect_b32 {s_m1}, {s_k1}, {s_m1}")
    a(f"v_lshlrev_b32 {v_row}, 4, {v_lane}")
    a("s_waitcnt lgkmcnt(0)")
    a("s_barrier")
    srd(a, sWO, s_pwo, 640 * 1280)
    a(f"s_cmp_lg_u32 {s_j}, 63")
    a("s_cbranch_scc1 K_AUX_FFN1")
    a(f"s_cmp_lg_u32 {s_w}, 0")
    a("s_cbranch_scc1 K_AUX_NR")
    a(f"s_cmp_eq_u32 s2, {HUB - 8}")
    a("s_cbranch_scc1 K_AUX_NR")
    a(f"s_cmp_eq_u32 s2, {HUB}")
    a(f"s_cselect_b32 {s_so}, 0, 128")
    a(f"s_mov_b32 {s_tmp}, 1")
    a("s_waitcnt vmcnt(0)")
    a(f"s_atomic_add {s_tmp}, {DBG(2)}, {s_so}")
    a(f"s_atomic_add {s_tmp}, {DBG(2)}, {s_so} offset:64")
    a("s_waitcnt lgkmcnt(0)")
    stamp(a, "zdone")
    a.label("K_AUX_NR")
    a(f"s_cmp_lg_u32 s2, {HUB}")
    a("s_cbranch_scc1 K_AUX_NH")
    a(f"v_mov_b32 {v_gy}, {YB}")
    fgate("H", 48, 16)
    a.label("K_AUX_NH")
    a("s_branch K_P2")
    a.label("K_AUX_FFN1")
    a(f"s_bitcmp1_b32 {s_j}, 0")
    a(f"s_cselect_b64 {sG(2)}, {(s_pm+4)(2)}, {(s_pm+2)(2)}")
    a(f"s_cselect_b64 {sU(2)}, {(s_pm+2)(2)}, {(s_pm+4)(2)}")
    a(f"s_mov_b32 {sG+2}, {640*3456}")
    a(f"s_mov_b32 {sG+3}, 0x20000")
    a(f"s_mov_b32 {sU+2}, {640*3456}")
    a(f"s_mov_b32 {sU+3}, 0x20000")
    if P("LDEL", 0):
        a(f"s_sleep {P('LDEL', 0)}")
    for k in range(20):
        q = k % 10
        a(f"s_add_u32 m0, {s_m0 if k < 10 else s_m1}, {q*1024}")
        a(f"s_mov_b32 {s_so}, {q*55296}")
        a(f"buffer_load_dwordx4 {v_go}, {(sG if k < 10 else sU)(4)}, {s_so} offen {FNT} lds")
    srd(a, sD, s_pm + 6, 1728 * 1280)
    a(f"s_mul_i32 {s_tmp}, {s_j}, 40960")
    a(f"s_add_u32 {s_tmp}, {s_tmp}, {s_k1}")
    a(f"v_add_u32 {v_do}, {s_tmp}, {v_row}")
    for q in range(10):
        a(f"s_add_u32 m0, {s_k1}, {DN + q*1024}")
        a(f"s_mov_b32 {s_so}, {q*1024}")
        a(f"buffer_load_dwordx4 {v_do}, {sD(4)}, {s_so} offen {FNTD} lds")
    a("s_waitcnt vmcnt(10)")
    a("s_barrier")
    a("s_branch K_P2_EARLY")

    a.label("K_FFN_C")
    wf, xf, df = xr, xr + 80, xr
    v_g, v_wa, v_da, v_ka = V.many(4)
    a(f"v_lshrrev_b32 {v_g}, 4, {v_lane}")
    a(f"v_bfe_u32 {v_t0}, {v_lane}, 2, 2")
    a(f"v_lshl_add_u32 {v_t0}, {v_g}, 3, {v_t0}")
    a(f"v_and_b32 {v_t1}, 3, {v_lane}")
    a(f"v_lshlrev_b32 {v_t1}, 3, {v_t1}")
    a(f"v_lshl_add_u32 {v_wa}, {v_t0}, 6, {v_t1}")
    a(f"s_bfe_u32 {s_tmp}, {s_w}, 0x10001")
    a(f"s_mul_i32 {s_tmp}, {s_tmp}, 40960")
    a(f"s_and_b32 {s_so}, {s_w}, 1")
    a(f"s_lshl_b32 {s_so}, {s_so}, 5")
    a(f"s_add_u32 {s_tmp}, {s_tmp}, {s_so}")
    a(f"s_add_u32 {s_tmp}, {s_tmp}, {GA}")
    a(f"v_add_u32 {v_wa}, {s_tmp}, {v_wa}")
    a(f"v_mul_u32_u24 {v_da}, 1280, {v_t0}")
    a(f"s_and_b32 {s_tmp}, {s_w}, 3")
    a(f"s_mul_i32 {s_tmp}, {s_tmp}, 320")
    a(f"s_add_u32 {s_tmp}, {s_tmp}, {DN}")
    a(f"v_add3_u32 {v_da}, {v_da}, {v_t1}, {s_tmp}")
    a(f"v_mov_b32 {v_ka}, {KSEL}")
    a(f"s_cmp_lg_u32 {s_w}, 5")
    a("s_cbranch_scc1 K_KW")
    a(f"s_mov_b32 {s_tmp}, {SPIN}")
    a.label("K_KPOLL")
    a(f"s_load_dwordx2 {s_k1(2)}, {WS(2)}, {s_mb} offset:128 glc")
    a("s_waitcnt lgkmcnt(0)")
    a(f"s_min_u32 {s_t2}, {s_k1}, {s_k2}")
    a(f"s_cmp_lg_u32 {s_t2}, 0")
    a("s_cbranch_scc1 K_KGOT")
    a(f"s_sleep {P('KSLEEP2', 2)}")
    a(f"s_sub_u32 {s_tmp}, {s_tmp}, 1")
    a("s_cbranch_scc0 K_KPOLL")
    a.label("K_KGOT")
    a(f"v_mov_b32 {vk}, {s_k1}")
    a(f"v_mov_b32 {vk+1}, {s_k2}")
    a(f"ds_write_b64 {v_ka}, {vk(2)}")
    a(f"v_lshlrev_b32 {v_t0}, 4, {v_lane}")
    XL = WV + 8192
    for t, sk in enumerate((s_k1, s_k2)):
        a(f"s_and_b32 {s_so}, {sk}, 0x7ff")
        a(f"s_sub_u32 {s_so}, 2047, {s_so}")
        a(f"s_mul_i32 {s_so}, {s_so}, 1280")
        a(f"s_mov_b32 m0, {XL + t*1344}")
        a("s_mov_b64 exec, -1")
        a(f"buffer_load_dwordx4 {v_t0}, {sX(4)}, {s_so} offen lds")
        a("s_mov_b64 exec, 0xffff")
        a(f"buffer_load_dwordx4 {v_t0}, {sX(4)}, {s_so} offen offset:1024 lds")
    a("s_mov_b64 exec, -1")
    a(f"v_mov_b32 {v_t1}, 16")
    a("s_waitcnt vmcnt(0)")
    a(f"ds_write_b32 {v_gy}, {v_t1} offset:48")
    a("s_branch K_KW2")
    a.label("K_KW")
    a(f"s_cmp_lt_u32 {s_w}, 6")
    a("s_cbranch_scc1 K_KW2")
    a(f"s_cmp_eq_u32 {s_w}, 6")
    a("s_cbranch_scc1 K_CHF0")
    a("s_branch K_CHF1")
    a.label("K_WRET_F")
    a.label("K_KW2")
    a(f"v_and_b32 {v_t0}, 1, {v_lane}")
    a(f"v_mul_u32_u24 {v_xo}, 1344, {v_t0}")
    a(f"v_lshl_add_u32 {v_xo}, {v_g}, 4, {v_xo}")
    a(f"v_add_u32 {v_xo}, {XL}, {v_xo}")
    pacc = V.many(2, 4)
    v_pa, v_hr, v_hs, v_hw, v_yo = V.many(5)
    a(f"v_and_b32 {v_t0}, 1, {v_lane}")
    a(f"v_lshlrev_b32 {v_pa}, 6, {v_t0}")
    a(f"v_lshl_add_u32 {v_pa}, {v_g}, 4, {v_pa}")
    a(f"s_and_b32 {s_tmp}, {s_w}, 3")
    a(f"s_lshl_b32 {s_tmp}, {s_tmp}, 7")
    a(f"v_add3_u32 {v_hr}, {v_pa}, {s_tmp}, {v_ka}")
    a(f"v_add_u32 {v_pa}, {PRE - KSEL}, {v_hr}")
    a(f"v_add_u32 {v_hr}, {HB - KSEL}, {v_hr}")
    a(f"v_lshrrev_b32 {v_t0}, 5, {v_lane}")
    a(f"v_bfe_u32 {v_t1}, {v_lane}, 4, 1")
    a(f"v_lshl_add_u32 {v_t1}, {v_t1}, 1, {v_t0}")
    a(f"v_lshlrev_b32 {v_t1}, 6, {v_t1}")
    a(f"v_and_b32 {v_t2}, 15, {v_lane}")
    a(f"v_lshl_add_u32 {v_t1}, {v_t2}, 2, {v_t1}")
    a(f"v_add_u32 {v_hs}, {PRE}, {v_t1}")
    a(f"v_lshlrev_b32 {v_t2}, 1, {v_lane}")
    a(f"s_add_u32 {s_tmp}, {s_tmp}, {HB}")
    a(f"v_add_u32 {v_hw}, {s_tmp}, {v_t2}")
    a(f"v_and_b32 {v_t0}, 1, {v_lane}")
    a(f"v_mul_u32_u24 {v_t0}, 2560, {v_t0}")
    a(f"v_lshl_add_u32 {v_yo}, {v_g}, 4, {v_t0}")
    a(f"s_mul_i32 {s_so}, {s_w}, 640")
    a(f"s_add_u32 {s_so}, {s_so}, {WV - 4*640}")
    a(f"v_add_u32 {v_yo}, {s_so}, {v_yo}")
    a(f"v_mov_b32 {v_t1}, 1")
    fgate("K", 48, 16)
    stamp(a, "keys")
    for q in range(20):
        a(f"ds_read_b128 {(xf+4*q)(4)}, {v_xo} offset:{q*64}")
    a("s_setprio 3")
    a("s_barrier")
    stamp(a, "dmad")
    for q in range(20):
        for h in range(2):
            a(f"ds_read_b64_tr_b16 {(wf+4*q+2*h)(2)}, {v_wa} offset:{q*2048 + h*256}")
    a("s_waitcnt lgkmcnt(0)")
    a("s_barrier")
    stamp(a, "polled")
    for q in range(20):
        a(f"{MFMA} {pacc[q&1](4)}, {(wf+4*q)(4)}, {(xf+4*q)(4)}, {'0' if q < 2 else pacc[q&1](4)}")
    stamp(a, "xin")
    a("s_nop 7")
    for r in range(4):
        a(f"v_add_f32 {pacc[0]+r}, {pacc[0]+r}, {pacc[1]+r}")
    a("s_mov_b32 exec_lo, 0x00030003")
    a("s_mov_b32 exec_hi, 0x00030003")
    a(f"ds_write_b128 {v_pa}, {pacc[0](4)}")
    a("s_mov_b64 exec, 1")
    a(f"ds_add_u32 {v_gy}, {v_t1} offset:52")
    a("s_mov_b64 exec, -1")
    a(f"s_cmp_lg_u32 {s_w}, 6")
    a("s_cbranch_scc1 K_NOS6B")
    mb_sample(v_t2)
    a.label("K_NOS6B")
    fgate("P", 52, 8)
    hv = V.a(4)
    stamp(a, "pre")
    a(f"ds_read_b32 {hv}, {v_hs}")
    a(f"ds_read_b32 {hv+2}, {v_hs} offset:256")
    for q in range(7):
        for h in range(2):
            a(f"ds_read_b64_tr_b16 {(df+4*q+2*h)(2)}, {v_da} offset:{q*32 + h*5120}")
    a("s_waitcnt lgkmcnt(14)")
    bf16r(a, hv, hv)
    bf16r(a, hv + 2, hv + 2)
    sigmoid(a, hv + 1, hv, hv + 1)
    a(f"v_mul_f32 {hv}, {hv}, {hv+1}")
    bf16r(a, hv, hv)
    a(f"v_mul_f32 {hv}, {hv}, {hv+2}")
    a(f"v_cvt_pk_bf16_f32 {hv}, {hv}, {hv}")
    a(f"ds_write_b16 {v_hw}, {hv}")
    a("s_waitcnt lgkmcnt(0)")
    a(f"ds_read_b128 {hv(4)}, {v_hr}")
    for q in range(7, 10):
        for h in range(2):
            a(f"ds_read_b64_tr_b16 {(df+4*q+2*h)(2)}, {v_da} offset:{q*32 + h*5120}")
    a("s_waitcnt lgkmcnt(6)")
    for q in range(10):
        if q >= 7:
            a(f"s_waitcnt lgkmcnt({2 * (9 - q)})")
        a(f"{MFMA} {(xf+4*q)(4)}, {(df+4*q)(4)}, {hv(4)}, 0")
    a("s_mov_b32 exec_lo, 0x00030003")
    a("s_mov_b32 exec_hi, 0x00030003")
    for q in range(10):
        a(f"ds_write_b128 {v_yo}, {(xf+4*q)(4)} offset:{q*64}")
    a(f"v_mov_b32 {v_t1}, 1")
    a("s_mov_b64 exec, 1")
    a(f"ds_add_u32 {v_gy}, {v_t1} offset:52")
    a("s_mov_b64 exec, -1")
    stamp(a, "yl")
    a(f"s_cmp_lg_u32 {s_w}, 4")
    a("s_cbranch_scc1 K_P2")
    a(f"v_lshlrev_b32 {v_t1}, 4, {v_lane}")
    a(f"v_add_u32 {v_t2}, {WV}, {v_t1}")
    a(f"s_mul_i32 {s_so}, {s_j}, 5120")
    a(f"s_add_u32 {s_m0}, {s_so}, 4096")
    fgate("Q", 52, 12)
    for q in range(5):
        a(f"ds_read_b128 {(df+4*q)(4)}, {v_t2} offset:{q*1024}")
    for q in range(5):
        a(f"s_waitcnt lgkmcnt({4-q})")
        a(f"buffer_store_dwordx4 {(df+4*q)(4)}, {v_t1}, {sU(4)}, {s_so if q < 4 else s_m0} offen offset:{(q % 4)*1024} {SC_ST}")
    a(f"s_mov_b32 {s_tmp}, 1")
    a("s_waitcnt vmcnt(0)")
    stamp(a, "ydone")
    a(f"s_atomic_add {s_tmp}, {WS(2)}, {FL_OFF + YCNT} glc")
    a(f"ds_read_b64 {vk(2)}, {v_ka}")
    a("s_waitcnt lgkmcnt(0)")
    a(f"s_cmp_lg_u32 {s_tmp}, {NSL - 1}")
    a("s_cbranch_scc1 K_P2")
    for t in range(2):
        a(f"v_readfirstlane_b32 {s_so}, {vk+t}")
        a(f"s_and_b32 {s_so}, {s_so}, 0x7ff")
        a(f"s_sub_u32 {s_so}, 2047, {s_so}")
        a(f"s_lshr_b32 {s_so}, {s_so}, 7")
        a(f"s_mul_i32 {s_so}, {s_so}, 5120")
        for ct in range(10):
            a(f"s_atomic_add {s_tmp}, {WS(2)}, {s_so} offset:{FL_OFF + ct*512 + 136}")
    a("s_waitcnt lgkmcnt(0)")
    a("s_branch K_P2")
    seg_aux1 = len(a.lines)

    S.release(mS)
    V.release(mV)
    sG, sY, sOut = sW, S.a(4), S.a(4)
    s_so, s_tg, s_row0, s_c10 = S.many(4)
    s_sel = S.a(4)
    s_k1, s_k2 = S.many(2)
    s_t3 = S.a(3)
    RO = P("P2RO", 6)
    s_lo = S.many(RO)
    s_rem, s_bud = S.many(2)
    v_l3, v_g, v_xo, v_go, v_fa, v_da, v_sr, v_yb = V.many(8)
    xv = V.a(8)
    gv = V.many(2, 2)
    vsel = V.a(4)
    bx = V.a(16)
    mV3 = V.mark()
    RM = P("RMIX", 0)

    GOL = YB + 1024

    def epi_pre():
        L = []
        for i in range(8):
            L += [f"v_lshlrev_b32 {bx+2*i}, 16, {xv+i}", f"v_and_b32 {bx+2*i+1}, 0xffff0000, {xv+i}"]
        return L
    v_r, v_c, v_sw, v_wo = V.many(4)
    v_oo = V.many(2)
    PERM = [0, 2, 5, 7, 1, 3, 4, 6]
    HGT = [[8 * (u & 1) + PERM[4 * (u >> 1) + i] for i in range(4)] for u in range(4)]
    vn, va = V.many(2), V.many(2)
    v_ma, v_m = V.many(2)

    of = [V.many(2, 4) for _ in range(RO)]
    acc = V.many(2, 16)
    fb = [V.many(4, 4) for _ in range(3)]
    bxt = V.many(4, 2)

    def p2_common():
        a(f"s_lshl_b32 {s_row0}, {s_rt2}, 7")
        a(f"v_lshrrev_b32 {v_l3}, 3, {v_lane}")
        a(f"v_lshrrev_b32 {v_g}, 4, {v_lane}")
        a(f"v_mov_b32 {v_yb}, {YB}")
        a(f"s_lshl_b32 {s_tg}, {s_rt2}, 3")
        a(f"s_add_u32 {s_tg}, {s_tg}, {s_w}")
        a(f"s_mul_i32 {s_tmp}, {s_tg}, 20480")
        a(f"s_lshl_b32 {s_t2}, {s_ct}, 7")
        a(f"s_add_u32 {s_tmp}, {s_tmp}, {s_t2}")
        a(f"v_and_b32 {v_t0}, 7, {v_lane}")
        a(f"v_lshlrev_b32 {v_t0}, 4, {v_t0}")
        a(f"v_mul_u32_u24 {v_t2}, 1280, {v_l3}")
        a(f"v_add3_u32 {v_xo}, {v_t0}, {v_t2}, {s_tmp}")
        a(f"s_lshl_b32 {s_tmp}, {s_w}, 7")
        a(f"s_add_u32 {s_tmp}, {s_tmp}, {GOL}")
        a(f"v_lshl_add_u32 {v_go}, {v_l3}, 3, {s_tmp}")
        a(f"s_mov_b32 {s_c10}, 10240")
        srd(a, sO, WS, O_BYTES, O_OFF)
        srd(a, sOut, s_po, X_BYTES)
        a(f"v_mul_u32_u24 {v_t1}, {SP}, {v_l3}")
        a(f"v_add_u32 {v_t1}, {v_t0}, {v_t1}")
        a(f"s_mul_i32 {s_tmp}, {s_w}, {16*SP}")
        a(f"s_add_u32 {s_tmp}, {s_tmp}, {STG}")
        a(f"v_add_u32 {v_sr}, {s_tmp}, {v_t1}")

    def p2_gemm_setup():
        a(f"v_bfe_u32 {v_r}, {v_lane}, 2, 2")
        a(f"v_and_b32 {v_c}, 3, {v_lane}")
        a(f"s_add_u32 {s_tmp}, {s_tg}, {s_w}")
        a(f"s_lshr_b32 {s_t2}, {s_tmp}, 2")
        a(f"s_mul_i32 {s_t2}, {s_t2}, {80 - 4}")
        a(f"s_add_u32 {s_tmp}, {s_tmp}, {s_t2}")
        a(f"s_lshl_b32 {s_tmp}, {s_tmp}, 10")
        a(f"v_and_b32 {v_t0}, 15, {v_lane}")
        a(f"v_lshl_add_u32 {v_t0}, {v_t0}, 4, {s_tmp}")
        a(f"v_lshrrev_b32 {v_t1}, 5, {v_lane}")
        a(f"v_lshl_add_u32 {v_t0}, {v_t1}, 8, {v_t0}")
        a(f"v_and_b32 {v_t2}, 1, {v_g}")
        a(f"v_lshl_add_u32 {v_oo[0]}, {v_t2}, 10, {v_t0}")
        a(f"v_mov_b32 {v_oo[1]}, 0x1f000")
        assert WO_L == 0
        a(f"v_lshl_add_u32 {v_t0}, {v_t1}, 3, {v_r}")
        a(f"v_lshlrev_b32 {v_t0}, 7, {v_t0}")
        a(f"v_lshl_add_u32 {v_t0}, {v_c}, 3, {v_t0}")
        a(f"v_lshl_add_u32 {v_t0}, {v_t2}, 5, {v_t0}")
        a(f"v_lshrrev_b32 {v_t2}, 1, {v_r}")
        a(f"v_lshl_add_u32 {vn[0]}, {v_t2}, 6, {v_t0}")
        a(f"v_xor_b32 {vn[1]}, 64, {vn[0]}")
        a(f"v_mov_b32 {va[0]}, {vn[0]}")
        a(f"v_mov_b32 {va[1]}, {vn[0]}")
        a(f"v_and_b32 {v_t0}, 31, {v_lane}")
        a(f"v_mul_u32_u24 {v_t0}, {SP}, {v_t0}")
        a(f"v_lshl_add_u32 {v_t0}, {v_t1}, 3, {v_t0}")
        a(f"s_mul_i32 {s_tmp}, {s_w}, {32*SP}")
        a(f"s_add_u32 {s_tmp}, {s_tmp}, {STG}")
        a(f"v_add_u32 {v_sw}, {s_tmp}, {v_t0}")

    def p2_gemm_setup2():
        a(f"s_lshl_b32 {s_tmp}, {s_rt2}, 3")
        a(f"s_mul_i32 {s_t2}, {s_tmp}, 187")
        a(f"s_lshr_b32 {s_t2}, {s_t2}, 11")
        a(f"s_add_u32 {s_t2}, {s_t2}, 1")
        a(f"s_mul_i32 {s_t2}, {s_t2}, 11")
        a(f"s_add_u32 {s_tmp}, {s_tg}, {s_w}")
        a(f"s_add_u32 {s_tmp}, {s_tmp}, 1")
        a(f"s_cmp_ge_u32 {s_tmp}, {s_t2}")
        a(f"s_cselect_b32 {s_so}, 24, 16")
        a(f"s_cmp_gt_u32 {s_tmp}, {s_t2}")
        a(f"s_cselect_b32 {s_so}, 20, {s_so}")
        a(f"v_add_u32 {v_ma}, {s_so}, {v_yb}")
        for r in range(RO):
            a(f"s_mov_b32 {s_lo[r]}, -1")
        a(f"s_mov_b32 {s_rem}, 0xfffff")
        a(f"s_mov_b32 {s_bud}, {SPIN}")
        for m in range(2):
            for e in range(16):
                a(f"v_mov_b32 {acc[m]+e}, 0")

    def lgate(name, off, val, sleep=0):
        a(f"s_mov_b32 {s_tmp}, {SPIN*8}")
        a.label(f"K_P2_G{name}")
        a(f"ds_read_b32 {v_t0}, {v_yb} offset:{off}")
        if sleep:
            a(f"s_sleep {sleep}")
        a(f"s_sub_u32 {s_tmp}, {s_tmp}, 1")
        a("s_waitcnt lgkmcnt(0)")
        a(f"v_readfirstlane_b32 {s_t2}, {v_t0}")
        a("s_nop 3")
        a(f"s_cselect_b32 {s_t2}, {val}, {s_t2}")
        a(f"s_cmp_lt_u32 {s_t2}, {val}")
        a(f"s_cbranch_scc1 K_P2_G{name}")

    def xloads():
        a(f"buffer_load_dwordx4 {xv(4)}, {v_xo}, {sX(4)}, 0 offen")
        a(f"buffer_load_dwordx4 {(xv+4)(4)}, {v_xo}, {sX(4)}, {s_c10} offen")

    a.label("K_P2_EARLY")
    p2_common()
    xloads()
    p2_gemm_setup()
    p2_gemm_setup2()
    if not SENT:
        a("s_waitcnt vmcnt(2)")
    a("s_barrier")
    stamp(a, "drained")
    a("s_branch K_P2_AUXW")
    a.label("K_P2_GM")
    p2_common()
    xloads()
    p2_gemm_setup()
    p2_gemm_setup2()
    warm_call("K_WRET_B", "B")
    a(f"v_mov_b32 {v_t1}, 1")
    a("s_waitcnt vmcnt(2)")
    a("s_mov_b64 exec, 1")
    a(f"ds_add_u32 {v_yb}, {v_t1} offset:44")
    a("s_mov_b64 exec, -1")
    a(f"s_cmp_eq_u32 {s_w}, 0")
    a("s_cbranch_scc1 K_P2_G0")
    a.label("K_P2_G0R")
    lgate("WM", 44, 4, 1)
    a.label("K_P2_GEMM")
    a(f"s_setprio {P('GPRIO', 2)}")
    stamp(a, "p2in")
    spin, drain = Asm(), Asm()
    s_rdy, s_p = s_sel + 2, s_sel + 3
    assert RO % 3 == 0
    a(f"s_mov_b32 {s_rdy}, 0")
    a("s_waitcnt vmcnt(0)")
    for l in epi_pre():
        a(l)
    if P("P2LOG", 0):
        a("s_mov_b32 m0, 0")
        a("s_memrealtime s[80:81]")
        V.high = 256
    a("s_branch K_SK0")
    for r in range(RO):
        c, n = (r + 1) % RO, (r + 2) % RO
        rd = [f"ds_read_b64_tr_b16 {(fb[(c+2) % 3][t]+2*h)(2)}, {va[t >> 1]} offset:{(t & 1)*2048 + h*512}" for t in range(4) for h in range(2)]
        refresh = [f"ds_read_b32 {v_m}, {v_ma}", "s_waitcnt lgkmcnt(0)", f"v_readfirstlane_b32 {s_rdy}, {v_m}"]
        sand = f"s_and_b32 {s_t2}, {s_rdy}, {s_rem}"
        ff1 = f"s_ff1_i32_b32 {s_p}, {s_t2}"
        shl = f"s_lshl_b32 {s_lo[r]}, {s_p}, 12"
        clr = f"s_bitset0_b32 {s_rem}, {s_p}"
        ld = [f"buffer_load_dwordx4 {of[r][m](4)}, {v_oo[0]}, {sO(4)}, {s_lo[r]} offen offset:{m*512} {SC_LD}" for m in range(2)]
        dl = f"buffer_load_dword {v_t1}, {v_oo[0]}, {sO(4)}, {s_lo[r]} offen"
        nul = [f"s_mov_b32 {s_lo[r]}, -1", f"v_mov_b32 {of[r][0]}, -1"]
        ad = [f"v_and_or_b32 {va[t]}, {s_lo[(c+3) % RO]}, {v_oo[1]}, {vn[t]}" for t in range(2)]
        mm = [f"v_mfma_f32_32x32x16_bf16 {acc[nh](16)}, {fb[c % 3][2*nh + kh](4)}, {of[c][kh](4)}, {acc[nh](16)}"
              for nh, kh in ((0, 0), (1, 0), (0, 1), (1, 1))]
        a.label(f"K_IT{r}")
        if P("P2LOG", 0):
            a("v_writelane_b32 v251, s80, m0")
            a("s_memrealtime s[80:81]")
            a(f"v_writelane_b32 v252, {s_lo[c]}, m0")
            a(f"v_writelane_b32 v253, {s_rdy}, m0")
            a(f"v_writelane_b32 v250, {s_bud}, m0")
            a("s_add_u32 m0, m0, 1")
        for l in [mm[0], rd[0], rd[1], sand, f"s_cbranch_scc0 K_RF{r}"]:
            a(l)
        a.label(f"K_RB{r}")
        for l in [ff1, rd[2], mm[1], clr, shl, ld[0], rd[3], rd[4], mm[2], ld[1], rd[5], rd[6], rd[7], mm[3]]:
            a(l)
        a.label(f"K_TL{r}")
        a(f"s_waitcnt vmcnt({2*(RO-2)}) lgkmcnt(8)")
        a(f"v_cmp_u_f32 vcc, {of[n][0]}, {of[n][1]}")
        for l in ad:
            a(l)
        a(f"s_cbranch_vccnz K_FX{c}")
        if r == RO - 1:
            a("s_branch K_IT0")
        drain.label(f"K_DR{r}")
        for l in [mm[0], rd[0], rd[1]]:
            drain(l)
        drain.label(f"K_DM{r}")
        for l in [rd[2], nul[0], mm[1], dl, rd[3], rd[4], mm[2], dl, rd[5], rd[6], rd[7], mm[3]]:
            drain(l)
        drain(f"s_waitcnt vmcnt({2*(RO-2)}) lgkmcnt(8)")
        drain(f"v_cmp_u_f32 vcc, {of[n][0]}, {of[n][1]}")
        for l in ad + [nul[1]]:
            drain(l)
        drain(f"s_cbranch_vccnz K_FX{c}")
        if r == RO - 1:
            drain("s_branch K_DR0")
        spin.label(f"K_RF{r}")
        spin(f"s_cmp_eq_u32 {s_rem}, 0")
        spin(f"s_cbranch_scc1 K_DM{r}")
        for l in refresh + [sand]:
            spin(l)
        spin(f"s_cbranch_scc1 K_RB{r}")
        spin.label(f"K_NV{r}")
        for l in [rd[2], mm[1]] + nul + [dl, rd[3], rd[4], mm[2], dl, rd[5], rd[6], rd[7], mm[3]]:
            spin(l)
        spin(f"s_branch K_TL{r}")
        spin.label(f"K_FX{r}")
        spin(f"s_cmp_lt_i32 {s_lo[c]}, 0")
        spin(f"s_cbranch_scc1 K_SK{r}")
        spin(f"v_max_u32 {v_t0}, {of[c][0]}, {of[c][1]}")
        spin(f"v_cmp_eq_u32 vcc, -1, {v_t0}")
        spin(f"s_cbranch_vccz K_IT{r}")
        spin(f"s_sub_u32 {s_bud}, {s_bud}, 1")
        spin(f"s_cbranch_scc1 K_IT{r}")
        spin(f"s_lshr_b32 {s_p}, {s_lo[c]}, 12")
        spin(f"s_bitset1_b32 {s_rem}, {s_p}")
        spin.label(f"K_SK{r}")
        spin(sand)
        spin(f"s_cbranch_scc0 K_NUL{r}")
        spin.label(f"K_BK{r}")
        for l in [ff1, shl] + ld + [clr]:
            spin(l)
        spin.label(f"K_RD{r}")
        for l in rd:
            spin(l)
        spin(f"s_cmp_lt_i32 {s_lo[n]}, 0")
        spin(f"s_cbranch_scc0 K_TL{r}")
        for l in ad:
            spin(l)
        spin(f"s_branch K_SK{c}")
        spin.label(f"K_NUL{r}")
        oth = [s_lo[j] for j in range(RO) if j not in (r, c)]
        spin(f"s_and_b32 {s_p}, {oth[0]}, {oth[1]}")
        for o in oth[2:]:
            spin(f"s_and_b32 {s_p}, {s_p}, {o}")
        spin(f"s_cmp_lt_i32 {s_p}, 0")
        spin(f"s_cbranch_scc0 K_PC{r}")
        spin(f"s_cmp_eq_u32 {s_rem}, 0")
        spin("s_cbranch_scc1 K_P2_MM")
        spin.label(f"K_SPN{r}")
        for l in refresh + [sand]:
            spin(l)
        spin(f"s_cbranch_scc1 K_BK{r}")
        spin(f"s_sleep {P('SSLEEP', 1)}")
        spin(f"s_branch K_SPN{r}")
        spin.label(f"K_PC{r}")
        spin(f"s_cmp_eq_u32 {s_rem}, 0")
        spin(f"s_cbranch_scc1 K_NI{r}")
        for _ in range(P("NPACE", 2)):
            for l in refresh + [sand]:
                spin(l)
            spin(f"s_cbranch_scc1 K_BK{r}")
        spin.label(f"K_NI{r}")
        for l in nul + [dl, dl]:
            spin(l)
        spin(f"s_branch K_RD{r}")
    if P("SPNEAR", 1):
        a.lines += drain.lines + spin.lines
        spin.lines = []
    a.label("K_P2_MM")
    seg_f0 = seg_f1 = len(a.lines)
    stamp(a, "p2mm")
    if P("P2LOG", 0):
        a("s_lshl_b32 s80, s2, 2")
        a(f"s_add_u32 s80, s80, {s_w}")
        a("s_lshl_b32 s80, s80, 10")
        a("s_add_u32 s80, s80, 0x%x" % (STAMP_OFF + 0x100000))
        a(f"v_lshl_add_u32 v254, {v_lane}, 4, s80")
        a(f"global_store_dwordx4 v254, v[250:253], {WS(2)}")
    for nh in range(2):
        for jq in range(4):
            tr = bxt[jq]
            a(f"v_cvt_pk_bf16_f32 {tr}, {acc[nh]+4*jq}, {acc[nh]+4*jq+1}")
            a(f"v_cvt_pk_bf16_f32 {tr+1}, {acc[nh]+4*jq+2}, {acc[nh]+4*jq+3}")
            a(f"ds_write_b64 {v_sw}, {tr(2)} offset:{nh*64 + jq*16}")

    seg_h0 = len(a.lines)
    a.label("K_P2")
    a(f"s_cmp_ge_u32 {s_w}, 4")
    a("s_cbranch_scc1 K_P2_HELP")
    p2_common()
    xloads()
    p2_gemm_setup()
    p2_gemm_setup2()
    a.label("K_P2_AUXW")
    wo_voff(v_wo)

    def dn_done():
        a(f"v_mov_b32 {v_t1}, 1")
        a("s_mov_b64 exec, 1")
        a(f"ds_add_u32 {v_yb}, {v_t1} offset:52")
        a("s_mov_b64 exec, -1")

    wo_blocks(v_wo, s_w, 0, s_k1, s_k2, s_so, P("THR", 6), dn_done)
    wo_blocks(v_wo, s_w, 1, s_k1, s_k2, s_so, P("THR", 6))
    warm_call("K_WRET_A", "A")
    a(f"v_mov_b32 {v_t1}, 1")
    a("s_waitcnt vmcnt(0)")
    a("s_mov_b64 exec, 1")
    a(f"ds_add_u32 {v_yb}, {v_t1} offset:44")
    a("s_mov_b64 exec, -1")
    lgate("WA", 44, 4)
    a("s_branch K_P2_GEMM")
    V.release(mV3)
    a.label("K_P2_HELP")
    a(f"s_setprio {P('HPRIO', 3)}")
    a(f"s_cmp_eq_u32 {s_w}, 7")
    a("s_cbranch_scc1 K_P2_W7")
    p2_common()
    srd(a, sY, WS, YP_BYTES, YP_OFF)
    vs = V.a(4)
    yq = V.many(14, 4)
    v_one = V.a()
    a(f"v_mov_b32 {v_one}, 1")
    xloads()
    a(f"s_cmp_lg_u32 {s_w}, 6")
    a("s_cbranch_scc1 K_P2_HW")
    a(f"s_mov_b32 {s_tmp}, {SPIN}")
    a("s_waitcnt vmcnt(2)")
    a.label("K_P2_DPOLL")
    a(f"v_min_u32 {v_t0}, {v_smp}, {v_pf}")
    a(f"v_cmp_eq_u32 vcc, 0, {v_t0}")
    a("s_cbranch_vccz K_P2_DOK")
    a(f"s_cmp_eq_u32 {s_tmp}, {SPIN}")
    a("s_cbranch_scc1 K_P2_DNS")
    a(f"s_sleep {P('DSLEEP', 12)}")
    a.label("K_P2_DNS")
    mb_sample(v_da)
    a(f"s_sub_u32 {s_tmp}, {s_tmp}, 1")
    a("s_waitcnt vmcnt(0)")
    a(f"s_cmp_lg_u32 {s_tmp}, 0")
    a("s_cbranch_scc1 K_P2_DPOLL")
    a.label("K_P2_DOK")
    a(f"v_readlane_b32 {s_k1}, {v_pf}, 0")
    a(f"v_readlane_b32 {s_k2}, {v_pf}, 1")
    a("s_nop 1")
    for t, sk in enumerate((s_k1, s_k2)):
        a(f"s_and_b32 {s_tmp}, {sk}, 0x7ff")
        a(f"s_sub_u32 {s_tmp}, 2047, {s_tmp}")
        a(f"v_mov_b32 {vs+t}, {s_tmp}")
        a(f"v_mov_b32 {v_t2}, {sk}")
        a(f"v_and_b32 {v_t2}, 0xffff0000, {v_t2}")
        a(f"v_ashrrev_i32 {v_t3}, 31, {v_t2}")
        a(f"v_not_b32 {v_t3}, {v_t3}")
        a(f"v_or_b32 {v_t3}, 0x80000000, {v_t3}")
        a(f"v_xor_b32 {v_t2}, {v_t2}, {v_t3}")
        a(f"v_and_b32 {v_t2}, 0xffff0000, {v_t2}")
        sigmoid(a, v_t2, v_t2, v_t3)
        bf16r(a, vs + 2 + t, v_t2)
    a(f"ds_write_b128 {v_yb}, {vs(4)}")
    a(f"ds_write_b32 {v_yb}, {v_one} offset:40")
    a(f"v_lshl_add_u32 {v_da}, {v_lane}, 4, {v_yb}")
    a(f"v_lshlrev_b32 {yq[0]}, 16, {v_smp}")
    a(f"v_and_b32 {yq[0]}, 0x7fff0000, {yq[0]}")
    a(f"v_and_b32 {yq[0]+2}, 0x7fff0000, {v_smp}")
    for e in (0, 2):
        a(f"v_sub_f32 {yq[0]+e+1}, 1.0, {yq[0]+e}")
        bf16r(a, yq[0] + e + 1, yq[0] + e + 1)
    a(f"ds_write_b128 {v_da}, {yq[0](4)} offset:{GOL - YB}")
    a("s_branch K_P2_E")
    a.label("K_P2_HW")
    lgate("S2", 40, 1, 1)
    a(f"ds_read_b128 {vsel(4)}, {v_yb}")
    a("s_waitcnt lgkmcnt(0)")
    a(f"s_cmp_eq_u32 {s_w}, 4")
    a("s_cselect_b64 vcc, -1, 0")
    a("s_nop 1")
    a(f"v_cndmask_b32 {v_t0}, {vsel+1}, {vsel}, vcc")
    a(f"v_cndmask_b32 {v_t3}, {vsel+3}, {vsel+2}, vcc")
    a("s_nop 0")
    a(f"v_readfirstlane_b32 {s_k1}, {v_t0}")
    a("s_nop 3")
    a(f"s_sub_u32 {s_tmp}, {s_k1}, {s_row0}")
    a(f"s_cmp_lt_u32 {s_tmp}, 128")
    a("s_cbranch_scc0 K_P2_E")
    a(f"s_mov_b32 {s_tmp}, {SPIN}")
    a.label("K_P2_YPOLL")
    a(f"s_load_dword {s_t2}, {WS(2)}, {s_mb} offset:136 glc")
    a("s_waitcnt lgkmcnt(0)")
    a(f"s_cmp_lg_u32 {s_t2}, 0")
    a("s_cbranch_scc1 K_P2_YGO")
    a(f"s_sleep {P('YSLEEP', 4)}")
    a(f"s_sub_u32 {s_tmp}, {s_tmp}, 1")
    a("s_cbranch_scc0 K_P2_YPOLL")
    a.label("K_P2_YGO")
    a(f"v_and_b32 {v_t0}, 15, {v_lane}")
    a(f"v_lshlrev_b32 {v_t0}, 4, {v_t0}")
    a(f"v_mul_u32_u24 {v_t2}, 5120, {v_g}")
    a(f"s_sub_u32 {s_k2}, {s_w}, 4")
    a(f"s_mul_i32 {s_t2}, {s_k2}, 2560")
    a(f"s_lshl_b32 {s_tmp}, {s_ct}, 8")
    a(f"s_add_u32 {s_tmp}, {s_tmp}, {s_t2}")
    a(f"v_add3_u32 {v_t1}, {v_t0}, {v_t2}, {s_tmp}")
    NQ = (NSL + 3) // 4
    for q in range(NQ):
        a(f"s_mov_b32 {s_so}, {q*20480}")
        a(f"buffer_load_dwordx4 {yq[q](4)}, {v_t1}, {sY(4)}, {s_so} offen {SC_LD}")
    for q in range(1, NQ):
        a(f"s_waitcnt vmcnt({NQ-1-q})")
        for e in range(4):
            a(f"v_add_f32 {vs+e}, {(vs if q > 1 else yq[0])+e}, {yq[q]+e}")
    for swap in ("v_permlane16_swap_b32", "v_permlane32_swap_b32"):
        for e in range(4):
            a(f"v_mov_b32 {yq[0]+e}, {vs+e}")
        a("s_nop 0")
        for e in range(4):
            a(f"{swap} {vs+e}, {yq[0]+e}")
        for e in range(4):
            a(f"v_add_f32 {vs+e}, {vs+e}, {yq[0]+e}")
    for e in range(4):
        bf16r(a, vs + e, vs + e)
        a(f"v_mul_f32 {vs+e}, {v_t3}, {vs+e}")
        bf16r(a, vs + e, vs + e)
    a(f"s_lshl_b32 {s_tmp}, {s_k2}, 8")
    a(f"s_add_u32 {s_tmp}, {s_tmp}, {YB + 256}")
    a(f"v_add_u32 {v_t0}, {s_tmp}, {v_t0}")
    a(f"ds_write_b128 {v_t0}, {vs(4)}")
    a("s_branch K_P2_E")
    a.label("K_P2_W7")
    a(f"s_lshl_b32 {s_tg}, {s_rt2}, 3")
    a(f"s_mul_i32 {s_k1}, {s_tg}, 187")
    a(f"s_lshr_b32 {s_k1}, {s_k1}, 11")
    a(f"s_add_u32 {s_tmp}, {s_tg}, 7")
    a(f"s_mul_i32 {s_k2}, {s_tmp}, 187")
    a(f"s_lshr_b32 {s_k2}, {s_k2}, 11")
    a(f"s_sub_u32 {s_k2}, {s_k2}, {s_k1}")
    a(f"s_mov_b32 {s_fl}, {s_mb}")
    s_mm, s_tb, s_ma, s_tq = sY, sY + 2, s_sel, s_sel + 2
    a("s_waitcnt lgkmcnt(0)")
    a(f"s_load_dwordx2 {s_ma(2)}, {WS(2)}, {s_fl} glc")
    a(f"s_mov_b32 {s_tb}, 0x84210")
    a(f"s_mov_b32 {s_tb+1}, {s_tb}")
    a(f"v_mov_b32 {v_yb}, {YB}")

    def publish():
        a(f"s_cmp_eq_u32 {s_k2}, 0")
        a(f"s_cselect_b32 {s_ma+1}, {s_ma}, {s_ma+1}")
        a(f"s_lshl_b64 {s_tq(2)}, {s_ma(2)}, 1")
        a(f"s_and_b64 {s_tq(2)}, {s_tq(2)}, {s_ma(2)}")
        a(f"s_lshl_b64 vcc, {s_tq(2)}, 2")
        a(f"s_and_b64 {s_tq(2)}, {s_tq(2)}, vcc")
        a(f"s_lshl_b64 {s_tq(2)}, {s_tq(2)}, 1")
        a(f"s_and_b64 {s_tq(2)}, {s_tq(2)}, {s_tb(2)}")
        a(f"s_or_b64 {s_ma(2)}, {s_ma(2)}, {s_tq(2)}")
        a(f"s_and_b32 {s_k1}, {s_ma}, {s_ma+1}")
        a(f"v_mov_b32 {vs}, {s_ma}")
        a(f"v_mov_b32 {vs+1}, {s_ma+1}")
        a(f"v_mov_b32 {vs+2}, {s_k1}")
        a("s_mov_b64 exec, 1")
        a(f"ds_or_b64 {v_yb}, {vs(2)} offset:16")
        a(f"ds_or_b32 {v_yb}, {vs+2} offset:24")
        a("s_mov_b64 exec, -1")

    a(f"v_mov_b32 {vs}, 0x80000000")
    a("s_mov_b64 exec, 1")
    a(f"ds_or_b32 {v_yb}, {vs} offset:20")
    a("s_waitcnt lgkmcnt(0)")
    publish()
    a(f"s_load_dwordx2 {s_ma(2)}, {WS(2)}, {s_fl} glc")
    stamp(a, "fin")

    p2_common()
    xloads()
    a(f"s_mov_b32 {s_tmp}, {SPIN}")
    a("s_waitcnt lgkmcnt(0)")
    a.label("K_P2_FCHK")
    publish()
    a(f"s_cmp_eq_u32 {s_k1}, 0xfffff")
    a("s_cbranch_scc1 K_P2_FGO")
    a(f"s_cmp_lg_u64 {s_ma(2)}, 0")
    a("s_cbranch_scc1 K_P2_FS")
    a(f"s_sleep {P('FSLEEP0', 8)}")
    a.label("K_P2_FS")
    a(f"s_sleep {P('FSLEEP', 2)}")
    a(f"s_load_dwordx2 {s_ma(2)}, {WS(2)}, {s_fl} glc")
    a(f"s_sub_u32 {s_tmp}, {s_tmp}, 1")
    a("s_waitcnt lgkmcnt(0)")
    a("s_cbranch_scc0 K_P2_FCHK")
    for e in range(3):
        a(f"v_mov_b32 {vs+e}, -1")
    a(f"ds_write_b96 {v_yb}, {vs(3)} offset:16")
    a.label("K_P2_FGO")
    stamp(a, "fgo")
    a.label("K_P2_E")
    a("s_setprio 0")
    a("s_waitcnt vmcnt(0)")
    for l in epi_pre():
        a(l)
    a("s_branch K_P2_E2")
    a.label("K_P2_G0")
    a(f"s_mul_i32 {s_k1}, {s_tg}, 187")
    a(f"s_lshr_b32 {s_k1}, {s_k1}, 11")
    a(f"s_add_u32 {s_tmp}, {s_tg}, 7")
    a(f"s_mul_i32 {s_k2}, {s_tmp}, 187")
    a(f"s_lshr_b32 {s_k2}, {s_k2}, 11")
    a(f"s_sub_u32 {s_k2}, {s_k2}, {s_k1}")
    a(f"s_mov_b32 {s_fl}, {s_mb}")
    a(f"s_mov_b32 {s_tb}, 0x84210")
    a(f"s_mov_b32 {s_tb+1}, {s_tb}")
    vs = bx
    a.label("K_P2_G0L")
    a(f"s_load_dwordx2 {s_ma(2)}, {WS(2)}, {s_fl} glc")
    a(f"ds_read_b32 {v_t0}, {v_yb} offset:20")
    a("s_waitcnt lgkmcnt(0)")
    a(f"v_readfirstlane_b32 {s_t2}, {v_t0}")
    publish()
    a(f"s_bcnt1_i32_b32 {s_tmp}, {s_ma}")
    a(f"s_cmp_ge_u32 {s_tmp}, {P('G0N', 3)}")
    a("s_cbranch_scc1 K_P2_G0R")
    a(f"s_cmp_lt_i32 {s_t2}, 0")
    a("s_cbranch_scc1 K_P2_G0R")
    a(f"s_sleep {P('G0SLEEP', 4)}")
    a(f"s_sub_u32 {s_bud}, {s_bud}, 1")
    a("s_cbranch_scc0 K_P2_G0L")
    a("s_branch K_P2_G0R")
    seg_h1 = len(a.lines)

    V.release(mV3)
    a.label("K_P2_E2")
    av = V.a(8)
    yt = V.a(12)
    ta = V.a(4)
    a("s_waitcnt vmcnt(0) lgkmcnt(0)")
    s_r16 = S.a()
    a(f"s_lshl_b32 {s_r16}, {s_tg}, 4")
    a("s_barrier")
    stamp(a, "p2e")
    a(f"ds_read_b64 {vsel(2)}, {v_yb}")
    a(f"ds_read_b64 {gv[0](2)}, {v_go}")
    a(f"ds_read_b128 {av(4)}, {v_sr}")
    a(f"ds_read_b64 {gv[1](2)}, {v_go} offset:64")
    a(f"ds_read_b128 {(av+4)(4)}, {v_sr} offset:{8*SP}")
    a("s_waitcnt lgkmcnt(4)")
    for k in range(2):
        a(f"v_readfirstlane_b32 {s_sel+k}, {vsel+k}")
    rare = Asm()
    for t in range(2):
        a(f"s_sub_u32 {s_tmp}, {s_sel+t}, {s_r16}")
        a(f"s_cmp_lt_u32 {s_tmp}, 16")
        a(f"s_cbranch_scc1 K_YROW{t}")
        a.label(f"K_NOY{t}")
        r_ = rare
        r_.label(f"K_YROW{t}")
        r_(f"v_and_b32 {v_t0}, 7, {v_lane}")
        r_(f"v_lshlrev_b32 {v_t0}, 5, {v_t0}")
        r_(f"v_add_u32 {v_t0}, {YB + 256 + t*256}, {v_t0}")
        r_(f"ds_read_b128 {yt(4)}, {v_t0}")
        r_(f"ds_read_b128 {(yt+4)(4)}, {v_t0} offset:16")
        r_(f"s_and_b32 {s_t2}, {s_tmp}, 7")
        r_(f"v_cmp_eq_u32 vcc, {s_t2}, {v_l3}")
        r_(f"s_cmp_ge_u32 {s_tmp}, 8")
        r_(f"s_cbranch_scc1 K_YR1_{t}")
        for j in range(2):
            if j:
                r_.label(f"K_YR1_{t}")
            r_("s_waitcnt lgkmcnt(0)")
            for i in range(8):
                tt_ = yt + 8 + (i & 3)
                r_(f"v_add_f32 {tt_}, {bx+8*j+i}, {yt+i}")
                bf16r(r_, tt_, tt_)
                r_(f"v_cndmask_b32 {bx+8*j+i}, {bx+8*j+i}, {tt_}, vcc")
            r_(f"s_branch K_NOY{t}")
    OSC = os.environ.get("OUT_SC", "sc1")
    for j in range(2):
        a(f"s_waitcnt lgkmcnt({3-2*j})")
        for i in range(4):
            b_ = bx + 8 * j + 2 * i
            a(f"v_pk_mul_f32 {b_(2)}, {b_(2)}, {gv[j](2)} op_sel:[0,1] op_sel_hi:[1,1]")
        a(f"s_waitcnt lgkmcnt({2-2*j})")
        for i in range(4):
            r = av + 4 * j + i
            t = ta + 2 * (i & 1)
            a(f"v_lshlrev_b32 {t}, 16, {r}")
            a(f"v_and_b32 {t+1}, 0xffff0000, {r}")
            a(f"v_pk_fma_f32 {t(2)}, {t(2)}, {gv[j](2)}, {(bx+8*j+2*i)(2)} op_sel_hi:[1,0,1]")
            a(f"v_cvt_pk_bf16_f32 {r}, {t}, {t+1}")
        a(f"buffer_store_dwordx4 {(av+4*j)(4)}, {v_xo}, {sOut(4)}, {'0' if j == 0 else s_c10} offen {OSC}")
    a.label("K_END")
    stamp_flush(a, 0, WS, "K_STX")
    a.label("K_EXIT")
    a("s_endpgm")
    L = a.lines
    a.lines = L[:seg_aux0] + L[seg_aux1:seg_f0] + L[seg_f1:seg_h0] + L[seg_h1:] + rare.lines + spin.lines + L[seg_f0:seg_f1] \
        + L[seg_h0:seg_h1]
    a.label("K_CHEND")
    a.lines += L[seg_aux0:seg_aux1]
    a.label("K_CODE_END")
    return V.high, S.high


def kd(name, vg, sg):
    vg = (vg + 7) // 8 * 8
    return """.amdhsa_kernel %s
  .amdhsa_next_free_vgpr %d
  .amdhsa_next_free_sgpr %d
  .amdhsa_accum_offset %d
  .amdhsa_group_segment_fixed_size 0
  .amdhsa_kernarg_size 96
  .amdhsa_user_sgpr_count 2
  .amdhsa_user_sgpr_kernarg_segment_ptr 1
  .amdhsa_system_sgpr_workgroup_id_x 1
.end_amdhsa_kernel""" % (name, vg, 100 if STAMP else max(sg, 16), vg)


ENTRY_OFF = 0x300


def is_instr(l):
    return l.startswith("    ") and not l.strip().startswith(";")


def sizes_of(head, body, tail):
    import subprocess, tempfile, re
    fix = ["K_CH%s%d:" % (c, k) for k in range(4) for c in "MABF"] + ["K_CPL = 32"]
    with tempfile.TemporaryDirectory() as d:
        open(d + "/t.s", "w").write("\n".join(head + body + fix + ["s_endpgm"] + tail) + "\n")
        subprocess.run(["clang", "-x", "assembler", "-target", "amdgcn-amd-amdhsa", "-mcpu=gfx950", "-c",
                        d + "/t.s", "-o", d + "/t.o"], check=True)
        dis = subprocess.run(["llvm-objdump", "-d", d + "/t.o"], capture_output=True, text=True, check=True).stdout
    addrs = [int(m.group(1), 16) for m in re.finditer(r"// ([0-9A-F]{12}):", dis)]
    n = sum(map(is_instr, body))
    assert len(addrs) == n + 1, (len(addrs), n)
    return [addrs[i + 1] - addrs[i] for i in range(n)]


def layout(head, body, tail):
    sz = sizes_of(head, body, tail)
    out, stubs = [], []
    addr, last, k = ENTRY_OFF, ENTRY_OFF, 0
    dead, on, D1, DF = False, False, P("WD1", 512), P("WDF", 0)
    AL = {}
    for it in os.environ.get("ALIGN", "").split(","):
        if it:
            nm_, md, rm = it.split(":")
            AL[nm_] = (int(md), int(rm))
    for idx, l in enumerate(body):
        if l.startswith("K_LOADER:"):
            on = bool(P("WARM", 1))
        if l.startswith("K_CHEND:"):
            on = False
            nm = len(stubs)
        if l.startswith("K_KW2:"):
            on = True
            DF = 960
        if l.startswith("K_P2_EARLY:"):
            DF = P("WDF2", 960)
            a0 = len(stubs)
        if l[:-1] in AL:
            md, rm = AL[l[:-1]]
            while addr % md != rm:
                out.append("    s_nop 0")
                addr += 4
        if not is_instr(l):
            if l.endswith(":") and dead and on and addr - last >= D1 and (addr & 4095) <= 4096 - 64 and not l.startswith(("K_WRET", "K_CONS", "K_YR", "K_NOLT", "K_LOADER", "K_KW2", "K_CODE_END", "K_IT0", "K_DR0")):
                out.append(("stub", len(stubs))); stubs.append(addr); last = addr; addr += 8
            if l.endswith(":"):
                dead = False
            out.append(l)
            continue
        n = sz[k]; k += 1
        if (addr & 4095) + n + 4 > 4096 and P("WPAGE", 1):
            lab = "K_PG%d" % (addr >> 12)
            out.append("    s_branch " + lab)
            out.append(".p2align 12")
            addr = (addr + 4 + 4095) & ~4095
            if on:
                out.append(("stub", len(stubs))); stubs.append(addr); addr += 8
            last = addr
            out.append(lab + ":")
        elif DF and on and addr - last >= DF and (addr & 4095) < 4096 - 64:
            lab = "K_J%x" % addr
            out.append("    s_branch " + lab)
            out.append(("stub", len(stubs))); stubs.append(addr + 4); last = addr + 4; addr += 12
            out.append(lab + ":")
        out.append(l)
        addr += n
        op = l.split()[0]
        dead = op in ("s_branch", "s_endpgm")
    res = []
    ns = nm
    assert len(stubs) - nm >= 2
    for o in out:
        if isinstance(o, tuple):
            j = o[1]
            if j >= nm:
                if j - nm < 2:
                    res.append("K_CHF%d:" % (j - nm))
                res.append("K_STF%d:" % j)
                res.append("    s_branch " + ("K_STF%d" % (j + 2) if j + 2 < len(stubs) else "K_WRET_F"))
                res.append("    s_nop 0")
                continue
            if j < a0:
                for k in range(4):
                    if min(k, a0 - 1) == j:
                        res.append("K_CHM%d:" % k)
                res.append("K_STM%d:" % j)
                res.append("    s_branch " + ("K_STM%d" % (j + 4) if j + 4 < a0 else "K_WRET_M"))
                res.append("    s_nop 0")
                continue
            for c in "AB":
                if 0 <= j - a0 < 4:
                    res.append("K_CH%s%d:" % (c, j - a0))
                res.append("K_ST%s%d:" % (c, j))
                res.append("    s_branch " + ("K_ST%s%d" % (c, j + 4) if j + 4 < ns else "K_WRET_" + c))
        else:
            res.append(o)
    assert ns >= 4 or not P("WARM", 1)
    cpl = -(-(addr - ENTRY_OFF) // 1024)
    assert cpl <= 64
    print("code bytes", addr - ENTRY_OFF, "stubs", [hex(x) for x in stubs])
    return ["K_CPL = %d" % cpl] + res


def main():
    a = Asm()
    for l in HEADER:
        a.raw(l)
    a.raw("; @launch grid=(256,1,1) block=(512,1,1) lds=%d" % LDS_BYTES)
    a.raw('.amdgcn_target "amdgcn-amd-amdhsa--gfx950"')
    a.raw(".text")
    head = a.lines
    a.lines = []
    v1, s1 = gen(a)
    body = a.lines
    tail = ['.section .rodata,"a"', ".p2align 6", kd(KNAME, v1, s1)]
    a.lines = head + layout(head, body, tail) + tail
    out = sys.argv[1] if len(sys.argv) > 1 else os.path.join(os.path.dirname(os.path.abspath(__file__)), "..", NAME + ".s")
    open(out, "w").write(a.text())
    print("wrote", out, "v%d s%d" % (v1, s1))


if __name__ == "__main__":
    main()
```

```python
from common import *

KNAME = NAME + "_kernel"
SC_POLL = os.environ.get("SC_POLL", "sc1").replace("_", " ")
SC_FLAG = os.environ.get("SC_FLAG", "sc1").replace("_", " ")
SC_ST = os.environ.get("SC_ST", "sc1").replace("_", " ")
SC_LD = os.environ.get("SC_LD", "sc1").replace("_", " ")
FNT = os.environ.get("FNT", "")
FNTD = os.environ.get("FNTD", FNT)
FL_OFF = 0x80000
KMB = 160 * 512
ZBYTES = KMB + 1024
ZKB = 10
HUB = 63
NZ = 8
GW0 = 24
MT = 12
MH = 6
RROWS = (MT - 1) * 16
XREG = MT * 2048
SLOT = XREG + 16384
LA = 2
NS = 3
NCH = 10
WO_L = 0
XB = 3 * SLOT
TV = XB + 3072
TVD = TV + 2 * 1664
TS = TVD + 2048
STG = 140288
assert TS + 3072 + 256 <= STG
SP = 144
YB = STG + 8 * 16 * SP
LDS_BYTES = 4 * SLOT
APZ = P("APZ", 0)
NZM = NZ + (32 if APZ else 0)
SPIN = 0x20000
SENT = P("SENT", 1)
YCNT = KMB + 512


def gen(a):
    a.raw(".p2align 12")
    a.raw(".p2align 8")
    a.raw(f".globl {KNAME}")
    a.raw(f".type {KNAME},@function")
    a.label(KNAME)
    S = RA("s", 3, 82 if STAMP else 100)
    V = RA("v", 1, 256)
    s_tmp = S.a()
    s_pws = S.a(4)
    s_pwo = S.a(2)
    s_po = S.a(2)
    sX, sW, sO, sWO = S.many(4, 4)
    s_xcd, s_i, s_w, s_rt, s_hg, s_t2, s_n = S.many(7)
    s_half = S.a()
    s_fb = S.a()
    s_fl = S.a()
    s_pc = S.a(2)
    v_lane, v_t0, v_t1, v_t2, v_t3, v_pf, v_smp = V.many(7)
    DBG, WS = s_pws, s_pws + 2

    s_rt2, s_ct = S.many(2)
    s_mb = S.a()
    mS, mV = S.mark(), V.mark()
    s_j, s_pm, s_pg = S.a(), S.a(8), S.a(2)
    S.release(mS)
    s_lw, s_xb, s_m0x, s_m0w, s_sox, s_sow, s_kc, s_wb, s_xk, s_so1 = S.many(10)
    VL = RA("v", 216, 240)
    v_xo = VL.many(2)
    v_wo = VL.many(2)
    ORDER = [("w", 0), ("x", 0), ("w", 1), ("x", 1), ("x", 2), ("w", 2), ("x", 3), ("w", 3), ("x", 4), ("x", 5)]
    if os.environ.get("ORD"):
        cnt = {"w": 0, "x": 0}
        ORDER = []
        for ch in os.environ["ORD"]:
            ORDER.append((ch, cnt[ch]))
            cnt[ch] += 1
        assert cnt == {"w": 4, "x": 6}
    HS = P("HSPLIT", 6)

    def dma_head():
        a(f"s_lshl_b32 {s_sox}, {s_kc}, 7")
        a(f"s_mul_i32 {s_sow}, {s_kc}, {64*3840}")
        a(f"s_add_u32 {s_xk}, {s_xb}, {s_sox}")
        a(f"s_add_u32 {s_sow}, {s_sow}, {s_wb}")
        a(f"s_add_u32 {s_kc}, {s_kc}, 1")
        a(f"s_cmp_eq_u32 {s_kc}, 10")
        a(f"s_cselect_b32 {s_kc}, 0, {s_kc}")

    def dma_part(c, lo, hi, head=True):
        if c >= NCH:
            return
        sl = ((c + 2) % NS) * SLOT
        if lo == 0 and head:
            dma_head()
        for kind, j in ORDER[lo:hi]:
            if kind == "w":
                a(f"s_add_u32 m0, {s_m0w}, {sl + j*1024}")
                a(f"s_add_u32 {s_so1}, {s_sow}, {j*4*3840}")
                a(f"buffer_load_dwordx4 {v_wo[j >> 1]}, {sW(4)}, {s_so1} offen lds")
            else:
                a(f"s_add_u32 m0, {s_m0x}, {sl + j*1024}")
                if j == 0:
                    a(f"s_max_i32 {s_so1}, {s_xk}, {s_sox}")
                else:
                    a(f"s_add_u32 {s_so1}, {s_xk}, {j*10240}")
                    if j == 1:
                        a(f"s_max_i32 {s_so1}, {s_so1}, {s_sox}")
                a(f"buffer_load_dwordx4 {v_xo[j & 1]}, {sX(4)}, {s_so1} offen lds")

    def karg_rest():
        a(f"s_load_dwordx4 {s_pws(4)}, s[0:1], 80")
        a(f"s_load_dwordx2 {s_pwo(2)}, s[0:1], 16")
        a(f"s_load_dwordx2 {s_po(2)}, s[0:1], 72")

    def common_ids():
        a(f"v_and_b32 {v_lane}, 63, v0")
        a(f"v_mov_b32 {v_smp}, 0")
        a(f"s_and_b32 {s_xcd}, s2, 7")
        a(f"s_lshr_b32 {s_i}, s2, 3")
        a(f"s_xor_b32 {s_w}, {s_w}, 4")
        a(f"s_lshr_b32 {s_n}, {s_i}, 3")
        a(f"s_lshl_b32 {s_n}, {s_n}, 2")
        a(f"s_and_b32 {s_tmp}, {s_i}, 3")
        a(f"s_add_u32 {s_n}, {s_n}, {s_tmp}")
        a(f"s_add_u32 {s_n}, {s_n}, 4")
        a(f"s_bitcmp1_b32 {s_i}, 2")
        a(f"s_cselect_b32 {s_n}, -1, {s_n}")
        a(f"s_cmp_lt_u32 {s_i}, 8")
        a(f"s_cselect_b32 {s_n}, {s_i}, {s_n}")
        a(f"s_lshl_b32 {s_rt2}, {s_xcd}, 1")
        a(f"s_cmp_ge_u32 {s_n}, 10")
        a(f"s_addc_u32 {s_rt2}, {s_rt2}, 0")
        a(f"s_sub_u32 {s_ct}, {s_n}, 10")
        a(f"s_cmp_ge_u32 {s_n}, 10")
        a(f"s_cselect_b32 {s_ct}, {s_ct}, {s_n}")
        a(f"s_mul_i32 {s_mb}, {s_xcd}, 20")
        a(f"s_add_u32 {s_mb}, {s_mb}, {s_n}")
        a(f"s_and_b32 {s_mb}, {s_mb}, 255")
        a(f"s_lshl_b32 {s_mb}, {s_mb}, 9")
        a(f"s_add_u32 {s_mb}, {s_mb}, {FL_OFF}")

    s_pos = s_half

    def main_ids():
        a(f"s_lshr_b32 {s_rt}, {s_xcd}, 1")
        a(f"s_mul_i32 {s_rt}, {s_rt}, 3")
        a(f"s_lshr_b32 {s_tmp}, {s_i}, 3")
        a(f"s_add_u32 {s_rt}, {s_rt}, {s_tmp}")
        a(f"s_sub_u32 {s_rt}, {s_rt}, 1")
        a(f"s_and_b32 {s_hg}, {s_xcd}, 1")
        a(f"s_lshl_b32 {s_hg}, {s_hg}, 3")
        a(f"s_and_b32 {s_tmp}, {s_i}, 7")
        a(f"s_lshl_b32 {s_tmp}, {s_tmp}, 2")
        a(f"s_lshr_b32 {s_tmp}, 0x64317520, {s_tmp}")
        a(f"s_and_b32 {s_tmp}, {s_tmp}, 7")
        a(f"s_add_u32 {s_hg}, {s_hg}, {s_tmp}")
        a(f"s_and_b32 {s_pos}, {s_i}, 3")
        a(f"s_and_b32 {s_tmp}, {s_i}, 4")
        a(f"s_lshl_b32 {s_tmp}, {s_tmp}, 1")
        a(f"s_add_u32 {s_pos}, {s_pos}, {s_tmp}")
        a(f"s_and_b32 {s_tmp}, {s_xcd}, 1")
        a(f"s_lshl_b32 {s_tmp}, {s_tmp}, 2")
        a(f"s_add_u32 {s_pos}, {s_pos}, {s_tmp}")

    a("s_cmp_ge_u32 s2, 256")
    a("s_cbranch_scc1 K_EXIT")
    a(f"s_load_dwordx2 {sX(2)}, s[0:1], 0")
    a(f"s_load_dwordx2 {sW(2)}, s[0:1], 8")
    karg_rest()
    a(f"v_readfirstlane_b32 {s_w}, v0")
    stamp_init(a)
    a(f"s_mov_b32 {sX+2}, 0x{X_BYTES:x}")
    a(f"s_mov_b32 {sX+3}, 0x20000")
    a(f"s_lshr_b32 {s_w}, {s_w}, 6")
    a("s_cmp_ge_u32 s2, 64")
    a("s_cbranch_scc1 K_MAIN")
    a(f"s_load_dwordx8 {s_pm(8)}, s[0:1], 32")
    a(f"s_load_dwordx2 {s_pg(2)}, s[0:1], 64")
    a(f"s_getpc_b64 {s_pc(2)}")
    a.label("K_PC")
    a("s_lshr_b32 s3, s2, 3")
    a("s_mul_i32 s3, s3, K_CPL")
    a(f"v_add_u32 {v_t0}, s3, v0")
    a(f"v_lshlrev_b32 {v_t0}, 7, {v_t0}")
    a(f"v_min_u32 {v_t0}, K_CODE_END-K_PC-4, {v_t0}")
    a(f"v_cmp_gt_u32 vcc, K_CPL, v0")
    a("s_and_saveexec_b64 %s, vcc" % sO(2))
    a("s_cbranch_execz K_NOPF")
    a(f"global_load_dword {v_pf}, {v_t0}, {s_pc(2)}")
    a.label("K_NOPF")
    a("s_mov_b64 exec, -1")
    a(f"s_cmp_lg_u32 {s_w}, 4")
    a("s_cbranch_scc1 K_AUX")
    a(f"s_min_u32 s3, s2, 8")
    a(f"s_mul_i32 s3, s3, {ZKB*1024}")
    a(f"s_add_u32 {s_t2}, s3, {ZKB*1024}")
    a(f"s_cmp_lt_u32 s2, 8")
    a("s_cbranch_scc1 K_ZS")
    a(f"s_cmp_lg_u32 s2, {HUB}")
    a("s_cbranch_scc1 K_AUX")
    a(f"s_mov_b32 {s_t2}, 0")
    a.label("K_ZS")
    a(f"v_lshlrev_b32 {v_t0}, 4, v0")
    for e in range(4):
        a(f"v_mov_b32 v{8+e}, 0")
    a("s_waitcnt lgkmcnt(0)")
    srd(a, sO, WS, ZBYTES + 4096, FL_OFF - 4096)
    assert 8 * ZKB * 1024 == KMB
    a.label("K_ZL")
    a(f"buffer_store_dwordx4 v[8:11], {v_t0}, {sO(4)}, s3 offen {SC_FLAG}")
    a("s_add_u32 s3, s3, 1024")
    a(f"s_cmp_lt_u32 s3, {s_t2}")
    a("s_cbranch_scc1 K_ZL")
    a("s_branch K_AUX")
    a.label("K_MAIN")
    a(f"s_cmp_ge_u32 {s_w}, 4")
    a("s_cbranch_scc1 K_CONS")
    stamp(a, "role")
    PERM_ = [0, 2, 5, 7, 1, 3, 4, 6]
    tab = lambda L: sum(v << (4 * k) for k, v in enumerate(L))
    a(f"s_bfe_u32 {s_tmp}, s2, 0x20001")
    a(f"s_mul_i32 {s_xb}, {s_tmp}, {3*RROWS*1280}")
    a(f"s_lshr_b32 {s_t2}, s2, 6")
    a(f"s_mul_i32 {s_tmp}, {s_t2}, {RROWS*1280}")
    a(f"s_add_u32 {s_xb}, {s_xb}, {s_tmp}")
    a(f"s_mul_i32 {s_tmp}, {s_w}, {48*1280}")
    a(f"s_add_u32 {s_xb}, {s_xb}, {s_tmp}")
    a(f"s_sub_u32 {s_xb}, {s_xb}, {(RROWS+16)*1280}")
    a(f"v_bfe_u32 {v_t1}, v0, 4, 2")
    a(f"s_lshr_b32 {s_tmp}, s2, 1")
    a(f"s_and_b32 {s_tmp}, {s_tmp}, 28")
    a(f"s_or_b32 {s_tmp}, {s_tmp}, 0x40000")
    a(f"v_lshlrev_b32 {v_t0}, 1, {v_t1}")
    a(f"v_sub_u32 {v_t0}, v0, {v_t0}")
    KT = eval(os.environ.get("KT", "[[0,2,1,2,0,5,0,5],[5,7,2,2,5,5,7,5],[0,6,5,7,7,7,3,5]]"))
    if len(KT) == 3:
        KT = KT + KT
    kt = [tab([row[p] for p in PERM_]) for row in KT]
    a(f"s_and_b32 {s_wb}, s2, 0xc1")
    a(f"s_mov_b32 {s_kc}, 0x{kt[0]:x}")
    for k in range(1, 6):
        a(f"s_cmpk_eq_u32 {s_wb}, {(k % 3 + 1) * 64 + k // 3}")
        a(f"s_cselect_b32 {s_kc}, 0x{kt[k]:x}, {s_kc}")
    a(f"s_bfe_u32 {s_kc}, {s_kc}, {s_tmp}")
    a(f"s_bfe_u32 {s_hg}, 0x{tab(PERM_):x}, {s_tmp}")
    a(f"v_and_b32 {v_t0}, 15, {v_t0}")
    a(f"v_mul_u32_u24 {v_t3}, 3840, {v_t1}")
    a(f"s_lshl_b32 {s_tmp}, s2, 2")
    XTAB = tab(eval(os.environ.get('XT', '[5,3,3,2,3,0,4,4]')))
    a(f"s_lshr_b32 {s_tmp}, 0x{XTAB:x}, {s_tmp}")
    a(f"s_and_b32 {s_tmp}, {s_tmp}, 15")
    a(f"s_add_u32 {s_kc}, {s_kc}, {s_tmp}")
    a(f"s_mov_b32 {s_t2}, 0x00a55a")
    a(f"v_subrev_u32 {v_t3}, 160, {v_t3}")
    a(f"s_sub_u32 {s_tmp}, {s_kc}, 10")
    a(f"s_cselect_b32 {s_kc}, {s_kc}, {s_tmp}")
    for jj in range(2):
        if jj:
            a(f"v_xor_b32 {v_t0}, 8, {v_t0}")
        a(f"v_mul_u32_u24 {v_t2}, 52, {v_t0}")
        a(f"v_lshrrev_b32 {v_t2}, 5, {v_t2}")
        a(f"v_and_b32 {v_t2}, 24, {v_t2}")
        a(f"v_bfe_u32 {v_t2}, {s_t2}, {v_t2}, 8")
        a(f"v_add_u32 {v_t2}, {v_t2}, {v_t0}")
        a(f"v_lshl_add_u32 {v_wo[jj]}, {v_t2}, 4, {v_t3}")
        a(f"v_add_u32 {v_t2}, 1, {v_t0}")
        a(f"v_lshrrev_b32 {v_t2}, 4, {v_t2}")
        a(f"v_lshl_add_u32 {v_wo[jj]}, {v_t2}, 28, {v_wo[jj]}")
    a("s_bitcmp1_b32 s2, 0")
    a(f"s_cselect_b32 {s_tmp}, 8, 0")
    a(f"s_add_u32 {s_hg}, {s_hg}, {s_tmp}")
    a(f"s_mul_i32 {s_wb}, {s_hg}, 80")
    a(f"s_mul_i32 {s_tmp}, {s_w}, {16*3840}")
    a(f"s_add_u32 {s_wb}, {s_wb}, {s_tmp}")
    a(f"s_lshl_b32 {s_m0w}, {s_w}, 12")
    a(f"s_add_u32 {s_m0w}, {s_m0w}, {XREG}")
    a(f"s_mul_i32 {s_m0x}, {s_w}, 6144")
    a(f"s_mov_b32 {sW+2}, 0x{640*3840:x}")
    a(f"s_mov_b32 {sW+3}, 0x20000")
    a(f"v_xor_b32 {v_t1}, {v_t1}, v0")
    a(f"v_and_b32 {v_t1}, 7, {v_t1}")
    a(f"v_bfe_u32 {v_t0}, v0, 3, 3")
    a(f"v_mul_u32_u24 {v_t0}, 1280, {v_t0}")
    a(f"v_lshl_add_u32 {v_xo[0]}, {v_t1}, 4, {v_t0}")
    a(f"v_xor_b32 {v_xo[1]}, 64, {v_xo[0]}")
    dma_head()
    stamp(a, "setup")
    a("s_waitcnt lgkmcnt(0)")
    stamp(a, "karg")
    if P("FIRSTP", 0):
        dma_part(0, 0, 2, head=False)
        a("s_waitcnt vmcnt(1)")
        stamp(a, "f1")
        a("s_waitcnt vmcnt(0)")
        stamp(a, "f2")
        dma_part(0, 2, 4, head=False)
        a("s_waitcnt vmcnt(0)")
        stamp(a, "f3")
        dma_part(0, 4, 10, head=False)
    else:
        dma_part(0, 0, 10, head=False)
    dma_part(1, 0, HS)
    stamp(a, "issued")
    a(f"s_mov_b32 {s_lw}, {s_w}")
    common_ids()
    main_ids()

    def lds_zero():
        a(f"v_mov_b32 {v_t1}, {YB + 16}")
        for k in range(0, 12, 2):
            a(f"ds_write2_b32 {v_t1}, {v_smp}, {v_smp} offset0:{k} offset1:{k+1}")

    a.label("K_LOADER")

    def zpoll(k, offs, val, goff=None):
        for off in offs:
            a(f"s_load_dword {s_t2}, {DBG(2)}, {off}")
            a("s_waitcnt lgkmcnt(0)")
            a(f"s_cmp_ge_u32 {s_t2}, {val}")
            a(f"s_cbranch_scc1 K_ZO{k}")
            a(f"s_sleep {P('ZSLEEP', 8)}")
        a(f"s_mov_b32 {s_tmp}, {SPIN // 8}")
        a.label(f"K_ZB{k}")
        a(f"v_mov_b32 {v_t2}, {offs[0] if goff is None else goff}")
        a(f"global_load_dword {v_t2}, {v_t2}, {DBG(2)} {SC_POLL}")
        a("s_waitcnt vmcnt(0)")
        a(f"v_readfirstlane_b32 {s_t2}, {v_t2}")
        a(f"s_cmp_ge_u32 {s_t2}, {val}")
        a(f"s_cbranch_scc1 K_ZO{k}")
        a("s_sleep 8")
        a(f"s_sub_u32 {s_tmp}, {s_tmp}, 1")
        a(f"s_cbranch_scc0 K_ZB{k}")
        a.label(f"K_ZO{k}")

    def mb_sample(vaddr):
        a(f"v_lshl_add_u32 {vaddr}, {v_lane}, 2, {s_mb}")
        a(f"global_load_dword {v_smp}, {vaddr}, {WS(2)} offset:256 {SC_POLL}")
        a(f"v_and_b32 {vaddr}, 0xfffffe04, {vaddr}")
        a(f"global_load_dword {v_pf}, {vaddr}, {WS(2)} offset:128 {SC_POLL}")

    def wo_voff(v_wo):
        a(f"v_lshrrev_b32 {v_t0}, 3, {v_lane}")
        a(f"v_mul_u32_u24 {v_t0}, 1280, {v_t0}")
        a(f"v_lshrrev_b32 {v_t1}, 2, {v_lane}")
        a(f"v_and_b32 {v_t1}, 4, {v_t1}")
        a(f"v_and_b32 {v_t2}, 7, {v_lane}")
        a(f"v_xor_b32 {v_t1}, {v_t1}, {v_t2}")
        a(f"v_lshl_add_u32 {v_t0}, {v_t1}, 4, {v_t0}")
        a(f"s_lshl_b32 {s_t2}, {s_ct}, 7")
        a(f"v_add_u32 {v_wo}, {s_t2}, {v_t0}")
        a(f"v_lshrrev_b32 {v_t3}, 5, {v_lane}")
        a(f"v_mul_u32_u24 {v_t3}, {16*1280}, {v_t3}")
        a(f"v_add_u32 {v_t3}, {v_t3}, {v_wo}")

    def wo_blocks(v_wo, s_k, late, s_src, s_dst, s_o, thr=0, hook=None):
        a(f"s_lshl_b32 {s_src}, {s_k}, 2")
        a(f"s_lshr_b32 {s_src}, 0x{0x6431 if late else 0x7520:x}, {s_src}")
        a(f"s_and_b32 {s_src}, {s_src}, 7")
        a(f"s_mul_i32 {s_src}, {s_src}, 51200")
        a(f"s_lshl_b32 {s_dst}, {s_k}, 12")

        def one(v, so, m):
            a(f"s_add_u32 {s_o}, {s_src}, {so}")
            a(f"s_add_u32 m0, {s_dst}, {WO_L + late*40960 + m}")
            a(f"s_waitcnt vmcnt({thr-1})" if thr else "s_nop 0")
            a(f"buffer_load_dwordx4 {v}, {sWO(4)}, {s_o} offen lds")

        for b in range(2):
            for r in range(4):
                one(v_wo, b*8*51200 + (0, 8, 20, 28)[r]*1280, b*20480 + r*1024)
                if hook and 4*b + r == thr - 1:
                    hook()
        a(f"s_lshl_b32 {s_dst}, {s_k}, 10")
        for b in range(2):
            one(v_t3, b*8*51200 + 16*1280, b*20480 + 16384)

    v_row, v_g, v_r, v_c = V.many(4)
    s_q = S.a()

    def lane_consts():
        a(f"v_and_b32 {v_row}, 15, {v_lane}")
        a(f"v_lshrrev_b32 {v_g}, 4, {v_lane}")
        a(f"v_bfe_u32 {v_r}, {v_lane}, 2, 2")
        a(f"v_and_b32 {v_c}, 3, {v_lane}")

    def o_addr(d, vt, sc_):
        a(f"v_lshrrev_b32 {v_t0}, 2, {vt}")
        a(f"v_mul_u32_u24 {v_t0}, {80 - 4}, {v_t0}")
        a(f"v_add_lshl_u32 {v_t0}, {v_t0}, {vt}, 10")
        a(f"v_lshl_add_u32 {v_t0}, {v_row}, 4, {v_t0}")
        a(f"v_add_u32 {d}, {sc_}, {v_t0}")

    def o_consts(s_main, s_tail):
        srd(a, sO, WS, O_BYTES, O_OFF)
        a(f"s_lshr_b32 {s_q}, {s_pos}, 2")
        a(f"s_add_u32 {s_main}, {s_q}, {s_pos}")
        a(f"s_lshl_b32 {s_main}, {s_main}, 12")
        a(f"s_mul_i32 {s_tail}, {s_q}, {5*4096 - 1024}")
        a(f"s_lshl_b32 {s_q}, {s_pos}, 8")
        a(f"s_add_u32 {s_tail}, {s_tail}, {s_q}")
        a(f"s_add_u32 {s_tail}, {s_tail}, {4*4096}")
        a(f"s_mul_i32 {s_q}, {s_rt}, {MT-1}")

    mV2 = V.mark()
    mS2 = S.mark()

    v_os, v_ot, v_wv = VL.many(3)
    pz = VL.a(4)
    s_z = S.a()
    s_lhi = S.next
    srd(a, sWO, s_pwo, 640 * 1280)
    lane_consts()
    o_consts(s_tmp, s_t2)
    a(f"s_add_u32 {s_z}, {s_q}, {s_lw}")
    a(f"v_mov_b32 {v_t1}, {s_z}")
    o_addr(v_os, v_t1, s_tmp)
    a(f"v_lshl_add_u32 {v_os}, {v_g}, 8, {v_os}")
    a(f"s_lshl_b32 {s_tmp}, {s_lw}, 2")
    a(f"v_add_u32 {v_t2}, {s_tmp}, {v_g}")
    a(f"v_add_u32 {v_t1}, {s_q}, {v_t2}")
    o_addr(v_ot, v_t1, s_t2)
    a(f"v_mov_b32 {v_t3}, 0x10000000")
    a(f"v_cmp_gt_u32 vcc, {MT-1}, {v_t2}")
    for e in range(4):
        a(f"v_mov_b32 {pz+e}, -1")
    a(f"v_cndmask_b32 {v_ot}, {v_t3}, {v_ot}, vcc")
    wo_voff(v_wv)
    a(f"s_mov_b32 {s_w}, {s_lw}")

    PZI = (-9 if P("CPZ", -2) > -2 or APZ else P("PZI", 9))
    def poison():
        a(f"s_mov_b32 {s_t2}, 81920")
        a(f"s_cmp_eq_u32 {s_lw}, 3")
        a(f"s_cselect_b32 {s_tmp}, 0, {2*81920}")
        a(f"buffer_store_dwordx4 {pz(4)}, {v_os}, {sO(4)}, 0 offen {SC_ST}")
        a(f"buffer_store_dwordx4 {pz(4)}, {v_os}, {sO(4)}, {s_t2} offen {SC_ST}")
        a(f"buffer_store_dwordx4 {pz(4)}, {v_os}, {sO(4)}, {s_tmp} offen {SC_ST}")
        a(f"buffer_store_dwordx4 {pz(4)}, {v_ot}, {sO(4)}, 0 offen {SC_ST}")

    def pz_done(n):
        a(f"v_mov_b32 {v_t0}, {YB}")
        a(f"v_mov_b32 {v_t1}, 1")
        a(f"s_waitcnt vmcnt({n})")
        stamp(a, "pzdone")
        a("s_mov_b64 exec, 1")
        a(f"ds_add_u32 {v_t0}, {v_t1} offset:28")
        a(f"ds_add_u32 {v_t0}, {v_t1} offset:32")
        a("s_mov_b64 exec, -1")

    for c in range(NCH):
        outst = (HS if c + 1 < NCH else 0) + (4 if c == PZI + 1 else 0)
        if c == NCH - 1:
            a("s_waitcnt lgkmcnt(0)")
            a(f"s_cmp_ge_u32 {s_z}, {NZM}")
            a("s_cbranch_scc1 K_ZO0")
            zpoll(0, [], NZM, 192)
            a(f"s_cmp_eq_u32 {s_n}, -1")
            a("s_cbranch_scc1 K_NOLT")
            if P("WOE", 1):
                wo_blocks(v_wv, s_lw, 0, s_sox, s_sow, s_tmp)
            a(f"s_waitcnt vmcnt({10 * P('WOE', 1) + outst})")
            a("s_barrier")
            stamp(a, "c9")
            if PZI == 9:
                poison()
            pz_done(0)
            if not P("WOE", 1):
                wo_blocks(v_wv, s_lw, 0, s_sox, s_sow, s_tmp)
            if P("WLM", 0) == 0:
                if P("WLD", 0):
                    a(f"s_sleep {P('WLD', 0)}")
                wo_blocks(v_wv, s_lw, 1, s_sox, s_sow, s_tmp)
            a("s_branch K_P2_GM")
            a.label("K_NOLT")
        a(f"s_waitcnt vmcnt({outst})")
        stamp(a, f"w{c}")
        a("s_barrier")
        stamp(a, f"c{c}")
        if c == NCH - 2:
            a(f"s_load_dword {s_z}, {DBG(2)}, 192")
        dma_part(c + 1, HS, 10)
        dma_part(c + 2, 0, HS)
        if c == PZI:
            poison()
        a.raw(f"@@G{c}")
    pz_done(0)
    a("s_branch K_END")

    V.release(mV)
    v_row, v_g, v_r, v_c = V.many(4)
    S.release(mS2)
    a.label("K_CONS")
    DEFER = P("DEFER", 1)
    if DEFER:
        a(f"v_and_b32 {v_lane}, 63, v0")
    else:
        common_ids()
        lds_zero()
        main_ids()
    lane_consts()
    s_mh, s_nh, s_tg = S.many(3)
    s_c, s_sc = S.many(2, 2)
    v_b0, v_b1, v_bp, v_ps = V.many(4, 4)
    v_o = V.many(3)
    v_ot, v_tw, v_tr, v_xb, v_sw1, v_sr1, v_fo, v_cn = V.many(8)
    v_neg = v_fo
    a(f"s_bfe_u32 {s_mh}, {s_w}, 0x10001")
    a(f"s_and_b32 {s_nh}, {s_w}, 1")
    v_aa = [V.many(2) for _ in range(2)]
    v_ba = [V.many(4) for _ in range(2)]
    a(f"v_lshrrev_b32 {v_t0}, 1, {v_row}")
    a(f"v_xor_b32 {v_t0}, {v_t0}, {v_g}")
    a(f"v_lshlrev_b32 {v_t0}, 4, {v_t0}")
    a(f"v_lshl_add_u32 {v_t0}, {v_row}, 7, {v_t0}")
    a(f"s_mul_i32 {s_tmp}, {s_mh}, {MH*2048}")
    a(f"v_add_u32 {v_aa[0][0]}, {s_tmp}, {v_t0}")
    a(f"v_xor_b32 {v_aa[0][1]}, 64, {v_aa[0][0]}")
    for ks in range(2):
        a(f"v_add_u32 {v_aa[1][ks]}, {2*SLOT}, {v_aa[0][ks]}")
    a(f"v_and_b32 {v_t0}, 1, {v_g}")
    a(f"v_lshl_or_b32 {v_t0}, {v_t0}, 2, {v_r}")
    a(f"s_mul_i32 {s_tmp}, {s_nh}, 40")
    a(f"v_lshl_add_u32 {v_t0}, {v_t0}, 5, {s_tmp}")
    a(f"v_lshl_add_u32 {v_t1}, {v_g}, 3, {v_r}")
    a(f"v_lshlrev_b32 {v_t1}, 8, {v_t1}")
    a(f"v_add_u32 {v_t1}, {XREG}, {v_t1}")
    a(f"v_lshl_add_u32 {v_t3}, {v_c}, 3, {v_t0}")
    a(f"s_mul_i32 {s_t2}, {s_nh}, {48 << 24}")
    a(f"s_sub_u32 {s_t2}, 0x{(248 << 24) | (112 << 16) | (192 << 8) | 32:x}, {s_t2}")
    for tt in range(4):
        if tt < 3:
            a(f"v_add_u32 {v_t2}, {(0, 160, 80)[tt]}, {v_t3}")
        else:
            a(f"v_lshlrev_b32 {v_t2}, 3, {v_c}")
            a(f"v_bfe_u32 {v_t2}, {s_t2}, {v_t2}, 8")
            a(f"v_add_u32 {v_t2}, {v_t2}, {v_t0}")
        a(f"v_and_b32 {v_t2}, 255, {v_t2}")
        a(f"v_add_u32 {v_ba[0][tt]}, {v_t2}, {v_t1}")
        a(f"v_add_u32 {v_ba[1][tt]}, {2*SLOT}, {v_ba[0][tt]}")
    cuts = [len(a.lines)]
    if DEFER:
        common_ids()
        lds_zero()
        main_ids()
        cuts.append(len(a.lines))
    a(f"s_or_b32 {s_tg}, {s_rt}, {s_mh}")
    a(f"v_mov_b32 {v_neg}, 0x{NEG:x}")
    a(f"v_lshlrev_b32 {v_t0}, 2, {v_g}")
    a(f"v_sub_u32 {v_t0}, {v_row}, {v_t0}")
    a(f"s_cmp_eq_u32 {s_tg}, 0")
    a(f"s_cselect_b32 {s_tmp}, 0x{NEG:x}, 0")
    for r in range(4):
        a(f"v_subrev_u32 {v_t1}, {r}, {v_t0}")
        a(f"v_and_b32 {v_t2}, 0x80000001, {v_t1}")
        a(f"v_cmp_eq_u32 vcc, 0, {v_t2}")
        a("s_nop 1")
        a(f"v_cndmask_b32 {v_b1+r}, {v_neg}, 0, vcc")
        a(f"v_cmp_eq_u32 vcc, 0x80000000, {v_t2}")
        a("s_nop 1")
        a(f"v_cndmask_b32 {v_b0+r}, {v_neg}, 0, vcc")
        a(f"v_add_f32 {v_bp+r}, {s_tmp}, {v_b0+r}")
    for p, vb in enumerate((v_b0, v_b1)):
        for k in range(2):
            lo = 0x0c0c0000 | ((2 * k + 1) << 8) | (2 * k)
            hi = 0x00000c0c | ((2 * k + 1) << 24) | ((2 * k) << 16)
            a(f"v_mov_b32 {v_t1}, 0x0c0c0c0c")
            a(f"v_mov_b32 {v_t2}, 0x{lo:x}")
            a(f"v_cmp_eq_u32 vcc, 0, {vb+2*k}")
            a(f"v_mov_b32 {v_t3}, 0x{hi:x}")
            a("s_nop 0")
            a(f"v_cndmask_b32 {v_t1}, {v_t1}, {v_t2}, vcc")
            a(f"v_cmp_eq_u32 vcc, 0, {vb+2*k+1}")
            a("s_nop 1")
            a(f"v_cndmask_b32 {v_ps+2*p+k}, {v_t1}, {v_t3}, vcc")
    cuts.append(len(a.lines))
    a(f"s_mul_i32 {s_tmp}, {s_nh}, 1664")
    a(f"s_mul_i32 {s_t2}, {s_mh}, {6*128}")
    a(f"s_add_u32 {s_tmp}, {s_tmp}, {s_t2}")
    a(f"s_add_u32 {s_tmp}, {s_tmp}, {TV}")
    a(f"v_lshl_add_u32 {v_t0}, {v_g}, 2, {v_r}")
    a(f"v_lshl_add_u32 {v_tr}, {v_t0}, 3, {s_tmp}")
    a(f"v_lshl_add_u32 {v_t0}, {v_row}, 3, {s_tmp}")
    a(f"v_lshlrev_b32 {v_t1}, 3, {v_lane}")
    a(f"v_add_u32 {v_t1}, {TVD}, {v_t1}")
    a(f"v_cmp_eq_u32 vcc, 2, {v_g}")
    a(f"s_mul_i32 {s_tmp}, {s_nh}, 1536")
    a(f"s_add_u32 {s_tmp}, {s_tmp}, {XB}")
    a(f"v_cndmask_b32 {v_tw}, {v_t1}, {v_t0}, vcc")
    a(f"v_lshl_add_u32 {v_xb}, {v_lane}, 3, {s_tmp}")
    a(f"s_mul_i32 {s_tmp}, {s_mh}, {6*256}")
    a(f"s_add_u32 {s_tmp}, {s_tmp}, {TS}")
    a(f"s_lshl3_add_u32 {s_t2}, {s_nh}, {s_tmp}")
    a(f"v_lshl_add_u32 {v_sw1}, {v_row}, 4, {s_t2}")
    a(f"v_cmp_eq_u32 vcc, 0, {v_g}")
    a("s_nop 1")
    a(f"v_cndmask_b32 {v_sw1}, {v_t1}, {v_sw1}, vcc")
    a(f"s_mul_i32 {s_t2}, {s_nh}, {3*256}")
    a(f"s_add_u32 {s_tmp}, {s_tmp}, {s_t2}")
    a(f"v_lshl_add_u32 {v_sr1}, {v_lane}, 4, {s_tmp}")
    a(f"v_mov_b32 {v_cn}, {YB}")
    a("s_waitcnt lgkmcnt(0)")
    o_consts(s_c, s_c + 1)
    a(f"s_mul_i32 {s_tmp}, {s_mh}, 6")
    a(f"s_add_u32 {s_q}, {s_q}, {s_tmp}")
    a(f"s_add_u32 {s_q}, {s_q}, 3")
    a(f"s_lshl_b32 {s_tmp}, {s_nh}, 9")
    a(f"s_add_u32 {s_c}, {s_c}, {s_tmp}")
    a(f"v_and_b32 {v_t2}, 1, {v_g}")
    a(f"v_lshrrev_b32 {v_t3}, 1, {v_g}")
    a(f"v_add_u32 {v_t1}, {s_q}, {v_t2}")
    o_addr(v_o[2], v_t1, s_c)
    a(f"v_lshl_add_u32 {v_o[2]}, {v_t3}, 8, {v_o[2]}")
    a(f"v_subrev_u32 {v_t1}, 2, {v_t1}")
    o_addr(v_o[1], v_t1, s_c)
    a(f"v_lshl_add_u32 {v_o[1]}, {v_t3}, 8, {v_o[1]}")
    a(f"v_or_b32 {v_t2}, {s_mh}, {v_t2}")
    a(f"v_cmp_eq_u32 vcc, 0, {v_t2}")
    a(f"v_mov_b32 {v_t3}, 0x10000000")
    a(f"v_subrev_u32 {v_o[0]}, 81920, {v_o[2]}")
    a(f"v_cndmask_b32 {v_o[0]}, {v_o[0]}, {v_t3}, vcc")
    a(f"s_mul_i32 {s_tmp}, {s_nh}, 3")
    a(f"s_add_u32 {s_q}, {s_q}, {s_tmp}")
    a(f"v_add_u32 {v_t1}, {s_q}, {v_g}")
    o_addr(v_ot, v_t1, s_c + 1)
    a(f"v_subrev_u32 {v_ot}, 81920, {v_ot}")
    a(f"v_or_b32 {v_t2}, {s_w}, {v_g}")
    a(f"v_cmp_eq_u32 vcc, 0, {v_t2}")
    a("s_nop 1")
    a(f"v_cndmask_b32 {v_ot}, {v_ot}, {v_t3}, vcc")
    a(f"v_cmp_eq_u32 vcc, 3, {v_g}")
    a("s_nop 1")
    a(f"v_cndmask_b32 {v_ot}, {v_ot}, {v_t3}, vcc")
    cuts.append(len(a.lines))
    a(f"s_mul_i32 {s_tmp}, {s_rt}, 11")
    a(f"s_add_u32 {s_t2}, {s_tmp}, 10")
    a(f"s_lshr_b32 {s_tmp}, {s_tmp}, 3")
    a(f"s_lshr_b32 {s_t2}, {s_t2}, 3")
    a(f"s_min_u32 {s_t2}, {s_t2}, 15")
    a(f"s_sub_u32 {s_t2}, {s_t2}, {s_tmp}")
    a(f"s_add_u32 {s_t2}, {s_t2}, 1")
    a(f"s_mul_i32 {s_t2}, {s_t2}, 10")
    a(f"s_bfm_b32 {s_fl}, {s_t2}, 0")
    a(f"v_mul_u32_u24 {v_t0}, 205, {v_lane}")
    a(f"v_lshrrev_b32 {v_t0}, 11, {v_t0}")
    a(f"v_add_u32 {v_t0}, {s_tmp}, {v_t0}")
    a(f"v_mul_u32_u24 {v_t0}, {8*187}, {v_t0}")
    a(f"v_lshrrev_b32 {v_t0}, 11, {v_t0}")
    a(f"v_sub_u32 {v_t0}, {s_rt}, {v_t0}")
    a(f"v_and_b32 {v_t0}, 1, {v_t0}")
    a(f"v_lshlrev_b32 {v_t0}, 2, {v_t0}")
    a(f"v_lshl_add_u32 {v_t0}, {v_lane}, 9, {v_t0}")
    a(f"s_mul_i32 {s_tmp}, {s_tmp}, 5120")
    a(f"s_add_u32 {s_tmp}, {s_tmp}, {FL_OFF}")
    a(f"v_add_u32 {v_fo}, {s_tmp}, {v_t0}")
    a(f"s_lshr_b32 {s_fb}, {s_pos}, 2")
    a(f"s_add_u32 {s_fb}, {s_fb}, {s_pos}")
    a(f"s_lshl_b32 {s_fb}, 1, {s_fb}")
    a(f"s_cmp_eq_u32 {s_w}, 0")
    a(f"s_cselect_b32 {s_fb}, {s_fb}, 0")
    a(f"s_mov_b32 {s_c}, 0x{LOG2E if P('RL2', 1) else SCALE_L2E:x}")
    a(f"s_mov_b32 {s_c+1}, {s_c}")
    a(f"s_mov_b32 {s_sc}, 0x{f32bits(20 ** -0.5):x}")
    a(f"s_mov_b32 {s_sc+1}, {s_sc}")
    cuts.append(len(a.lines))
    late = []
    if DEFER:
        late = [a.lines[cuts[k]:cuts[k+1]] for k in range(len(cuts) - 1)]
        del a.lines[cuts[0]:]
    acc = [V.many(4, 4) for _ in range(MH)]
    mF = V.mark()
    fa = [V.many(MH, 4) for _ in range(2)]
    fb = [V.many(4, 4) for _ in range(2)]
    vf1 = V.a(14, 2)
    vf0 = V.a(14, 2)

    def mm1(m, tt, ks, first=False):
        A, B = (fa[ks][m], fb[ks][tt]) if tt == 2 else (fb[ks][tt], fa[ks][m])
        return f"{MFMA} {acc[m][tt](4)}, {A(4)}, {B(4)}, {'0' if first else acc[m][tt](4)}"

    def read_ops(c, ks):
        sl = (c + 2) % NS
        sp, so = sl >> 1, (sl & 1) * SLOT
        B, A = [], []
        for tt in range(4):
            B.append([f"ds_read_b64_tr_b16 {(fb[ks][tt]+2*h)(2)}, {v_ba[sp][tt]} offset:{so + ks*8192 + h*1024}"
                      for h in range(2)])
        for m in range(MH):
            A.append(f"ds_read_b128 {fa[ks][m](4)}, {v_aa[sp][ks]} offset:{so + m*2048}")
        return B[0] + [A[0]] + B[1] + [A[1]] + B[2] + [A[2]] + B[3] + A[3:]

    def mfma_block(ks, first, fillers, post=None):
        k = 0
        idx = 0
        order = [(m, tt) for m in range(MH) for tt in range(4)]
        if P("MORD", 2) == 1:
            order = [(m, tt) for tt in range(4) for m in range(MH)]
        if P("MORD", 2) == 2:
            order = [(m, tt if m % 2 == 0 else 3 - tt) for m in range(MH) for tt in range(4)]
        if P("MORD", 2) == 3:
            order = [(m if tt % 2 == 0 else MH - 1 - m, tt) for tt in range(4) for m in range(MH)]
        for m, tt in order:
            if True:
                a(mm1(m, tt, ks, first))
                if k < len(fillers):
                    a(fillers[k])
                    k += 1
                if post:
                    post(idx)
                idx += 1
        assert k == len(fillers)

    def warm_call(ret, c):
        if not P("WARM", 1):
            return
        for k in range(3):
            a(f"s_cmp_eq_u32 {s_w}, {k}")
            a(f"s_cbranch_scc1 K_CH{c}{k}")
        a(f"s_branch K_CH{c}3")
        a.label(ret)

    stamp(a, "csetup")
    NPRE = P("NPRE", 4)
    for seg in late[:NPRE]:
        a.lines += seg
    late = late[NPRE:]
    if not DEFER or P("WARMC", -1) < 0:
        warm_call("K_WRET_M", "M")
    def cpoison():
        for e in range(4):
            a(f"v_mov_b32 {vf0+e}, -1")
        for v in v_o + [v_ot]:
            a(f"buffer_store_dwordx4 {vf0(4)}, {v}, {sO(4)}, 0 offen {SC_ST}")

    if P("CPZ", -2) == -1:
        cpoison()
    stamp(a, "warmed")
    if P("CPRIO", 2):
        a(f"s_setprio {P('CPRIO', 2)}")
    a("s_barrier")
    stamp(a, "c0")
    a.label("K_L0")
    for line in read_ops(0, 0):
        a(line)
    kf = [acc[m][0] for m in range(MH)]
    qf = [acc[m][1] for m in range(MH)]

    def cvt(d, x):
        return f"v_cvt_pk_bf16_f32 {d}, {x}, {x+1}"

    def prep(m, tt):
        k, q, v, t = acc[m]
        if tt == 0:
            return [cvt(k, k), cvt(k + 1, k + 2)]
        if tt == 1:
            return [cvt(q, q), cvt(q + 1, q + 2)]
        if tt == 2:
            return [f"v_mov_b32 {q+2}, 0", f"v_mov_b32 {q+3}, 0"]
        L = [cvt(k + 2, t), cvt(k + 3, t + 2), cvt(vf0 + 2*m + 2, v), cvt(vf0 + 2*m + 3, v + 2),
             f"v_permlane16_swap_b32 {k+2}, {q+2}", f"v_permlane16_swap_b32 {k+3}, {q+3}",
             f"ds_write_b64 {v_tw}, {(k+2)(2)} offset:{(m+1)*128}",
             f"ds_read_b64_tr_b16 {(vf1+2*m+2)(2)}, {v_tr} offset:{(m+1)*128}"]
        if m == MH - 1:
            L += [f"s_cmp_lg_u32 {s_mh}, 0", "s_cbranch_scc1 K_NOX",
                  f"ds_write_b64 {v_xb}, {k(2)}", f"ds_write_b64 {v_xb}, {(k+2)(2)} offset:512",
                  f"ds_write_b64 {v_xb}, {(vf0+2*m+2)(2)} offset:1024", f"v_lshl_add_u32 {v_t0}, {s_nh}, 2, {v_cn}",
                  f"ds_write_b16 {v_t0}, {v_cn} offset:30", "K_NOX:"]
        return L

    for c in range(NCH):
        a.comment("chunk %d" % c)
        if c == 5:
            stamp(a, "c5")
        if c in (3, 8, 9):
            stamp(a, f"k{c}")
        a("s_waitcnt lgkmcnt(0)")
        if c == NCH - 1:
            break
        mfma_block(0, c == 0, read_ops(c, 1))
        if c == P("CPZ", -2):
            cpoison()
        if c == 8 and P("CPZ", -2) > -2:
            a("s_waitcnt vmcnt(0)")
        if DEFER and c == P("WARMC", -1):
            warm_call("K_WRET_M", "M")
        elif late:
            a.lines += late.pop(0)
        a("s_waitcnt lgkmcnt(0)")
        a("s_barrier")
        mfma_block(1, False, read_ops(c + 1, 0))

    EF = os.environ.get("EARLYF", "a3")
    EF1 = os.environ.get("EARLYF1", "a4")

    def hint(name):
        stamp(a, name)
        if name not in (EF, EF1):
            return
        if EF == EF1:
            a(f"s_cmp_eq_u32 {s_fb}, 0")
        else:
            a(f"s_and_b32 {s_tmp}, {s_fb}, 0x{0x3ff if name == EF1 else 0xffc00:x}")
        a(f"s_cbranch_scc{1 if EF == EF1 else 0} K_NOH{name}")
        a(f"v_mov_b32 {v_t2}, {s_fb}")
        a(f"s_mov_b32 exec_lo, {s_fl}")
        a("s_mov_b32 exec_hi, 0")
        a(f"global_atomic_add {v_fo}, {v_t2}, {WS(2)} {SC_FLAG}")
        a("s_mov_b64 exec, -1")
        a.label(f"K_NOH{name}")

    def cgate(name, vaddr, off, val):
        a(f"s_mov_b32 {s_tmp}, {SPIN*8}")
        a.label(f"K_CG{name}")
        a(f"ds_read_b32 {v_t1}, {vaddr} offset:{off}")
        a(f"s_sub_u32 {s_tmp}, {s_tmp}, 1")
        a("s_waitcnt lgkmcnt(0)")
        a(f"v_readfirstlane_b32 {s_t2}, {v_t1}")
        a(f"s_cselect_b32 {s_t2}, {val}, {s_t2}")
        a(f"s_cmp_lt_u32 {s_t2}, {val}")
        a(f"s_cbranch_scc1 K_CG{name}")

    QU, PU = [2, 3, 4, 5], [0, 1]
    sc = [(fa[0][u], fa[1][u]) for u in range(MH)]
    kx, ts4 = acc[5][3], fb[0][0]
    sw16 = lambda x, y: f"v_permlane16_swap_b32 {x}, {y}"
    sw32 = lambda x, y: f"v_permlane32_swap_b32 {x}, {y}"
    xrd = [f"ds_read_b64 {kx(2)}, {v_xb}", f"ds_read_b64 {(kx+2)(2)}, {v_xb} offset:512", f"ds_read_b64 {vf0(2)}, {v_xb} offset:1024",
           f"ds_read_b64_tr_b16 {vf1(2)}, {v_tr}"]
    ex = [fb[1][1] + 2*k for k in range(6)]
    pk = [sc[u][0] for u in range(MH)]

    def smm(u, own):
        k = kf[u] if own else (kf[u-1] if u else kx)
        b = v_b1 if own else (v_bp if u == 1 else v_b0)
        return f"{MFMA} {sc[u][own](4)}, {k(4)}, {qf[u](4)}, {b(4)}"

    def pick(u):
        s0, s1 = sc[u]
        return [f"v_max3_f32 {s0}, {s0}, {s0+1}, {s1}", f"v_max3_f32 {s0+2}, {s0+2}, {s0+3}, {s1+2}",
                f"v_max_f32 {s0}, {s0}, {s1+1}", f"v_max_f32 {s0+1}, {s0+2}, {s1+3}",
                cvt(s0, s0)]

    M0 = P("LASTM", 2)
    MO = list(range(MH - 1, -1, -1))
    seq = [(m, tt, 0) for m in MO[:M0] for tt in range(4)] + [(m, tt, 1) for m in MO[:M0] for tt in range(4)]
    for m in MO[M0:]:
        seq += [(m, tt, 0) for tt in range(4)] + [(m, tt, 1) for tt in range(4)]
    ro = read_ops(NCH - 1, 1)
    rB = [l for l in ro if "tr_b16" in l]
    rA = [l for l in ro if "b128" in l][::-1]
    fill = [(("b", 0), rB[0]), (("b", 0), rB[1]), (("a", 5), rA[0])] + [(("b", k // 2), rB[k]) for k in range(2, 8)] \
        + [(("a", 5 - k), rA[k]) for k in range(1, 6)]
    Q = LgkmQueue(a)
    todo = []
    ALW = ("s_cbr", "ds_write_b", "ds_or", "K_NOX", "v_lshl")
    XOK = ((YB & 0xffff) << 16) + 4

    def drain_todo(n):
        k = 0
        while todo and todo[0][0] <= len(a.lines) and (k < n or todo[0][1].startswith(ALW)):
            l = todo.pop(0)[1]
            if l.startswith("#"):
                ready_at[int(l[1:])] = len(a.lines) + 2
                continue
            a.raw(l) if l.endswith(":") else a(l)
            if l.startswith("ds_") and "offset:30" not in l and not l.startswith(f"ds_write_b64 {v_xb},"):
                Q.issue("x" if l in xrd else "w")
            k += 1

    ready_at = {}
    sq = [(u, own) for u in (5, 4, 3, 2, 1, 0) for own in (1, 0)]

    def try_score():
        if not sq:
            return False
        u, own = sq[0]
        need = [u] if own or not u else [u, u - 1]
        if any(ready_at.get(t, 1 << 30) > len(a.lines) for t in need):
            return False
        sq.pop(0)
        if (u, own) == (0, 0):
            Q.need("x")
            a(f"v_readfirstlane_b32 {s_t2}, {v_t1}")
            a(f"s_cmp_lt_u32 {s_t2}, {XOK - 4}")
            a("s_cbranch_scc1 K_XW")
            a.label("K_XR")
        a(smm(u, own))
        if not own:
            todo.extend([len(a.lines) + 8, l] for l in pick(u) + [f"#{10 + u}"])
        return True

    PPG = P("PPG", 2)
    for pos, (m, tt, ks) in enumerate(seq):
        if ks == 1:
            Q.need(("b", tt), ("a", m))
        a(mm1(m, tt, ks))
        nl = len(a.lines)
        for _ in range(2):
            if fill:
                tag, l = fill.pop(0)
                a(l)
                Q.issue(tag)
        if ks == 1:
            todo.extend([nl + (8 if tt != 2 else 0), l] for l in prep(m, tt) + ([f"#{m}"] if tt == 3 else []))
            if tt == 3 and m == P("XAT", 2):
                todo.extend([0, l] for l in [f"v_lshl_add_u32 {v_t0}, {s_nh}, 2, {v_cn}", f"ds_read_b32 {v_t1}, {v_t0} offset:28"] + xrd)
        drain_todo(PPG)
        if P("SEARLY", 1) and try_score():
            drain_todo(PPG)
    stamp(a, "join")

    def unpack_l(u):
        return [f"v_lshlrev_b32 {ex[u]}, 16, {pk[u]}", f"v_and_b32 {ex[u]+1}, 0xffff0000, {pk[u]}"]

    def unpack(u):
        for l in unpack_l(u):
            a(l)

    fq = [sw16(pk[4], pk[5]), sw16(pk[2], pk[3]), "s_nop 1", sw32(pk[2], pk[4]), sw32(pk[3], pk[5])] + sum((unpack_l(u) for u in (2, 4, 3)), [])
    while todo or sq:
        n0, m0 = len(a.lines), len(todo)
        try_score()
        drain_todo(3)
        if len(a.lines) == n0 and len(todo) == m0:
            a(fq.pop(0) if fq and ready_at.get(12, 1 << 30) <= len(a.lines) else "s_nop 0")
    hint("a1")
    for l in fq:
        a(l)
    unpack(5)
    a(sw16(pk[0], pk[1]))
    RL2 = P("RL2", 1)
    EO = [2, 4, 3, 5, 0, 1]
    for u in EO[4:]:
        unpack(u)
    if RL2:
        for u in EO:
            a(f"v_pk_mul_f32 {ex[u](2)}, {ex[u](2)}, {s_sc(2)}")
        for u in EO:
            a(cvt(pk[u], ex[u]))
        for u in EO[::-1]:
            unpack(u)
    PCE = EF in ("a2", "a25")
    assert "a1" not in (EF, EF1)

    def pcheck():
        a(f"v_readfirstlane_b32 {s_t2}, {v_t1}")
        a(f"s_cmp_lt_u32 {s_t2}, {XOK}")
        a("s_cbranch_scc1 K_PW")
        a.label("K_PR")

    if PCE:
        a(f"ds_read_b32 {v_t1}, {v_t0} offset:28")
    mq, mp, tp = sc[0][1], sc[0][1] + 2, sc[1][1]
    a(f"v_max3_f32 {mp}, {ex[0]}, {ex[0]+1}, {ex[1]}")
    a(f"v_max3_f32 {mq}, {ex[2]}, {ex[2]+1}, {ex[4]}")
    a(f"v_max_f32 {mp}, {mp}, {ex[1]+1}")
    a(f"v_max3_f32 {mq}, {mq}, {ex[4]+1}, {ex[3]}")
    a(f"v_mov_b32 {tp}, {mp}")
    a(f"v_max3_f32 {mq}, {mq}, {ex[3]+1}, {ex[5]}")
    a(f"v_max_f32 {mq}, {mq}, {ex[5]+1}")
    a(sw32(mp, tp))
    a(f"v_mul_f32 {mq}, {s_c}, {mq}")
    a(f"v_max_f32 {mp}, {mp}, {tp}")
    a(f"v_mul_f32 {mp}, {s_c}, {mp}")
    for u in QU + PU:
        a(f"v_pk_fma_f32 {ex[u](2)}, {ex[u](2)}, {s_c(2)}, {(mq if u >= 2 else mp)(2)} op_sel_hi:[1,1,0] neg_lo:[0,0,1] neg_hi:[0,0,1]")
    for u in PU + QU:
        a(f"v_exp_f32 {ex[u]}, {ex[u]}")
        a(f"v_exp_f32 {ex[u]+1}, {ex[u]+1}")
    if PCE:
        a("s_waitcnt lgkmcnt(0)")
        pcheck()
    hint("a2")
    t2 = sc[1][1] + 2
    if not PCE:
        a(f"ds_read_b32 {v_t1}, {v_t0} offset:28")
    a(f"v_pk_add_f32 {mp(2)}, {ex[0](2)}, {ex[1](2)}")
    a(f"v_pk_add_f32 {mq(2)}, {ex[2](2)}, {ex[3](2)}")
    a(f"v_add_f32 {mp}, {mp}, {mp+1}")
    a(f"v_pk_add_f32 {t2(2)}, {ex[4](2)}, {ex[5](2)}")
    a(f"v_mov_b32 {tp}, {mp}")
    a(f"v_pk_add_f32 {mq(2)}, {mq(2)}, {t2(2)}")
    a(f"v_add_f32 {mq}, {mq}, {mq+1}")
    a(sw32(mp, tp))
    a(f"v_rcp_f32 {mq}, {mq}")
    a(f"v_add_f32 {mp}, {mp}, {tp}")
    a(f"v_rcp_f32 {mp}, {mp}")
    for u in QU:
        a(f"v_pk_mul_f32 {ex[u](2)}, {ex[u](2)}, {mq(2)} op_sel_hi:[1,0]")
    for u in PU:
        a(f"v_pk_mul_f32 {ex[u](2)}, {ex[u](2)}, {mp(2)} op_sel_hi:[1,0]")
    hint("a25")
    for u in (2, 4, 3, 5, 0, 1):
        a(cvt(pk[u], ex[u]))
    for l in (sw32(pk[2], pk[4]), sw32(pk[3], pk[5]), sw16(pk[0], pk[1]), "s_waitcnt lgkmcnt(0)", sw16(pk[2], pk[3]), sw16(pk[4], pk[5])):
        a(l)
    if not PCE:
        pcheck()
    hint("a3")
    pf = qf
    oc = [(acc[m][2], acc[m][3]) for m in range(MH)]

    def pv(u):
        for dt, vf in ((1, vf1), (0, vf0)):
            a(f"{MFMA} {oc[u][dt](4)}, {(vf+2*u)(4)}, {pf[u](4)}, 0")

    def outp(q):
        st = kf[2*q]
        for j in range(2):
            a(cvt(st + 2*j, oc[2*q+j][0]))
        for j in range(2):
            a(cvt(st + 2*j + 1, oc[2*q+j][0] + 2))
        a("s_nop 0")
        a(sw16(st, st + 2))
        a(sw16(st + 1, st + 3))
        a(f"v_min_u32 {st}, -2, {st}")
        a(f"buffer_store_dwordx4 {st(4)}, {v_o[q]}, {sO(4)}, 0 offen {SC_ST}")

    def tail(u):
        t = kf[u | 1] + 2 * (u & 1)
        a(cvt(t, oc[u][1]))
        a(cvt(t + 1, oc[u][1] + 2))
        a(f"ds_write_b64 {v_sw1}, {t(2)} offset:{u*256}")

    pvl = lambda u, dt: f"{MFMA} {oc[u][dt](4)}, {((vf0, vf1)[dt]+2*u)(4)}, {pf[u](4)}, 0"
    for u in range(MH):
        for k in range(4):
            a(f"v_perm_b32 {pf[u]+k}, {pk[u]}, {pk[u]}, {v_ps+k}")
            if u > 0 and k & 1:
                a(pvl(u - 1, 1 - (k >> 1)))
        if u > 2:
            tail(u - 3)
        hint(f"b{u}")
    a(f"v_mov_b32 {v_t1}, 1")
    a(pvl(MH - 1, 1))
    hint("a4")
    a(f"v_lshl_add_u32 {v_t0}, {s_mh}, 2, {v_cn}")
    for u in range(3, MH):
        tail(u)
        if u == 3:
            a(pvl(MH - 1, 0))
    a("s_mov_b64 exec, 1")
    a(f"ds_add_u32 {v_t0}, {v_t1} offset:48")
    a("s_mov_b64 exec, -1")
    outp(0)
    outp(1)
    a(f"ds_read_b32 {v_t1}, {v_t0} offset:48")
    a(f"ds_read_b128 {ts4(4)}, {v_sr1}")
    hint("a5")
    outp(2)
    a("s_waitcnt lgkmcnt(0)")
    a(f"v_readfirstlane_b32 {s_t2}, {v_t1}")
    a(f"s_cmp_lt_u32 {s_t2}, 2")
    a("s_cbranch_scc1 K_TW")
    a.label("K_TR")
    a(f"v_min_u32 {ts4}, -2, {ts4}")
    a(f"buffer_store_dwordx4 {ts4(4)}, {v_ot}, {sO(4)}, 0 offen {SC_ST}")
    stamp(a, "attdone")
    a(f"s_cmp_eq_u32 {s_n}, -1")
    a("s_cbranch_scc1 K_END")
    a(f"s_add_u32 {s_w}, {s_w}, 4")
    a("s_branch K_P2_HELP")
    a.label("K_XW")
    cgate("X", v_t0, 28, XOK - 4)
    for l in xrd:
        a(l)
    a("s_waitcnt lgkmcnt(0)")
    a("s_branch K_XR")
    a.label("K_PW")
    cgate("P", v_t0, 28, XOK)
    a("s_branch K_PR")
    a.label("K_TW")
    cgate("T", v_t0, 48, 2)
    a(f"ds_read_b128 {ts4(4)}, {v_sr1}")
    a("s_waitcnt lgkmcnt(0)")
    a("s_branch K_TR")

    seg_aux0 = len(a.lines)
    S.release(mS)
    V.release(mV)
    a.label("K_AUX")
    GA, UP, DN = 0, 40960, 81920
    KEYS = 122880
    KSEL = KEYS + 1024
    PRE = KSEL + 64
    HB = PRE + 1024
    WV = HB + 1024
    assert WV + 4 * 4096 <= YB
    s_j = S.a()
    s_pm = S.a(8)
    s_pg = S.a(2)
    sR, sGW = sW, sO
    sG, sU, sD = S.many(3, 4)
    s_k1 = S.a(2)
    s_k2 = s_k1 + 1
    s_so, s_m0, s_m1 = S.many(3)
    s_t3 = S.a(3)

    def aux_ids():
        common_ids()
        a(f"s_mul_i32 {s_j}, {s_xcd}, 7")
        a(f"s_add_u32 {s_j}, {s_j}, {s_i}")
        a(f"s_sub_u32 {s_j}, {s_j}, 1")
        a(f"s_cmp_lt_u32 {s_j}, {NSL}")
        a(f"s_cselect_b32 {s_j}, {s_j}, 63")
        a(f"s_cmp_eq_u32 {s_i}, 0")
        a(f"s_cselect_b32 {s_j}, 63, {s_j}")

    v_row, v_xo, v_c16, v_go, v_do, v_gy = V.many(6)
    xr = V.a(160)
    vk = V.a(4)

    def fgate(name, off, val):
        a(f"s_mov_b32 {s_tmp}, {SPIN*8}")
        a.label(f"K_FG{name}")
        a(f"ds_read_b32 {v_t0}, {v_gy} offset:{off}")
        a("s_sleep 1")
        a(f"s_sub_u32 {s_tmp}, {s_tmp}, 1")
        a("s_waitcnt lgkmcnt(0)")
        a(f"v_readfirstlane_b32 {s_t2}, {v_t0}")
        a("s_nop 3")
        a(f"s_cselect_b32 {s_t2}, {val}, {s_t2}")
        a(f"s_cmp_lt_u32 {s_t2}, {val}")
        a(f"s_cbranch_scc1 K_FG{name}")

    a(f"s_cmp_ge_u32 {s_w}, 4")
    a("s_cbranch_scc1 K_AUX_L")
    a(f"s_and_b32 {s_tmp}, s2, 7")
    a(f"s_lshr_b32 {s_so}, s2, 3")
    a(f"s_lshl3_add_u32 {s_tmp}, {s_tmp}, {s_so}")
    a(f"s_lshl_b32 {s_tmp}, {s_tmp}, 5")
    a(f"s_lshl3_add_u32 {s_tmp}, {s_w}, {s_tmp}")
    a(f"v_bfe_u32 {v_row}, v0, 4, 2")
    a(f"v_add_u32 {v_row}, {s_tmp}, {v_row}")
    a(f"v_and_b32 {v_c16}, 15, v0")
    a(f"v_lshlrev_b32 {v_c16}, 4, {v_c16}")
    a(f"v_mul_u32_u24 {v_xo}, 1280, {v_row}")
    a(f"v_add_u32 {v_xo}, {v_xo}, {v_c16}")
    a(f"v_and_b32 {v_t0}, 63, v0")
    a(f"v_lshlrev_b32 {v_t0}, 4, {v_t0}")
    a(f"s_lshl_b32 {s_m0}, {s_w}, 12")
    a(f"s_add_u32 {s_m0}, {s_m0}, {WV}")
    a(f"s_mov_b32 {s_so}, {4*1280}")
    a(f"s_mov_b32 m0, {s_m0}")
    a("s_waitcnt lgkmcnt(0)")
    srd(a, sR, s_pm, 1280)
    srd(a, sGW, s_pg, 1280)
    a(f"buffer_load_dwordx4 {v_t0}, {sR(4)}, 0 offen lds")
    a(f"buffer_load_dwordx4 {v_t0}, {sR(4)}, 0 offen offset:1024 lds")
    a(f"s_add_u32 m0, {s_m0}, 2048")
    a(f"v_add_u32 {v_c16}, {s_m0}, {v_c16}")
    a(f"buffer_load_dwordx4 {v_t0}, {sGW(4)}, 0 offen lds")
    a(f"buffer_load_dwordx4 {v_t0}, {sGW(4)}, 0 offen offset:1024 lds")
    for j in range(5):
        for h in range(2):
            a(f"buffer_load_dwordx4 {(xr+8*j+4*h)(4)}, {v_xo}, {sX(4)}, {s_so if h else 0} offen offset:{j*256}")
    stamp(a, "rissued")
    a("s_barrier")
    aux_ids()
    srd(a, sWO, s_pwo, 640 * 1280)
    srd(a, sD, WS, ZBYTES, FL_OFF)
    srd(a, sU, WS, YP_BYTES, YP_OFF)
    ar, ag = [xr + 80, xr + 81], [xr + 82, xr + 83]
    for v in ar + ag:
        a(f"v_mov_b32 {v}, 0")
    a(f"v_mov_b32 {v_gy}, {YB}")
    a("s_waitcnt vmcnt(10)")
    for j in range(5):
        a(f"ds_read_b128 {(xr+40+4*j)(4)}, {v_c16} offset:{j*256}")
        a(f"ds_read_b128 {(xr+60+4*j)(4)}, {v_c16} offset:{2048 + j*256}")
    for j in range(5):
        a(f"s_waitcnt vmcnt({8 - 2*j}) lgkmcnt({8 - 2*j})")
        for e in range(4):
            for h in range(2):
                a(f"v_dot2c_f32_bf16 {ar[h]}, {xr+8*j+4*h+e}, {xr+40+4*j+e}")
                a(f"v_dot2c_f32_bf16 {ag[h]}, {xr+8*j+4*h+e}, {xr+60+4*j+e}")
    a("s_nop 2")
    for dpp in ("quad_perm:[1,0,3,2]", "quad_perm:[2,3,0,1]", "row_half_mirror", "row_mirror"):
        for v in ar + ag:
            a(f"v_add_f32_dpp {v}, {v}, {v} {dpp} row_mask:0xf bank_mask:0xf")
    a(f"v_and_b32 {v_t2}, 31, {v_row}")
    a(f"v_lshlrev_b32 {v_go}, 2, {v_t2}")
    a(f"v_add_u32 {v_go}, {KEYS}, {v_go}")
    a(f"v_lshlrev_b32 {v_do}, 1, {v_t2}")
    a(f"v_add_u32 {v_do}, {KEYS + 128}, {v_do}")
    for h in range(2):
        bf16r(a, v_t0, ar[h])
        a(f"v_ashrrev_i32 {v_t1}, 31, {v_t0}")
        a(f"v_or_b32 {v_t1}, 0x80000000, {v_t1}")
        a(f"v_xor_b32 {v_t0}, {v_t0}, {v_t1}")
        a(f"v_and_b32 {v_t0}, 0xffff0000, {v_t0}")
        a(f"v_sub_u32 {v_t1}, 0x{0x87ff - 4*h:x}, {v_row}")
        a(f"v_or_b32 {ar[h]}, {v_t0}, {v_t1}")
        a(f"ds_write_b32 {v_go}, {ar[h]} offset:{16*h}")
        bf16r(a, ag[h], ag[h])
        sigmoid(a, ag[h], ag[h], v_t3)
        a(f"v_cvt_pk_bf16_f32 {ag[h]}, {ag[h]}, {ag[h]}")
        a(f"v_or_b32 {ag[h]}, 0x8000, {ag[h]}")
        a(f"ds_write_b16 {v_do}, {ag[h]} offset:{8*h}")
    a(f"v_mov_b32 {v_t1}, 1")
    a("s_mov_b64 exec, 1")
    a(f"ds_add_u32 {v_gy}, {v_t1} offset:48")
    a("s_mov_b64 exec, -1")
    stamp(a, "scored")
    a(f"s_cmp_ge_u32 {s_w}, 6")
    a("s_cbranch_scc1 K_AUX_G1")
    fgate("R", 48, 4)
    a(f"s_cmp_lg_u32 {s_w}, 4")
    a("s_cbranch_scc1 K_AUX_G0")
    a(f"v_and_b32 {v_t1}, 31, {v_lane}")
    a(f"v_lshlrev_b32 {v_t1}, 2, {v_t1}")
    a(f"v_add_u32 {v_t1}, {KEYS}, {v_t1}")
    a(f"ds_read_b32 {v_t0}, {v_t1}")
    a("s_waitcnt lgkmcnt(0)")
    wave_top2(a, v_t0, v_t1, s_k1, s_k2, s_t3)
    zpoll(3, [0, 64], 1)
    a("s_lshl_b32 %s, s2, 3" % s_tmp)
    a(f"s_add_u32 {s_tmp}, {s_tmp}, {FL_OFF + KMB}")
    a(f"s_atomic_add_x2 {s_k1(2)}, {WS(2)}, {s_tmp}")
    stamp(a, "pub")
    a(f"s_cmp_lg_u32 s2, {HUB}")
    a("s_cbranch_scc1 K_AUX_G1")
    a(f"s_mov_b32 {s_so}, {KMB}")
    a(f"v_lshlrev_b32 {v_t1}, 3, {v_lane}")
    a(f"s_mov_b32 {s_tmp}, {SPIN}")
    a.label("K_AUX_POLL")
    a(f"buffer_load_dwordx2 {vk(2)}, {v_t1}, {sD(4)}, {s_so} offen {SC_POLL}")
    a("s_waitcnt vmcnt(0)")
    a(f"v_min_u32 {v_t0}, {vk}, {vk+1}")
    a(f"v_cmp_eq_u32 vcc, 0, {v_t0}")
    a("s_cbranch_vccz K_AUX_GOT")
    a(f"s_sleep {P('KSLEEP', 2)}")
    a(f"s_sub_u32 {s_tmp}, {s_tmp}, 1")
    a(f"s_cmp_lg_u32 {s_tmp}, 0")
    a("s_cbranch_scc1 K_AUX_POLL")
    a.label("K_AUX_GOT")
    a("s_waitcnt lgkmcnt(0)")
    wave_max_u32(a, vk, v_t1, s_k1, s_t3)
    a(f"v_cmp_ne_u32 vcc, {s_k1}, {vk}")
    a("s_nop 1")
    a(f"v_cndmask_b32 {v_t0}, {vk+1}, {vk}, vcc")
    wave_max_u32(a, v_t0, v_t1, s_k2, s_t3)
    a(f"v_mov_b32 {vk}, {s_k1}")
    a(f"v_mov_b32 {vk+1}, {s_k2}")
    fgate("Z", 36, 1)
    a(f"v_lshlrev_b32 {v_t1}, 9, {v_lane}")
    a(f"s_mov_b32 {sD+2}, {KMB}")
    for k in range(3):
        a(f"s_mov_b32 {s_so}, {k*64*512}")
        a(f"buffer_store_dwordx2 {vk(2)}, {v_t1}, {sD(4)}, {s_so} offen offset:128 {SC_FLAG}")
    a(f"v_mov_b32 {v_t1}, 16")
    a(f"ds_write_b32 {v_gy}, {v_t1} offset:48")
    stamp(a, "hub")
    a("s_branch K_AUX_G1")
    a.label("K_AUX_G0")
    a(f"v_and_b32 {v_t1}, 3, {v_lane}")
    a(f"v_lshlrev_b32 {v_t1}, 4, {v_t1}")
    a(f"v_add_u32 {v_t0}, {KEYS + 128}, {v_t1}")
    a(f"ds_read_b128 {vk(4)}, {v_t0}")
    a(f"v_lshrrev_b32 {v_t0}, 2, {v_lane}")
    a(f"v_lshl_add_u32 {v_t1}, {v_t0}, 9, {v_t1}")
    a(f"s_sleep {P('BSLEEP', 12)}")
    zpoll(4, [128], NZ)
    a(f"v_mov_b32 {v_t0}, 1")
    a(f"ds_write_b32 {v_gy}, {v_t0} offset:36")
    a(f"s_lshr_b32 {s_tmp}, {s_i}, 2")
    a(f"s_lshl1_add_u32 {s_tmp}, {s_xcd}, {s_tmp}")
    a(f"s_mul_i32 {s_tmp}, {s_tmp}, 5120")
    a(f"s_and_b32 {s_so}, {s_i}, 3")
    a(f"s_lshl_b32 {s_so}, {s_so}, 6")
    a(f"s_add_u32 {s_tmp}, {s_tmp}, {s_so}")
    a("s_mov_b32 exec_hi, 0xff")
    a("s_waitcnt lgkmcnt(0)")
    a(f"buffer_store_dwordx4 {vk(4)}, {v_t1}, {sD(4)}, {s_tmp} offen offset:256 {SC_FLAG}")
    a("s_mov_b64 exec, -1")
    a.label("K_AUX_G1")
    a(f"s_cmp_lg_u32 {s_j}, 63")
    a("s_cbranch_scc1 K_FFN_C")
    a(f"s_cmp_lg_u32 {s_i}, 0")
    a("s_cbranch_scc1 K_AUX_NT")
    if P("WOLLC", 1):
        a(f"s_lshl2_add_u32 {s_tmp}, {s_xcd}, {s_w}")
        a(f"s_sub_u32 {s_tmp}, {s_tmp}, 4")
        a(f"s_mul_i32 {s_tmp}, {s_tmp}, {200*128}")
        a(f"v_lshlrev_b32 {v_t0}, 7, {v_lane}")
        for k in range(4):
            if k == 3:
                a("s_mov_b64 exec, 0xff")
            a(f"buffer_load_dword {v_t3}, {v_t0}, {sWO(4)}, {s_tmp} offen")
            a(f"s_add_u32 {s_tmp}, {s_tmp}, {64*128}")
        a("s_mov_b64 exec, -1")
    a.label("K_AUX_NT")
    fgate("Z2", 36, 1)
    a("s_waitcnt vmcnt(0)")
    a("s_branch K_P2")

    a.label("K_AUX_L")
    aux_ids()
    lds_zero()
    a(f"v_lshrrev_b32 {v_t1}, 2, {v_lane}")
    a(f"v_mul_u32_u24 {v_go}, 3456, {v_t1}")
    a(f"v_lshrrev_b32 {v_t1}, 4, {v_lane}")
    a(f"v_and_b32 {v_t1}, 2, {v_t1}")
    a(f"v_xor_b32 {v_t1}, {v_t1}, {v_lane}")
    a(f"v_and_b32 {v_t1}, 3, {v_t1}")
    a(f"v_lshl_add_u32 {v_go}, {v_t1}, 4, {v_go}")
    a(f"s_mul_i32 {s_tmp}, {s_w}, {10*55296}")
    a(f"s_lshl_b32 {s_so}, {s_j}, 6")
    a(f"s_add_u32 {s_tmp}, {s_tmp}, {s_so}")
    a(f"v_add_u32 {v_go}, {s_tmp}, {v_go}")
    a(f"s_mul_i32 {s_k1}, {s_w}, 10240")
    a(f"s_add_u32 {s_m1}, {s_k1}, {UP}")
    a(f"s_bitcmp1_b32 {s_j}, 0")
    a(f"s_cselect_b32 {s_m0}, {s_m1}, {s_k1}")
    a(f"s_cselect_b32 {s_m1}, {s_k1}, {s_m1}")
    a(f"v_lshlrev_b32 {v_row}, 4, {v_lane}")
    a("s_waitcnt lgkmcnt(0)")
    a("s_barrier")
    srd(a, sWO, s_pwo, 640 * 1280)
    a(f"s_cmp_lg_u32 {s_j}, 63")
    a("s_cbranch_scc1 K_AUX_FFN1")
    a(f"s_cmp_lg_u32 {s_w}, 0")
    a("s_cbranch_scc1 K_AUX_NR")
    a(f"s_cmp_eq_u32 s2, {HUB - 8}")
    a("s_cbranch_scc1 K_AUX_NR")
    a(f"s_cmp_eq_u32 s2, {HUB}")
    a(f"s_cselect_b32 {s_so}, 0, 128")
    a(f"s_mov_b32 {s_tmp}, 1")
    a("s_waitcnt vmcnt(0)")
    a(f"s_atomic_add {s_tmp}, {DBG(2)}, {s_so}")
    a(f"s_atomic_add {s_tmp}, {DBG(2)}, {s_so} offset:64")
    a("s_waitcnt lgkmcnt(0)")
    stamp(a, "zdone")
    a.label("K_AUX_NR")
    if APZ:
        a(f"s_cmp_lg_u32 {s_i}, 0")
        a("s_cbranch_scc1 K_AUX_NP")
        if P("APZD", 0):
            a(f"v_mov_b32 {v_gy}, {YB}")
            fgate("PD", 48, 4)
        srd(a, sO, WS, O_BYTES, O_OFF)
        for e in range(4):
            a(f"v_mov_b32 {vk+e}, -1")
        a(f"s_lshl2_add_u32 {s_so}, {s_xcd}, {s_w}")
        a(f"s_mul_i32 {s_so}, {s_so}, 81920")
        a(f"s_add_u32 {s_t2}, {s_so}, 81920")
        a.label("K_PZL")
        for k in range(4):
            a(f"buffer_store_dwordx4 {vk(4)}, {v_row}, {sO(4)}, {s_so} offen offset:{k*1024} {SC_ST}")
        a(f"s_add_u32 {s_so}, {s_so}, 4096")
        a(f"s_cmp_lt_u32 {s_so}, {s_t2}")
        a("s_cbranch_scc1 K_PZL")
        a(f"s_mov_b32 {s_tmp}, 1")
        a("s_waitcnt vmcnt(0)")
        a(f"s_atomic_add {s_tmp}, {DBG(2)}, 192")
        a("s_waitcnt lgkmcnt(0)")
        stamp(a, "pzdone")
        a.label("K_AUX_NP")
    a(f"v_mov_b32 {v_gy}, {YB}")
    fgate("Z3", 36, 1)
    a(f"s_cmp_lg_u32 s2, {HUB}")
    a("s_cbranch_scc1 K_AUX_NH")
    fgate("H", 48, 16)
    a.label("K_AUX_NH")
    a("s_branch K_P2")
    a.label("K_AUX_FFN1")
    a(f"s_bitcmp1_b32 {s_j}, 0")
    a(f"s_cselect_b64 {sG(2)}, {(s_pm+4)(2)}, {(s_pm+2)(2)}")
    a(f"s_cselect_b64 {sU(2)}, {(s_pm+2)(2)}, {(s_pm+4)(2)}")
    a(f"s_mov_b32 {sG+2}, {640*3456}")
    a(f"s_mov_b32 {sG+3}, 0x20000")
    a(f"s_mov_b32 {sU+2}, {640*3456}")
    a(f"s_mov_b32 {sU+3}, 0x20000")
    if P("LDEL", 0):
        a(f"s_sleep {P('LDEL', 0)}")
    for k in range(20):
        q = k % 10
        a(f"s_add_u32 m0, {s_m0 if k < 10 else s_m1}, {q*1024}")
        a(f"s_mov_b32 {s_so}, {q*55296}")
        a(f"buffer_load_dwordx4 {v_go}, {(sG if k < 10 else sU)(4)}, {s_so} offen {FNT} lds")
    srd(a, sD, s_pm + 6, 1728 * 1280)
    a(f"s_mul_i32 {s_tmp}, {s_j}, 40960")
    a(f"s_add_u32 {s_tmp}, {s_tmp}, {s_k1}")
    a(f"v_lshrrev_b32 {v_t0}, 3, {v_lane}")
    a(f"v_and_b32 {v_t1}, 2, {v_t0}")
    a(f"s_lshl_b32 {s_so}, {s_w}, 2")
    a(f"v_xor_b32 {v_t1}, {s_so}, {v_t1}")
    a(f"v_xor_b32 {v_t1}, {v_t1}, {v_lane}")
    a(f"v_and_b32 {v_t1}, 7, {v_t1}")
    a(f"v_mul_u32_u24 {v_t0}, 1280, {v_t0}")
    a(f"v_lshl_add_u32 {v_t0}, {v_t1}, 4, {v_t0}")
    a(f"v_add_u32 {v_do}, {s_tmp}, {v_t0}")
    for q in range(10):
        a(f"s_add_u32 m0, {s_k1}, {DN + q*1024}")
        a(f"s_mov_b32 {s_so}, {q*128}")
        a(f"buffer_load_dwordx4 {v_do}, {sD(4)}, {s_so} offen {FNTD} lds")
    a("s_waitcnt vmcnt(10)")
    a("s_barrier")
    a("s_branch K_P2_EARLY")

    a.label("K_FFN_C")
    wf, xf, df = xr, xr + 80, xr
    v_g, v_wa, v_da, v_ka = V.many(4)
    a(f"v_lshrrev_b32 {v_g}, 4, {v_lane}")
    a(f"v_bfe_u32 {v_t0}, {v_lane}, 2, 2")
    a(f"v_lshl_add_u32 {v_t0}, {v_g}, 3, {v_t0}")
    a(f"v_and_b32 {v_t1}, 3, {v_lane}")
    a(f"v_lshlrev_b32 {v_t1}, 3, {v_t1}")
    a(f"v_lshl_add_u32 {v_wa}, {v_t0}, 6, {v_t1}")
    a(f"s_bfe_u32 {s_tmp}, {s_w}, 0x10001")
    a(f"s_mul_i32 {s_tmp}, {s_tmp}, 40960")
    assert GA == 0
    a(f"v_xor_b32 {v_t2}, {s_w}, {v_g}")
    a(f"v_and_b32 {v_t2}, 1, {v_t2}")
    a(f"v_lshl_add_u32 {v_wa}, {v_t2}, 5, {v_wa}")
    a(f"v_add_u32 {v_wa}, {s_tmp}, {v_wa}")
    a(f"v_bfe_u32 {v_t2}, {v_lane}, 3, 2")
    a(f"v_xor_b32 {v_t2}, {s_w}, {v_t2}")
    a(f"v_and_b32 {v_t2}, 3, {v_t2}")
    a(f"v_lshl_add_u32 {v_t1}, {v_t2}, 5, {v_t1}")
    a(f"v_and_b32 {v_t0}, 3, {v_t0}")
    a(f"v_lshl_add_u32 {v_t1}, {v_t0}, 7, {v_t1}")
    a(f"v_mul_u32_u24 {v_da}, 10240, {v_g}")
    a(f"s_mov_b32 {s_tmp}, {DN}")
    a(f"v_add3_u32 {v_da}, {v_da}, {v_t1}, {s_tmp}")
    a(f"v_mov_b32 {v_ka}, {KSEL}")
    a(f"s_cmp_lg_u32 {s_w}, 5")
    a("s_cbranch_scc1 K_KW")
    a(f"s_mov_b32 {s_tmp}, {SPIN}")
    a.label("K_KPOLL")
    a(f"s_load_dwordx2 {s_k1(2)}, {WS(2)}, {s_mb} offset:128 glc")
    a("s_waitcnt lgkmcnt(0)")
    a(f"s_min_u32 {s_t2}, {s_k1}, {s_k2}")
    a(f"s_cmp_lg_u32 {s_t2}, 0")
    a("s_cbranch_scc1 K_KGOT")
    a(f"s_sleep {P('KSLEEP2', 2)}")
    a(f"s_sub_u32 {s_tmp}, {s_tmp}, 1")
    a("s_cbranch_scc0 K_KPOLL")
    a.label("K_KGOT")
    a(f"v_mov_b32 {vk}, {s_k1}")
    a(f"v_mov_b32 {vk+1}, {s_k2}")
    a(f"ds_write_b64 {v_ka}, {vk(2)}")
    a(f"v_lshlrev_b32 {v_t0}, 4, {v_lane}")
    XL = WV + 8192
    for t, sk in enumerate((s_k1, s_k2)):
        a(f"s_and_b32 {s_so}, {sk}, 0x7ff")
        a(f"s_sub_u32 {s_so}, 2047, {s_so}")
        a(f"s_mul_i32 {s_so}, {s_so}, 1280")
        a(f"s_mov_b32 m0, {XL + t*1344}")
        a("s_mov_b64 exec, -1")
        a(f"buffer_load_dwordx4 {v_t0}, {sX(4)}, {s_so} offen lds")
        a("s_mov_b64 exec, 0xffff")
        a(f"buffer_load_dwordx4 {v_t0}, {sX(4)}, {s_so} offen offset:1024 lds")
    a("s_mov_b64 exec, -1")
    a(f"v_mov_b32 {v_t1}, 16")
    a("s_waitcnt vmcnt(0)")
    a(f"ds_write_b32 {v_gy}, {v_t1} offset:48")
    a("s_branch K_KW2")
    a.label("K_KW")
    a(f"s_cmp_lt_u32 {s_w}, 6")
    a("s_cbranch_scc1 K_KW2")
    a(f"s_cmp_eq_u32 {s_w}, 6")
    a("s_cbranch_scc1 K_CHF0")
    a("s_branch K_CHF1")
    a.label("K_WRET_F")
    a.label("K_KW2")
    a(f"v_and_b32 {v_t0}, 1, {v_lane}")
    a(f"v_mul_u32_u24 {v_xo}, 1344, {v_t0}")
    a(f"v_lshl_add_u32 {v_xo}, {v_g}, 4, {v_xo}")
    a(f"v_add_u32 {v_xo}, {XL}, {v_xo}")
    pacc = V.many(2, 4)
    v_pa, v_hr, v_hs, v_hw, v_yo = V.many(5)
    a(f"v_and_b32 {v_t0}, 1, {v_lane}")
    a(f"v_lshlrev_b32 {v_pa}, 6, {v_t0}")
    a(f"v_lshl_add_u32 {v_pa}, {v_g}, 4, {v_pa}")
    a(f"s_and_b32 {s_tmp}, {s_w}, 3")
    a(f"s_lshl_b32 {s_tmp}, {s_tmp}, 7")
    a(f"v_add3_u32 {v_hr}, {v_pa}, {s_tmp}, {v_ka}")
    a(f"v_add_u32 {v_pa}, {PRE - KSEL}, {v_hr}")
    a(f"v_add_u32 {v_hr}, {HB - KSEL}, {v_hr}")
    a(f"v_lshrrev_b32 {v_t0}, 5, {v_lane}")
    a(f"v_bfe_u32 {v_t1}, {v_lane}, 4, 1")
    a(f"v_lshl_add_u32 {v_t1}, {v_t1}, 1, {v_t0}")
    a(f"v_lshlrev_b32 {v_t1}, 6, {v_t1}")
    a(f"v_and_b32 {v_t2}, 15, {v_lane}")
    a(f"v_lshl_add_u32 {v_t1}, {v_t2}, 2, {v_t1}")
    a(f"v_add_u32 {v_hs}, {PRE}, {v_t1}")
    a(f"v_lshlrev_b32 {v_t2}, 1, {v_lane}")
    a(f"s_add_u32 {s_tmp}, {s_tmp}, {HB}")
    a(f"v_add_u32 {v_hw}, {s_tmp}, {v_t2}")
    a(f"v_and_b32 {v_t0}, 1, {v_lane}")
    a(f"v_mul_u32_u24 {v_t0}, 2560, {v_t0}")
    a(f"v_lshl_add_u32 {v_yo}, {v_g}, 4, {v_t0}")
    a(f"s_lshl_b32 {s_so}, {s_w}, 6")
    a(f"s_add_u32 {s_so}, {s_so}, {WV - 4*64}")
    a(f"v_add_u32 {v_yo}, {s_so}, {v_yo}")
    a(f"v_mov_b32 {v_t1}, 1")
    fgate("K", 48, 16)
    stamp(a, "keys")
    for q in range(20):
        a(f"ds_read_b128 {(xf+4*q)(4)}, {v_xo} offset:{q*64}")
    a("s_setprio 3")
    a("s_barrier")
    stamp(a, "dmad")
    for q in range(20):
        for h in range(2):
            a(f"ds_read_b64_tr_b16 {(wf+4*q+2*h)(2)}, {v_wa} offset:{q*2048 + h*256}")
    a("s_waitcnt lgkmcnt(0)")
    a("s_barrier")
    stamp(a, "polled")
    for q in range(20):
        a(f"{MFMA} {pacc[q&1](4)}, {(wf+4*q)(4)}, {(xf+4*q)(4)}, {'0' if q < 2 else pacc[q&1](4)}")
    stamp(a, "xin")
    a("s_nop 7")
    for r in range(4):
        a(f"v_add_f32 {pacc[0]+r}, {pacc[0]+r}, {pacc[1]+r}")
    a("s_mov_b32 exec_lo, 0x00030003")
    a("s_mov_b32 exec_hi, 0x00030003")
    a(f"ds_write_b128 {v_pa}, {pacc[0](4)}")
    a("s_mov_b64 exec, 1")
    a(f"ds_add_u32 {v_gy}, {v_t1} offset:52")
    a("s_mov_b64 exec, -1")
    a(f"s_cmp_lg_u32 {s_w}, 6")
    a("s_cbranch_scc1 K_NOS6B")
    mb_sample(v_t2)
    a.label("K_NOS6B")
    fgate("P", 52, 8)
    hv = V.a(4)
    stamp(a, "pre")
    a(f"ds_read_b32 {hv}, {v_hs}")
    a(f"ds_read_b32 {hv+2}, {v_hs} offset:256")
    for q in range(7):
        for h in range(2):
            a(f"ds_read_b64_tr_b16 {(df+4*q+2*h)(2)}, {v_da} offset:{q*1024 + h*512}")
    a("s_waitcnt lgkmcnt(14)")
    bf16r(a, hv, hv)
    bf16r(a, hv + 2, hv + 2)
    sigmoid(a, hv + 1, hv, hv + 1)
    a(f"v_mul_f32 {hv}, {hv}, {hv+1}")
    bf16r(a, hv, hv)
    a(f"v_mul_f32 {hv}, {hv}, {hv+2}")
    a(f"v_cvt_pk_bf16_f32 {hv}, {hv}, {hv}")
    a(f"ds_write_b16 {v_hw}, {hv}")
    a("s_waitcnt lgkmcnt(0)")
    a(f"ds_read_b128 {hv(4)}, {v_hr}")
    for q in range(7, 10):
        for h in range(2):
            a(f"ds_read_b64_tr_b16 {(df+4*q+2*h)(2)}, {v_da} offset:{q*1024 + h*512}")
    a("s_waitcnt lgkmcnt(6)")
    for q in range(10):
        if q >= 7:
            a(f"s_waitcnt lgkmcnt({2 * (9 - q)})")
        a(f"{MFMA} {(xf+4*q)(4)}, {(df+4*q)(4)}, {hv(4)}, 0")
    a("s_mov_b32 exec_lo, 0x00030003")
    a("s_mov_b32 exec_hi, 0x00030003")
    for q in range(10):
        a(f"ds_write_b128 {v_yo}, {(xf+4*q)(4)} offset:{q*256}")
    a(f"v_mov_b32 {v_t1}, 1")
    a("s_mov_b64 exec, 1")
    a(f"ds_add_u32 {v_gy}, {v_t1} offset:52")
    a("s_mov_b64 exec, -1")
    stamp(a, "yl")
    a(f"s_cmp_lg_u32 {s_w}, 4")
    a("s_cbranch_scc1 K_P2")
    a(f"v_lshlrev_b32 {v_t1}, 4, {v_lane}")
    a(f"v_add_u32 {v_t2}, {WV}, {v_t1}")
    a(f"s_mul_i32 {s_so}, {s_j}, 5120")
    a(f"s_add_u32 {s_m0}, {s_so}, 4096")
    fgate("Q", 52, 12)
    for q in range(5):
        a(f"ds_read_b128 {(df+4*q)(4)}, {v_t2} offset:{q*1024}")
    for q in range(5):
        a(f"s_waitcnt lgkmcnt({4-q})")
        a(f"buffer_store_dwordx4 {(df+4*q)(4)}, {v_t1}, {sU(4)}, {s_so if q < 4 else s_m0} offen offset:{(q % 4)*1024} {SC_ST}")
    a(f"s_mov_b32 {s_tmp}, 1")
    a("s_waitcnt vmcnt(0)")
    stamp(a, "ydone")
    a(f"s_atomic_add {s_tmp}, {WS(2)}, {FL_OFF + YCNT} glc")
    a(f"ds_read_b64 {vk(2)}, {v_ka}")
    a("s_waitcnt lgkmcnt(0)")
    a(f"s_cmp_lg_u32 {s_tmp}, {NSL - 1}")
    a("s_cbranch_scc1 K_P2")
    for t in range(2):
        a(f"v_readfirstlane_b32 {s_so}, {vk+t}")
        a(f"s_and_b32 {s_so}, {s_so}, 0x7ff")
        a(f"s_sub_u32 {s_so}, 2047, {s_so}")
        a(f"s_lshr_b32 {s_so}, {s_so}, 7")
        a(f"s_mul_i32 {s_so}, {s_so}, 5120")
        for ct in range(10):
            a(f"s_atomic_add {s_tmp}, {WS(2)}, {s_so} offset:{FL_OFF + ct*512 + 136}")
    a("s_waitcnt lgkmcnt(0)")
    a("s_branch K_P2")
    seg_aux1 = len(a.lines)

    S.release(mS)
    V.release(mV)
    sG, sY = sW, S.a(4)
    s_sel = S.a(4)
    s_k1, s_k2, s_hi = S.many(3)
    assert S.next >= s_lhi
    sOut = S.a(4)
    s_so, s_tg, s_row0, s_c10 = S.many(4)
    RO = P("P2RO", 6)
    s_lo = S.many(RO)
    s_rem, s_bud = S.many(2)
    v_l3, v_g, v_xo, v_go, v_fa, v_da, v_sr, v_yb = V.many(8)
    xv = V.a(8)
    gv = V.many(2, 2)
    vsel = V.a(4)
    bx = V.a(16)
    mV3 = V.mark()
    RM = P("RMIX", 0)

    GOL = YB + 1024

    def epi_pre():
        L = []
        for i in range(8):
            L += [f"v_lshlrev_b32 {bx+2*i}, 16, {xv+i}", f"v_and_b32 {bx+2*i+1}, 0xffff0000, {xv+i}"]
        return L
    v_r, v_c, v_sw, v_wo = V.many(4)
    v_oo = V.many(2)
    PERM = [0, 2, 5, 7, 1, 3, 4, 6]
    HGT = [[8 * (u & 1) + PERM[4 * (u >> 1) + i] for i in range(4)] for u in range(4)]
    vn, va = V.many(2), V.many(2)
    v_ma, v_m = V.many(2)

    of = [V.many(2, 4) for _ in range(RO)]
    acc = V.many(2, 16)
    fb = [V.many(4, 4) for _ in range(3)]
    bxt = V.many(4, 2)

    def p2_common():
        a(f"s_lshl_b32 {s_row0}, {s_rt2}, 7")
        a(f"v_lshrrev_b32 {v_l3}, 3, {v_lane}")
        a(f"v_lshrrev_b32 {v_g}, 4, {v_lane}")
        a(f"v_mov_b32 {v_yb}, {YB}")
        a(f"s_lshl_b32 {s_tg}, {s_rt2}, 3")
        a(f"s_add_u32 {s_tg}, {s_tg}, {s_w}")
        a(f"s_mul_i32 {s_tmp}, {s_tg}, 20480")
        a(f"s_lshl_b32 {s_t2}, {s_ct}, 7")
        a(f"s_add_u32 {s_tmp}, {s_tmp}, {s_t2}")
        a(f"v_and_b32 {v_t0}, 7, {v_lane}")
        a(f"v_lshlrev_b32 {v_t0}, 4, {v_t0}")
        a(f"v_mul_u32_u24 {v_t2}, 1280, {v_l3}")
        a(f"v_add3_u32 {v_xo}, {v_t0}, {v_t2}, {s_tmp}")
        a(f"s_lshl_b32 {s_tmp}, {s_w}, 7")
        a(f"s_add_u32 {s_tmp}, {s_tmp}, {GOL}")
        a(f"v_lshl_add_u32 {v_go}, {v_l3}, 3, {s_tmp}")
        a(f"s_mov_b32 {s_c10}, 10240")
        srd(a, sO, WS, O_BYTES, O_OFF)
        srd(a, sOut, s_po, X_BYTES)
        a(f"v_mul_u32_u24 {v_t1}, {SP}, {v_l3}")
        a(f"v_add_u32 {v_t1}, {v_t0}, {v_t1}")
        a(f"s_mul_i32 {s_tmp}, {s_w}, {16*SP}")
        a(f"s_add_u32 {s_tmp}, {s_tmp}, {STG}")
        a(f"v_add_u32 {v_sr}, {s_tmp}, {v_t1}")

    def p2_gemm_setup():
        a(f"v_bfe_u32 {v_r}, {v_lane}, 2, 2")
        a(f"v_and_b32 {v_c}, 3, {v_lane}")
        a(f"s_add_u32 {s_tmp}, {s_tg}, {s_w}")
        a(f"s_lshr_b32 {s_t2}, {s_tmp}, 2")
        a(f"s_mul_i32 {s_t2}, {s_t2}, {80 - 4}")
        a(f"s_add_u32 {s_tmp}, {s_tmp}, {s_t2}")
        a(f"s_lshl_b32 {s_tmp}, {s_tmp}, 10")
        a(f"v_and_b32 {v_t0}, 15, {v_lane}")
        a(f"v_lshl_add_u32 {v_t0}, {v_t0}, 4, {s_tmp}")
        a(f"v_lshrrev_b32 {v_t1}, 5, {v_lane}")
        a(f"v_lshl_add_u32 {v_t0}, {v_t1}, 8, {v_t0}")
        a(f"v_and_b32 {v_t2}, 1, {v_g}")
        a(f"v_lshl_add_u32 {v_oo[0]}, {v_t2}, 10, {v_t0}")
        a(f"v_mov_b32 {v_oo[1]}, 0x1f000")
        assert WO_L == 0
        a(f"v_lshl_add_u32 {v_t0}, {v_t1}, 3, {v_r}")
        a(f"v_lshlrev_b32 {v_t0}, 7, {v_t0}")
        a(f"v_lshl_add_u32 {v_t0}, {v_c}, 3, {v_t0}")
        a(f"v_lshl_add_u32 {v_t0}, {v_t2}, 5, {v_t0}")
        a(f"v_lshrrev_b32 {v_t2}, 1, {v_r}")
        a(f"v_lshl_add_u32 {vn[0]}, {v_t2}, 6, {v_t0}")
        a(f"v_xor_b32 {vn[1]}, 64, {vn[0]}")
        a(f"v_mov_b32 {va[0]}, {vn[0]}")
        a(f"v_mov_b32 {va[1]}, {vn[0]}")
        a(f"v_and_b32 {v_t0}, 31, {v_lane}")
        a(f"v_mul_u32_u24 {v_t0}, {SP}, {v_t0}")
        a(f"v_lshl_add_u32 {v_t0}, {v_t1}, 3, {v_t0}")
        a(f"s_mul_i32 {s_tmp}, {s_w}, {32*SP}")
        a(f"s_add_u32 {s_tmp}, {s_tmp}, {STG}")
        a(f"v_add_u32 {v_sw}, {s_tmp}, {v_t0}")

    def p2_gemm_setup2():
        a(f"s_lshl_b32 {s_tmp}, {s_rt2}, 3")
        a(f"s_mul_i32 {s_t2}, {s_tmp}, 187")
        a(f"s_lshr_b32 {s_t2}, {s_t2}, 11")
        a(f"s_add_u32 {s_t2}, {s_t2}, 1")
        a(f"s_mul_i32 {s_t2}, {s_t2}, 11")
        a(f"s_add_u32 {s_tmp}, {s_tg}, {s_w}")
        a(f"s_add_u32 {s_tmp}, {s_tmp}, 1")
        a(f"s_cmp_ge_u32 {s_tmp}, {s_t2}")
        a(f"s_cselect_b32 {s_so}, 24, 16")
        a(f"s_cmp_gt_u32 {s_tmp}, {s_t2}")
        a(f"s_cselect_b32 {s_so}, 20, {s_so}")
        a(f"v_add_u32 {v_ma}, {s_so}, {v_yb}")
        for r in range(RO):
            a(f"s_mov_b32 {s_lo[r]}, -1")
        a(f"s_mov_b32 {s_rem}, 0xfffff")
        a(f"s_mov_b32 {s_bud}, {SPIN}")
        for m in range(2):
            for e in range(16):
                a(f"v_mov_b32 {acc[m]+e}, 0")

    def lgate(name, off, val, sleep=0):
        a(f"s_mov_b32 {s_tmp}, {SPIN*8}")
        a.label(f"K_P2_G{name}")
        a(f"ds_read_b32 {v_t0}, {v_yb} offset:{off}")
        if sleep:
            a(f"s_sleep {sleep}")
        a(f"s_sub_u32 {s_tmp}, {s_tmp}, 1")
        a("s_waitcnt lgkmcnt(0)")
        a(f"v_readfirstlane_b32 {s_t2}, {v_t0}")
        a("s_nop 3")
        a(f"s_cselect_b32 {s_t2}, {val}, {s_t2}")
        a(f"s_cmp_lt_u32 {s_t2}, {val}")
        a(f"s_cbranch_scc1 K_P2_G{name}")

    def xloads():
        a(f"buffer_load_dwordx4 {xv(4)}, {v_xo}, {sX(4)}, 0 offen")
        a(f"buffer_load_dwordx4 {(xv+4)(4)}, {v_xo}, {sX(4)}, {s_c10} offen")

    a.label("K_P2_EARLY")
    p2_common()
    xloads()
    p2_gemm_setup()
    p2_gemm_setup2()
    if not SENT:
        a("s_waitcnt vmcnt(2)")
    a("s_barrier")
    stamp(a, "drained")
    a("s_branch K_P2_AUXW")
    a.label("K_P2_GM")
    GE = [int(x) for x in os.environ.get("GE", "").split(",") if x]
    early = {}
    for k, fn in enumerate((p2_common, p2_gemm_setup, p2_gemm_setup2, lambda: warm_call("K_WRET_B", "B"))):
        n0 = len(a.lines)
        if k < len(GE):
            a(f"s_cmp_eq_u32 {s_n}, -1")
            a(f"s_cbranch_scc1 K_GS{k}")
        fn()
        if k < len(GE):
            a.label(f"K_GS{k}")
            early.setdefault(GE[k], []).extend(a.lines[n0:])
            del a.lines[n0:]
        if k == P("WLK", 1) and P("WLM", 0) == 1:
            wo_blocks(v_wv, s_w, 1, s_k1, s_k2, s_so)
        if k == 2:
            xloads()
    assert V.next <= 216
    stamp(a, "g2")
    a(f"v_mov_b32 {v_t1}, 1")
    a("s_waitcnt vmcnt(2)")
    stamp(a, "g3")
    a("s_mov_b64 exec, 1")
    a(f"ds_add_u32 {v_yb}, {v_t1} offset:44")
    a("s_mov_b64 exec, -1")
    lgate("WM", 44, 4, 1)
    if P("WLM", 0) < 2:
        a(f"ds_write_b32 {v_yb}, {v_yb} offset:56")
    a.label("K_P2_GEMM")
    a(f"s_setprio {P('GPRIO', 1)}")
    stamp(a, "p2in")
    spin, drain = Asm(), Asm()
    s_rdy, s_p = s_sel + 2, s_sel + 3
    assert RO % 3 == 0
    def pub_consts():
        a(f"s_mul_i32 {s_k1}, {s_rt2}, {8*187}")
        a(f"s_add_u32 {s_k2}, {s_k1}, {7*187}")
        a(f"s_lshr_b32 {s_k1}, {s_k1}, 11")
        a(f"s_lshr_b32 {s_k2}, {s_k2}, 11")
        a(f"s_sub_u32 {s_k2}, {s_k2}, {s_k1}")
        a(f"s_mov_b32 {sY+2}, 0x84210")
        a(f"s_mov_b32 {sY+3}, {sY+2}")

    pub_consts()
    a("s_waitcnt vmcnt(0)")
    for l in epi_pre():
        a(l)
    if P("P2LOG", 0):
        a("s_mov_b32 m0, 0")
        a("s_memrealtime s[80:81]")
        V.high = 256
    a("s_branch K_SPL")
    for r in range(RO):
        c, n = (r + 1) % RO, (r + 2) % RO
        rd = [f"ds_read_b64_tr_b16 {(fb[(c+2) % 3][t]+2*h)(2)}, {va[t >> 1]} offset:{(t & 1)*2048 + h*512}" for t in range(4) for h in range(2)]
        refresh = [f"ds_read_b32 {v_m}, {v_ma}", "s_waitcnt lgkmcnt(0)", f"v_readfirstlane_b32 {s_rdy}, {v_m}"]
        sand = f"s_and_b32 {s_t2}, {s_rdy}, {s_rem}"
        ff1 = f"s_ff1_i32_b32 {s_p}, {s_t2}"
        shl = f"s_lshl_b32 {s_lo[r]}, {s_p}, 12"
        clr = f"s_bitset0_b32 {s_rem}, {s_p}"
        ld = [f"buffer_load_dwordx4 {of[r][m](4)}, {v_oo[0]}, {sO(4)}, {s_lo[r]} offen offset:{m*512} {SC_LD}" for m in range(2)]
        dl = f"buffer_load_dword {v_t1}, {v_oo[0]}, {sO(4)}, {s_lo[r]} offen"
        nul = [f"s_mov_b32 {s_lo[r]}, -1", f"v_mov_b32 {of[r][0]}, -1"]
        ad = [f"v_and_or_b32 {va[t]}, {s_lo[(c+3) % RO]}, {v_oo[1]}, {vn[t]}" for t in range(2)]
        mm = [f"v_mfma_f32_32x32x16_bf16 {acc[nh](16)}, {fb[c % 3][2*nh + kh](4)}, {of[c][kh](4)}, {acc[nh](16)}"
              for nh, kh in ((0, 0), (1, 0), (0, 1), (1, 1))]
        a.label(f"K_IT{r}")
        if P("P2LOG", 0):
            a("v_writelane_b32 v251, s80, m0")
            a("s_memrealtime s[80:81]")
            a(f"v_writelane_b32 v252, {s_lo[c]}, m0")
            a(f"v_writelane_b32 v253, {s_rdy}, m0")
            a(f"v_writelane_b32 v250, {s_bud}, m0")
            a("s_add_u32 m0, m0, 1")
        pre = [refresh[0]] if P("MPF", 0) and r % P("MPF", 0) == 0 else []
        for l in [mm[0]] + pre + [rd[0], rd[1], sand, f"s_cbranch_scc0 K_RF{r}"]:
            a(l)
        a.label(f"K_RB{r}")
        for l in [ff1, rd[2], mm[1], clr, shl, ld[0], rd[3], rd[4], mm[2], ld[1], rd[5], rd[6], rd[7], mm[3]]:
            a(l)
        a.label(f"K_TL{r}")
        a(f"s_waitcnt vmcnt({2*(RO-2)}) lgkmcnt(8)")
        a(f"v_cmp_u_f32 vcc, {of[n][0]}, {of[n][1]}")
        for l in ad:
            a(l)
        a(f"s_cbranch_vccnz K_FX{c}")
        if r == RO - 1:
            a("s_branch K_IT0")
        drain.label(f"K_DR{r}")
        for l in [mm[0], rd[0], rd[1]]:
            drain(l)
        drain.label(f"K_DM{r}")
        for l in [rd[2], nul[0], mm[1], dl, rd[3], rd[4], mm[2], dl, rd[5], rd[6], rd[7], mm[3]]:
            drain(l)
        drain(f"s_waitcnt vmcnt({2*(RO-2)}) lgkmcnt(8)")
        drain(f"v_cmp_u_f32 vcc, {of[n][0]}, {of[n][1]}")
        for l in ad + [nul[1]]:
            drain(l)
        drain(f"s_cbranch_vccnz K_DX{c}")
        if r == RO - 1:
            drain("s_branch K_DR0")
        spin.label(f"K_RF{r}")
        spin(f"s_cmp_eq_u32 {s_rem}, 0")
        spin(f"s_cbranch_scc1 K_DM{r}")
        if P("MPF", 0):
            for l in [refresh[2], sand]:
                spin(l)
            spin(f"s_cbranch_scc1 K_RB{r}")
        for l in refresh + [sand]:
            spin(l)
        spin(f"s_cbranch_scc1 K_RB{r}")
        spin.label(f"K_NV{r}")
        for l in [rd[2], mm[1]] + nul + [dl, rd[3], rd[4], mm[2], dl, rd[5], rd[6], rd[7], mm[3]]:
            spin(l)
        spin(f"s_branch K_TL{r}")
        spin.label(f"K_DX{r}")
        live = [s_lo[j] for j in range(RO) if j not in (r, (r - 1) % RO)]
        spin(f"s_and_b32 {s_p}, {live[0]}, {live[1]}")
        for o in live[2:]:
            spin(f"s_and_b32 {s_p}, {s_p}, {o}")
        spin(f"s_cmp_lt_i32 {s_p}, 0")
        spin("s_cbranch_scc1 K_P2_MM")
        spin.label(f"K_FX{r}")
        spin(f"s_cmp_lt_i32 {s_lo[c]}, 0")
        spin(f"s_cbranch_scc1 K_SK{r}")
        spin(f"v_max_u32 {v_t0}, {of[c][0]}, {of[c][1]}")
        spin(f"v_cmp_eq_u32 vcc, -1, {v_t0}")
        spin(f"s_cbranch_vccz K_IT{r}")
        spin(f"s_sub_u32 {s_bud}, {s_bud}, 1")
        spin(f"s_cbranch_scc1 K_IT{r}")
        spin(f"s_lshr_b32 {s_p}, {s_lo[c]}, 12")
        spin(f"s_bitset1_b32 {s_rem}, {s_p}")
        spin.label(f"K_SK{r}")
        spin(sand)
        spin(f"s_cbranch_scc0 K_NUL{r}")
        spin.label(f"K_BK{r}")
        for l in [ff1, shl] + ld + [clr]:
            spin(l)
        spin.label(f"K_RD{r}")
        for l in rd:
            spin(l)
        spin(f"s_cmp_lt_i32 {s_lo[n]}, 0")
        spin(f"s_cbranch_scc0 K_TL{r}")
        for l in ad:
            spin(l)
        spin(f"s_branch K_SK{c}")
        spin.label(f"K_NUL{r}")
        oth = [s_lo[j] for j in range(RO) if j not in (r, c)]
        spin(f"s_and_b32 {s_p}, {oth[0]}, {oth[1]}")
        for o in oth[2:]:
            spin(f"s_and_b32 {s_p}, {s_p}, {o}")
        spin(f"s_cmp_lt_i32 {s_p}, 0")
        spin(f"s_cbranch_scc0 K_PC{r}")
        spin(f"s_cmp_eq_u32 {s_rem}, 0")
        spin("s_cbranch_scc1 K_P2_MM")
        spin("s_branch K_SPN")
        spin.label(f"K_PC{r}")
        spin(f"s_cmp_eq_u32 {s_rem}, 0")
        spin(f"s_cbranch_scc1 K_NI{r}")
        for _ in range(P("NPACE", 2)):
            for l in refresh + [sand]:
                spin(l)
            spin(f"s_cbranch_scc1 K_BK{r}")
        spin.label(f"K_NI{r}")
        for l in nul + [dl, dl]:
            spin(l)
        spin(f"s_branch K_RD{r}")
    if P("SPNEAR", 1):
        a.lines += drain.lines + spin.lines
        spin.lines = []
    a.label("K_P2_MM")
    seg_f0 = seg_f1 = len(a.lines)
    stamp(a, "p2mm")
    if P("P2LOG", 0):
        a("s_lshl_b32 s80, s2, 2")
        a(f"s_add_u32 s80, s80, {s_w}")
        a("s_lshl_b32 s80, s80, 10")
        a("s_add_u32 s80, s80, 0x%x" % (STAMP_OFF + 0x100000))
        a(f"v_lshl_add_u32 v254, {v_lane}, 4, s80")
        a(f"global_store_dwordx4 v254, v[250:253], {WS(2)}")
    for nh in range(2):
        for jq in range(4):
            tr = bxt[jq]
            a(f"v_cvt_pk_bf16_f32 {tr}, {acc[nh]+4*jq}, {acc[nh]+4*jq+1}")
            a(f"v_cvt_pk_bf16_f32 {tr+1}, {acc[nh]+4*jq+2}, {acc[nh]+4*jq+3}")
            a(f"ds_write_b64 {v_sw}, {tr(2)} offset:{nh*64 + jq*16}")

    seg_h0 = len(a.lines)
    a.label("K_P2")
    a(f"s_cmp_ge_u32 {s_w}, 4")
    a("s_cbranch_scc1 K_P2_HELP")
    p2_common()
    xloads()
    p2_gemm_setup()
    p2_gemm_setup2()
    a.label("K_P2_AUXW")
    wo_voff(v_wo)

    def dn_done():
        a(f"v_mov_b32 {v_t1}, 1")
        a("s_mov_b64 exec, 1")
        a(f"ds_add_u32 {v_yb}, {v_t1} offset:52")
        a("s_mov_b64 exec, -1")

    wo_blocks(v_wo, s_w, 0, s_k1, s_k2, s_so, P("THR", 6), dn_done)
    warm_call("K_WRET_A", "A")
    a(f"v_mov_b32 {v_t1}, 1")
    a("s_waitcnt vmcnt(0)")
    a("s_mov_b64 exec, 1")
    a(f"ds_add_u32 {v_yb}, {v_t1} offset:44")
    a("s_mov_b64 exec, -1")
    lgate("WA", 44, 4)
    a("s_branch K_P2_GEMM")
    V.release(mV3)
    a.label("K_P2_HELP")
    a(f"s_setprio {P('HPRIO', 3)}")
    a(f"s_cmp_eq_u32 {s_w}, 7")
    a("s_cbranch_scc1 K_P2_W7")
    a(f"s_cmp_eq_u32 {s_w}, 4")
    a("s_cbranch_scc1 K_P2_NL")
    if P("WLM", 0) < 2:
        a(f"s_cmp_ge_u32 {s_i}, 8")
        a("s_cbranch_scc1 K_P2_NL")
    if P("WLH", 0):
        a(f"s_sleep {P('WLH', 0)}")
    srd(a, sWO, s_pwo, 640 * 1280)
    wo_voff(v_fa)
    a(f"s_sub_u32 {s_tg}, {s_w}, 5")
    wo_blocks(v_fa, s_tg, 1, s_k1, s_k2, s_so, P("THR2", 0))
    a(f"s_add_u32 {s_tg}, {s_tg}, 2")
    wo_blocks(v_fa, s_tg, 1, s_k1, s_k2, s_so, P("THR2", 0))
    a(f"v_mov_b32 {v_t0}, {YB}")
    a(f"v_mov_b32 {v_t1}, 1")
    a("s_waitcnt vmcnt(0)")
    stamp(a, "wl")
    a("s_mov_b64 exec, 1")
    a(f"ds_add_u32 {v_t0}, {v_t1} offset:56")
    a("s_mov_b64 exec, -1")
    a.label("K_P2_NL")
    p2_common()
    srd(a, sY, WS, YP_BYTES, YP_OFF)
    vs = V.a(4)
    yq = V.many(14, 4)
    v_one = V.a()
    a(f"v_mov_b32 {v_one}, 1")
    xloads()
    a(f"s_cmp_lg_u32 {s_w}, 6")
    a("s_cbranch_scc1 K_P2_HW")
    a(f"s_mov_b32 {s_tmp}, {SPIN}")
    a("s_waitcnt vmcnt(2)")
    a.label("K_P2_DPOLL")
    a(f"v_min_u32 {v_t0}, {v_smp}, {v_pf}")
    a(f"v_cmp_eq_u32 vcc, 0, {v_t0}")
    a("s_cbranch_vccz K_P2_DOK")
    a(f"s_cmp_eq_u32 {s_tmp}, {SPIN}")
    a("s_cbranch_scc1 K_P2_DNS")
    a(f"s_sleep {P('DSLEEP', 12)}")
    a.label("K_P2_DNS")
    mb_sample(v_da)
    a(f"s_sub_u32 {s_tmp}, {s_tmp}, 1")
    a("s_waitcnt vmcnt(0)")
    a(f"s_cmp_lg_u32 {s_tmp}, 0")
    a("s_cbranch_scc1 K_P2_DPOLL")
    a.label("K_P2_DOK")
    a(f"v_readlane_b32 {s_k1}, {v_pf}, 0")
    a(f"v_readlane_b32 {s_k2}, {v_pf}, 1")
    a("s_nop 1")
    for t, sk in enumerate((s_k1, s_k2)):
        a(f"s_and_b32 {s_tmp}, {sk}, 0x7ff")
        a(f"s_sub_u32 {s_tmp}, 2047, {s_tmp}")
        a(f"v_mov_b32 {vs+t}, {s_tmp}")
        a(f"v_mov_b32 {v_t2}, {sk}")
        a(f"v_and_b32 {v_t2}, 0xffff0000, {v_t2}")
        a(f"v_ashrrev_i32 {v_t3}, 31, {v_t2}")
        a(f"v_not_b32 {v_t3}, {v_t3}")
        a(f"v_or_b32 {v_t3}, 0x80000000, {v_t3}")
        a(f"v_xor_b32 {v_t2}, {v_t2}, {v_t3}")
        a(f"v_and_b32 {v_t2}, 0xffff0000, {v_t2}")
        sigmoid(a, v_t2, v_t2, v_t3)
        bf16r(a, vs + 2 + t, v_t2)
    a(f"ds_write_b128 {v_yb}, {vs(4)}")
    a(f"ds_write_b32 {v_yb}, {v_one} offset:40")
    a(f"v_lshl_add_u32 {v_da}, {v_lane}, 4, {v_yb}")
    a(f"v_lshlrev_b32 {yq[0]}, 16, {v_smp}")
    a(f"v_and_b32 {yq[0]}, 0x7fff0000, {yq[0]}")
    a(f"v_and_b32 {yq[0]+2}, 0x7fff0000, {v_smp}")
    for e in (0, 2):
        a(f"v_sub_f32 {yq[0]+e+1}, 1.0, {yq[0]+e}")
        bf16r(a, yq[0] + e + 1, yq[0] + e + 1)
    a(f"ds_write_b128 {v_da}, {yq[0](4)} offset:{GOL - YB}")
    a("s_branch K_P2_E")
    a.label("K_P2_HW")
    lgate("S2", 40, 1, 1)
    a(f"ds_read_b128 {vsel(4)}, {v_yb}")
    a("s_waitcnt lgkmcnt(0)")
    a(f"s_cmp_eq_u32 {s_w}, 4")
    a("s_cselect_b64 vcc, -1, 0")
    a("s_nop 1")
    a(f"v_cndmask_b32 {v_t0}, {vsel+1}, {vsel}, vcc")
    a(f"v_cndmask_b32 {v_t3}, {vsel+3}, {vsel+2}, vcc")
    a("s_nop 0")
    a(f"v_readfirstlane_b32 {s_k1}, {v_t0}")
    a("s_nop 3")
    a(f"s_sub_u32 {s_tmp}, {s_k1}, {s_row0}")
    a(f"s_cmp_lt_u32 {s_tmp}, 128")
    a("s_cbranch_scc0 K_P2_E")
    a(f"s_mov_b32 {s_tmp}, {SPIN}")
    a.label("K_P2_YPOLL")
    a(f"s_load_dword {s_t2}, {WS(2)}, {s_mb} offset:136 glc")
    a("s_waitcnt lgkmcnt(0)")
    a(f"s_cmp_lg_u32 {s_t2}, 0")
    a("s_cbranch_scc1 K_P2_YGO")
    a(f"s_sleep {P('YSLEEP', 4)}")
    a(f"s_sub_u32 {s_tmp}, {s_tmp}, 1")
    a("s_cbranch_scc0 K_P2_YPOLL")
    a.label("K_P2_YGO")
    a(f"v_and_b32 {v_t0}, 15, {v_lane}")
    a(f"v_lshlrev_b32 {v_t0}, 4, {v_t0}")
    a(f"v_mul_u32_u24 {v_t2}, 5120, {v_g}")
    a(f"s_sub_u32 {s_k2}, {s_w}, 4")
    a(f"s_mul_i32 {s_t2}, {s_k2}, 2560")
    a(f"s_lshl_b32 {s_tmp}, {s_ct}, 8")
    a(f"s_add_u32 {s_tmp}, {s_tmp}, {s_t2}")
    a(f"v_add3_u32 {v_t1}, {v_t0}, {v_t2}, {s_tmp}")
    NQ = (NSL + 3) // 4
    for q in range(NQ):
        a(f"s_mov_b32 {s_so}, {q*20480}")
        a(f"buffer_load_dwordx4 {yq[q](4)}, {v_t1}, {sY(4)}, {s_so} offen {SC_LD}")
    for q in range(1, NQ):
        a(f"s_waitcnt vmcnt({NQ-1-q})")
        for e in range(4):
            a(f"v_add_f32 {vs+e}, {(vs if q > 1 else yq[0])+e}, {yq[q]+e}")
    for swap in ("v_permlane16_swap_b32", "v_permlane32_swap_b32"):
        for e in range(4):
            a(f"v_mov_b32 {yq[0]+e}, {vs+e}")
        a("s_nop 0")
        for e in range(4):
            a(f"{swap} {vs+e}, {yq[0]+e}")
        for e in range(4):
            a(f"v_add_f32 {vs+e}, {vs+e}, {yq[0]+e}")
    for e in range(4):
        bf16r(a, vs + e, vs + e)
        a(f"v_mul_f32 {vs+e}, {v_t3}, {vs+e}")
        bf16r(a, vs + e, vs + e)
    a(f"s_lshl_b32 {s_tmp}, {s_k2}, 8")
    a(f"s_add_u32 {s_tmp}, {s_tmp}, {YB + 256}")
    a(f"v_add_u32 {v_t0}, {s_tmp}, {v_t0}")
    a(f"ds_write_b128 {v_t0}, {vs(4)}")
    a("s_branch K_P2_E")
    a.label("K_P2_W7")
    a(f"s_mov_b32 {s_fl}, {s_mb}")
    s_mm, s_tb, s_ma, s_tq = sY, sY + 2, s_sel, s_sel + 2
    a("s_waitcnt lgkmcnt(0)")
    a(f"s_load_dwordx2 {s_ma(2)}, {WS(2)}, {s_fl} glc")
    pub_consts()
    a(f"v_mov_b32 {v_yb}, {YB}")

    def publish():
        a(f"s_cmp_eq_u32 {s_k2}, 0")
        a(f"s_cselect_b32 {s_ma+1}, {s_ma}, {s_ma+1}")
        a(f"s_lshl_b64 {s_tq(2)}, {s_ma(2)}, 1")
        a(f"s_and_b64 {s_tq(2)}, {s_tq(2)}, {s_ma(2)}")
        a(f"s_lshl_b64 vcc, {s_tq(2)}, 2")
        a(f"s_and_b64 {s_tq(2)}, {s_tq(2)}, vcc")
        a(f"s_lshl_b64 {s_tq(2)}, {s_tq(2)}, 1")
        a(f"s_and_b64 {s_tq(2)}, {s_tq(2)}, {s_tb(2)}")
        a(f"s_or_b64 {s_ma(2)}, {s_ma(2)}, {s_tq(2)}")
        a(f"v_readfirstlane_b32 {s_k1}, {v_t3}")
        a(f"s_cmp_ge_u32 {s_k1}, 2")
        a(f"s_cselect_b32 {s_k1}, -1, 0x3ff")
        a(f"s_and_b32 {s_ma}, {s_ma}, {s_k1}")
        a(f"s_and_b32 {s_ma+1}, {s_ma+1}, {s_k1}")
        a(f"s_and_b32 {s_k1}, {s_ma}, {s_ma+1}")
        a(f"v_mov_b32 {vs}, {s_ma}")
        a(f"v_mov_b32 {vs+1}, {s_ma+1}")
        a(f"v_mov_b32 {vs+2}, {s_k1}")
        a("s_mov_b64 exec, 1")
        a(f"ds_or_b64 {v_yb}, {vs(2)} offset:16")
        a(f"ds_or_b32 {v_yb}, {vs+2} offset:24")
        a("s_mov_b64 exec, -1")

    a(f"v_mov_b32 {v_t3}, 0")
    a(f"v_mov_b32 {vs}, 0x80000000")
    a("s_mov_b64 exec, 1")
    for off in (16, 20, 24):
        a(f"ds_or_b32 {v_yb}, {vs} offset:{off}")
    a("s_waitcnt lgkmcnt(0)")
    publish()
    a(f"s_load_dwordx2 {s_ma(2)}, {WS(2)}, {s_fl} glc")
    stamp(a, "fin")

    p2_common()
    xloads()
    a(f"s_mov_b32 {s_tmp}, {SPIN}")
    a("s_waitcnt lgkmcnt(0)")
    if P("PIPE", 1):
        a.label("K_P2_FP")
        a(f"s_load_dwordx2 {s_mm(2)}, {WS(2)}, {s_fl} glc")
        publish()
        a(f"ds_read_b32 {v_t3}, {v_yb} offset:56")
        a(f"s_cmp_eq_u32 {s_k1}, 0xfffff")
        a("s_cbranch_scc1 K_P2_FGO")
        a(f"s_cmp_lg_u64 {s_ma(2)}, 0")
        a("s_cbranch_scc1 K_P2_FS2")
        a(f"s_sleep {P('FSLEEP0', 8)}")
        a.label("K_P2_FS2")
        a(f"s_sub_u32 {s_tmp}, {s_tmp}, 1")
        a("s_waitcnt lgkmcnt(0)")
        a(f"s_mov_b64 {s_ma(2)}, {s_mm(2)}")
        a("s_cbranch_scc0 K_P2_FP")
        a(f"s_mov_b32 {s_tmp}, 0")
    a.label("K_P2_FCHK")
    publish()
    a(f"s_cmp_eq_u32 {s_k1}, 0xfffff")
    a("s_cbranch_scc1 K_P2_FGO")
    a(f"s_cmp_lg_u64 {s_ma(2)}, 0")
    a("s_cbranch_scc1 K_P2_FS")
    a(f"s_sleep {P('FSLEEP0', 8)}")
    a.label("K_P2_FS")
    a(f"s_sleep {P('FSLEEP', 2)}")
    a(f"s_load_dwordx2 {s_ma(2)}, {WS(2)}, {s_fl} glc")
    a(f"ds_read_b32 {v_t3}, {v_yb} offset:56")
    a(f"s_sub_u32 {s_tmp}, {s_tmp}, 1")
    a("s_waitcnt lgkmcnt(0)")
    a("s_cbranch_scc0 K_P2_FCHK")
    for e in range(3):
        a(f"v_mov_b32 {vs+e}, -1")
    a(f"ds_write_b96 {v_yb}, {vs(3)} offset:16")
    a.label("K_P2_FGO")
    stamp(a, "fgo")
    a.label("K_P2_E")
    a("s_setprio 0")
    a("s_waitcnt vmcnt(0)")
    for l in epi_pre():
        a(l)
    a("s_branch K_P2_E2")
    a.label("K_SPN")
    for r in range(RO):
        a(f"s_mov_b32 {s_lo[r]}, -1")
    vs = bxt[0]
    a.label("K_SPL")
    for l in refresh + [sand]:
        a(l)
    a("s_cbranch_scc1 K_BK0")
    a(f"s_cmp_lt_i32 {s_rdy}, 0")
    a("s_cbranch_scc0 K_SPG")
    a(f"s_sleep {P('SSLEEP', 1)}")
    a("s_branch K_SPL")
    a.label("K_SPG")
    a(f"s_load_dwordx2 {s_ma(2)}, {WS(2)}, {s_mb} glc")
    a(f"ds_read_b32 {v_t3}, {v_yb} offset:56")
    a("s_waitcnt lgkmcnt(0)")
    publish()
    for l in refresh + [sand]:
        a(l)
    a("s_cbranch_scc1 K_BK0")
    for k in range(P("GSN", 3)):
        a(f"s_sleep {P('GSLEEP', 2)}")
        for l in refresh + [sand]:
            a(l)
        a("s_cbranch_scc1 K_BK0")
    a("s_branch K_SPL")
    seg_h1 = len(a.lines)

    V.release(mV3)
    a.label("K_P2_E2")
    if P("EPRIO", -1) >= 0:
        a(f"s_setprio {P('EPRIO', -1)}")
    av = V.a(8)
    yt = V.a(12)
    ta = V.a(4)
    a("s_waitcnt vmcnt(0) lgkmcnt(0)")
    s_r16 = S.a()
    a(f"s_lshl_b32 {s_r16}, {s_tg}, 4")
    a("s_barrier")
    stamp(a, "p2e")
    a(f"ds_read_b64 {vsel(2)}, {v_yb}")
    a(f"ds_read_b64 {gv[0](2)}, {v_go}")
    a(f"ds_read_b128 {av(4)}, {v_sr}")
    a(f"ds_read_b64 {gv[1](2)}, {v_go} offset:64")
    a(f"ds_read_b128 {(av+4)(4)}, {v_sr} offset:{8*SP}")
    a("s_waitcnt lgkmcnt(4)")
    for k in range(2):
        a(f"v_readfirstlane_b32 {s_sel+k}, {vsel+k}")
    rare = Asm()
    for t in range(2):
        a(f"s_sub_u32 {s_tmp}, {s_sel+t}, {s_r16}")
        a(f"s_cmp_lt_u32 {s_tmp}, 16")
        a(f"s_cbranch_scc1 K_YROW{t}")
        a.label(f"K_NOY{t}")
        r_ = rare
        r_.label(f"K_YROW{t}")
        r_(f"v_and_b32 {v_t0}, 7, {v_lane}")
        r_(f"v_lshlrev_b32 {v_t0}, 5, {v_t0}")
        r_(f"v_add_u32 {v_t0}, {YB + 256 + t*256}, {v_t0}")
        r_(f"ds_read_b128 {yt(4)}, {v_t0}")
        r_(f"ds_read_b128 {(yt+4)(4)}, {v_t0} offset:16")
        r_(f"s_and_b32 {s_t2}, {s_tmp}, 7")
        r_(f"v_cmp_eq_u32 vcc, {s_t2}, {v_l3}")
        r_(f"s_cmp_ge_u32 {s_tmp}, 8")
        r_(f"s_cbranch_scc1 K_YR1_{t}")
        for j in range(2):
            if j:
                r_.label(f"K_YR1_{t}")
            r_("s_waitcnt lgkmcnt(0)")
            for i in range(8):
                tt_ = yt + 8 + (i & 3)
                r_(f"v_add_f32 {tt_}, {bx+8*j+i}, {yt+i}")
                bf16r(r_, tt_, tt_)
                r_(f"v_cndmask_b32 {bx+8*j+i}, {bx+8*j+i}, {tt_}, vcc")
            r_(f"s_branch K_NOY{t}")
    OSC = [os.environ.get("OUT_SC%d" % j, "sc1").replace("_", " ") for j in range(2)]
    for j in range(2):
        a(f"s_waitcnt lgkmcnt({3-2*j})")
        for i in range(4):
            b_ = bx + 8 * j + 2 * i
            a(f"v_pk_mul_f32 {b_(2)}, {b_(2)}, {gv[j](2)} op_sel:[0,1] op_sel_hi:[1,1]")
        a(f"s_waitcnt lgkmcnt({2-2*j})")
        for i in range(4):
            r = av + 4 * j + i
            t = ta + 2 * (i & 1)
            a(f"v_lshlrev_b32 {t}, 16, {r}")
            a(f"v_and_b32 {t+1}, 0xffff0000, {r}")
            a(f"v_pk_fma_f32 {t(2)}, {t(2)}, {gv[j](2)}, {(bx+8*j+2*i)(2)} op_sel_hi:[1,0,1]")
            a(f"v_cvt_pk_bf16_f32 {r}, {t}, {t+1}")
        a(f"buffer_store_dwordx4 {(av+4*j)(4)}, {v_xo}, {sOut(4)}, {'0' if j == 0 else s_c10} offen {OSC[j]}")
    if P("ENDW", 0):
        stamp(a, "st")
        a("s_waitcnt vmcnt(0)")
    a.label("K_END")
    stamp_flush(a, 0, WS, "K_STX")
    a.label("K_EXIT")
    a("s_endpgm")
    L = a.lines
    a.lines = L[:seg_aux0] + L[seg_aux1:seg_f0] + L[seg_f1:seg_h0] + L[seg_h1:] + rare.lines + spin.lines + L[seg_f0:seg_f1] \
        + L[seg_h0:seg_h1]
    a.label("K_CHEND")
    a.lines += L[seg_aux0:seg_aux1]
    a.label("K_CODE_END")
    L = []
    for l in a.lines:
        L += early.get(int(l[3:]), []) if l.startswith("@@G") else [l]
    a.lines = L
    return V.high, S.high


def kd(name, vg, sg):
    vg = (vg + 7) // 8 * 8
    return """.amdhsa_kernel %s
  .amdhsa_next_free_vgpr %d
  .amdhsa_next_free_sgpr %d
  .amdhsa_accum_offset %d
  .amdhsa_group_segment_fixed_size 0
  .amdhsa_kernarg_size 96
  .amdhsa_user_sgpr_count 2
  .amdhsa_user_sgpr_kernarg_segment_ptr 1
  .amdhsa_system_sgpr_workgroup_id_x 1
.end_amdhsa_kernel""" % (name, vg, 100 if STAMP else max(sg, 16), vg)


ENTRY_OFF = 0x300


def is_instr(l):
    return l.startswith("    ") and not l.strip().startswith(";")


def sizes_of(head, body, tail):
    import subprocess, tempfile, re
    fix = ["K_CH%s%d:" % (c, k) for k in range(4) for c in "MABF"] + ["K_CPL = 32"]
    with tempfile.TemporaryDirectory() as d:
        open(d + "/t.s", "w").write("\n".join(head + body + fix + ["s_endpgm"] + tail) + "\n")
        subprocess.run(["clang", "-x", "assembler", "-target", "amdgcn-amd-amdhsa", "-mcpu=gfx950", "-c",
                        d + "/t.s", "-o", d + "/t.o"], check=True)
        dis = subprocess.run(["llvm-objdump", "-d", d + "/t.o"], capture_output=True, text=True, check=True).stdout
    addrs = [int(m.group(1), 16) for m in re.finditer(r"// ([0-9A-F]{12}):", dis)]
    n = sum(map(is_instr, body))
    assert len(addrs) == n + 1, (len(addrs), n)
    return [addrs[i + 1] - addrs[i] for i in range(n)]


def layout(head, body, tail):
    sz = sizes_of(head, body, tail)
    out, stubs = [], []
    addr, last, k = ENTRY_OFF, ENTRY_OFF, 0
    dead, on, D1, DF = False, False, P("WD1", 512), P("WDF", 0)
    AL = {}
    for it in os.environ.get("ALIGN", "").split(","):
        if it:
            nm_, md, rm = it.split(":")
            AL[nm_] = (int(md), int(rm))
    for idx, l in enumerate(body):
        if l.startswith("K_LOADER:"):
            on = bool(P("WARM", 1))
        if l.startswith("K_CHEND:"):
            on = False
            nm = len(stubs)
        if l.startswith("K_KW2:"):
            on = True
            DF = 960
        if l.startswith("K_P2_EARLY:"):
            DF = P("WDF2", 0)
            a0 = len(stubs)
        if l[:-1] in AL:
            md, rm = AL[l[:-1]]
            while addr % md != rm:
                out.append("    s_nop 0")
                addr += 4
        if not is_instr(l):
            if l.endswith(":") and dead and on and addr - last >= D1 and (addr & 4095) <= 4096 - 64 and not l.startswith(("K_WRET", "K_CONS", "K_YR", "K_NOLT", "K_LOADER", "K_KW2", "K_CODE_END", "K_IT0", "K_DR0")):
                out.append(("stub", len(stubs))); stubs.append(addr); last = addr; addr += 8
            if l.endswith(":"):
                dead = False
            out.append(l)
            continue
        n = sz[k]; k += 1
        if (addr & 4095) + n + 4 > 4096 and P("WPAGE", 1):
            lab = "K_PG%d" % (addr >> 12)
            out.append("    s_branch " + lab)
            out.append(".p2align 12")
            addr = (addr + 4 + 4095) & ~4095
            if on:
                out.append(("stub", len(stubs))); stubs.append(addr); addr += 8
            last = addr
            out.append(lab + ":")
        elif DF and on and addr - last >= DF and (addr & 4095) < 4096 - 64:
            lab = "K_J%x" % addr
            out.append("    s_branch " + lab)
            out.append(("stub", len(stubs))); stubs.append(addr + 4); last = addr + 4; addr += 12
            out.append(lab + ":")
        out.append(l)
        addr += n
        op = l.split()[0]
        dead = op in ("s_branch", "s_endpgm")
    res = []
    ns = nm
    assert len(stubs) - nm >= 2
    for o in out:
        if isinstance(o, tuple):
            j = o[1]
            if j >= nm:
                if j - nm < 2:
                    res.append("K_CHF%d:" % (j - nm))
                res.append("K_STF%d:" % j)
                res.append("    s_branch " + ("K_STF%d" % (j + 2) if j + 2 < len(stubs) else "K_WRET_F"))
                res.append("    s_nop 0")
                continue
            if j < a0:
                for k in range(4):
                    if min(k, a0 - 1) == j:
                        res.append("K_CHM%d:" % k)
                res.append("K_STM%d:" % j)
                res.append("    s_branch " + ("K_STM%d" % (j + 4) if j + 4 < a0 else "K_WRET_M"))
                res.append("    s_nop 0")
                continue
            for c in "AB":
                if 0 <= j - a0 < 4:
                    res.append("K_CH%s%d:" % (c, j - a0))
                res.append("K_ST%s%d:" % (c, j))
                res.append("    s_branch " + ("K_ST%s%d" % (c, j + 4) if j + 4 < ns else "K_WRET_" + c))
        else:
            res.append(o)
    assert ns >= 4 or not P("WARM", 1)
    cpl = -(-(addr - ENTRY_OFF) // 1024)
    assert cpl <= 64
    print("code bytes", addr - ENTRY_OFF, "stubs", [hex(x) for x in stubs])
    return ["K_CPL = %d" % cpl] + res


def main():
    a = Asm()
    for l in HEADER:
        a.raw(l)
    a.raw("; @launch grid=(256,1,1) block=(512,1,1) lds=%d" % LDS_BYTES)
    a.raw('.amdgcn_target "amdgcn-amd-amdhsa--gfx950"')
    a.raw(".text")
    head = a.lines
    a.lines = []
    v1, s1 = gen(a)
    body = a.lines
    tail = ['.section .rodata,"a"', ".p2align 6", kd(KNAME, v1, s1)]
    a.lines = head + layout(head, body, tail) + tail
    out = sys.argv[1] if len(sys.argv) > 1 else os.path.join(os.path.dirname(os.path.abspath(__file__)), "..", NAME + ".s")
    open(out, "w").write(a.text())
    print("wrote", out, "v%d s%d" % (v1, s1))


if __name__ == "__main__":
    main()
```

```python
import sys, os, subprocess, ctypes
sys.path.insert(0, "code"); sys.path.insert(0, "cdna_kernels")
import numpy as np
import cdna_launch as cl
hip = cl._hip
NIT = 10

def gen(var):
    L = ["; @launch grid=(160,1,1) block=(512,1,1) lds=163840", '.amdgcn_target "amdgcn-amd-amdhsa--gfx950"', ".text", ".p2align 8", ".globl t_kernel", ".type t_kernel,@function", "t_kernel:"]
    a = L.append
    a("s_load_dwordx2 s[8:9], s[0:1], 0")
    a("s_load_dwordx2 s[4:5], s[0:1], 88")
    a("v_readfirstlane_b32 s3, v0")
    a("s_lshr_b32 s3, s3, 6")
    a("s_mov_b32 s10, 0x280000")
    a("s_mov_b32 s11, 0x20000")
    a("v_and_b32 v1, 63, v0")
    a("s_and_b32 s6, s2, 15")
    a("s_mul_i32 s6, s6, 163840")
    tok = var in ("V1", "V1s", "V1p")
    if tok:
        a("s_lshr_b32 s7, s3, 2"); a("s_mul_i32 s7, s7, 81920"); a("s_add_u32 s6, s6, s7"); a("s_and_b32 s7, s3, 3"); a("s_lshl_b32 s7, s7, 10")
    else:
        a("s_bfe_u32 s7, s3, 0x10001"); a("s_mul_i32 s7, s7, 81920"); a("s_add_u32 s6, s6, s7"); a("s_and_b32 s7, s3, 1"); a("s_lshl_b32 s7, s7, 11")
    a("s_add_u32 s6, s6, s7")
    a("v_lshl_add_u32 v2, v1, 4, s6")
    a("v_mov_b32 v3, 0x1f000")
    for t in range(4):
        a("v_lshlrev_b32 v%d, %d, v1" % (4 + t, 4 if "p" in var else 3))
    a("v_mov_b32 v12, 158720")
    a("v_mov_b32 v13, 0")
    a("ds_write_b32 v12, v13")
    for r in range(200):
        a("v_mov_b32 v%d, 0" % (16 + r))
    for r in range(6):
        a("s_mov_b32 s%d, 0" % (20 + r))
    a("s_mov_b32 s30, -1"); a("s_mov_b32 s31, 0"); a("s_mov_b32 s33, 0")
    a("s_lshl_b32 s36, s3, 11"); a("s_add_u32 s36, s36, 73728")
    a("v_lshl_add_u32 v14, v1, 4, s36"); a("v_add_u32 v14, 8192, v14")
    a("s_waitcnt lgkmcnt(0)")
    a("s_barrier")
    if var.startswith("V0"):
        a("s_cmp_ge_u32 s3, 4"); a("s_cbranch_scc1 DONE")
    if var == "V3":
        a("s_cmp_ge_u32 s3, 4"); a("s_cbranch_scc1 LOADER")
    a("s_mov_b32 s34, %d" % (NIT + 2 if var != "V2" else NIT // 2 + 2))
    a("LOOP:")
    a("s_cmp_eq_u32 s34, %d" % (NIT if var != "V2" else NIT // 2)); a("s_cbranch_scc0 NOST"); a("s_memtime s[40:41]"); a("NOST:"); a(".p2align 3")
    if os.environ.get("PH") == "4": a("s_nop 0")
    OF, ACC, FB = 16, 64, 96
    for r in range(6):
        c = (r + 1) % 6
        nl = 1 if tok else 2
        of = lambda s, m: "v[%d:%d]" % (OF + 8 * s + 4 * m, OF + 8 * s + 4 * m + 3)
        fb = lambda b, t, n=4, o=0: "v[%d:%d]" % (FB + 16 * b + 4 * t + o, FB + 16 * b + 4 * t + o + n - 1)
        rfl, mrd = "v_readfirstlane_b32 s31, v13", "ds_read_b32 v13, v12"
        pick = ["s_add_u32 s33, s33, 1", "s_cmp_eq_u32 s33, 20", "s_cselect_b32 s33, 0, s33", "s_lshl_b32 s%d, s33, 12" % (20 + r)]
        ld = ["buffer_load_dwordx4 %s, v2, s[8:11], s%d offen offset:%d sc1" % (of(r, m), 20 + r, 1024 * m) for m in range(nl)]
        na = {"V1": 4, "V1s": 1}.get(var, 1 if "p" in var else 2)
        ad = ["v_and_or_b32 v%d, s%d, v3, v%d" % (8 + t, 20 + (c + 2) % 6, 4 + t) for t in range(na)]
        if "p" in var:
            rd = ["ds_read_b128 %s, v8 offset:%d" % (fb((c + 2) % 3, t), t * 1024) for t in range(4)]
        else:
            rd = ["ds_read_b64_tr_b16 %s, v%d offset:%d" % (fb((c + 2) % 3, t, 2, 2 * h), 8 + (t * na) // 4, (2 * t + h) * 512) for t in range(4) for h in range(2)]
        if var.startswith("V0") and var not in ("V0", "V0n"):
            n = (c + 1) % 6
            top = ["s_cmp_lt_i32 s%d, 0" % (20 + n), "s_cbranch_scc1 DONE"]
            chk = ["s_waitcnt vmcnt(8)", "v_max_u32 v15, v%d, v%d" % (OF + 8 * n, OF + 8 * n + 4), "v_cmp_eq_u32 vcc, -1, v15", "s_cbranch_vccnz DONE"]
            m = [rfl, mrd] if True else []
            w = "s_waitcnt lgkmcnt(%d)" % len(rd)
            if "p" in var:
                fill = [m + [ad[0]] + pick[:2] + [rd[0]], pick[2:] + [ld[0], rd[1]], [ld[1], rd[2], rd[3]], chk[:3] + top + [chk[3], w]]
                if "b" in var:
                    fill = [m + pick + [ld[0]], [ad[0], rd[0], ld[1], rd[1]], [rd[2], chk[0], chk[1], rd[3], chk[2]], top + [chk[3], w]]
            else:
                fill = [m + [ad[0], pick[0], rd[0], pick[1], rd[1], pick[2], pick[3]], [ld[0], rd[2], ad[1], rd[3], rd[4]], [ld[1], rd[5], rd[6], rd[7]], chk[:3] + top + [chk[3], w]]
                if "b" in var and "x" not in var:
                    fill = [m + pick + [ld[0], ad[0]], [rd[0], rd[1], ld[1], ad[1], rd[2]], [rd[3], chk[0], chk[1], rd[4], chk[2], rd[5]], [rd[6], rd[7]] + top + [chk[3], w]]
                if "c" in var:
                    fill = [[ad[0], rd[0], rd[1]] + m + pick[:2], pick[2:] + [ld[0], rd[2], rd[3], ad[1]], [ld[1], rd[4], rd[5], chk[0], chk[1]], [rd[6], chk[2], rd[7]] + top + [chk[3], w]]
            if "u" in var:
                cu = "v_cmp_u_f32 vcc, v%d, v%d" % (OF + 8 * n, OF + 8 * n + 4)
                br = "s_cbranch_vccnz DONE"
                ww = "s_waitcnt vmcnt(8) lgkmcnt(%d)" % len(rd)
                pk = pick[:1] + ["s_cbranch_execz DONE"] + pick[1:]
                if "p" in var:
                    A1 = ["v_and_or_b32 v8, s%d, v3, v4" % (20 + (c + 3) % 6)]
                    if "B" in var: pk = pick[:1] + ["s_nop 0"] + pick[1:]
                    fill = [[ad[0], rd[0]] + pk, [ld[0], rd[1], rd[2]], [ld[1], rd[3]], [ww, cu] + top + [br]]
                    if "1" in var[2:]: fill = [[rd[0]] + pk[:3] + [rd[1]], pk[3:] + [ld[0], rd[2]], [ld[1], rd[3]], [ww, cu] + A1 + [br]]
                    if "2" in var[2:]: fill = [[rd[0], rd[1]] + pk[:3], pk[3:] + [ld[0], rd[2]], [rd[3], ld[1]], [ww, cu] + A1 + [br]]
                    if "3" in var[2:]: fill = [pk + [rd[0]], [ld[0], rd[1], rd[2]], [ld[1], rd[3], ww, cu], A1 + [br]]
                elif "d" in var and "x" not in var:
                    fill = [pk + [ld[0], rd[0], rd[1]], [ld[1], rd[2], rd[3], rd[4]], [rd[5], rd[6], rd[7]], [ww, cu] + ["v_and_or_b32 v%d, s%d, v3, v%d" % (8 + t, 20 + (c + 3) % 6, 4 + t) for t in range(2)] + top + [br]]
                elif "x" in var:
                    A = ["v_and_or_b32 v%d, s%d, v3, v%d" % (8 + t, 20 + (c + 3) % 6, 4 + t) for t in range(2)]
                    pat = var[4:]
                    tp = [] if "T" in pat else top
                    if "B" in pat: pk = pick[:1] + ["s_nop 0"] + pick[1:]
                    if "1" in pat: fill = [[rd[0], rd[1]] + pk[:3] + [rd[2]], pk[3:] + [ld[0], rd[3], rd[4]], [ld[1], rd[5], rd[6], rd[7]], [ww, cu] + A + tp + [br]]
                    if "2" in pat: fill = [[rd[0], rd[1], rd[2]] + pk, [ld[0], rd[3], rd[4], rd[5]], [ld[1], rd[6], rd[7]], [ww, cu] + A + tp + [br]]
                    if "3" in pat: fill = [[ld[0], rd[0], rd[1], rd[2]], [ld[1], rd[3], rd[4], rd[5]], [rd[6], rd[7]] + pk[:4] + ["s_lshl_b32 s%d, s33, 12" % (20 + c)], [ww, cu] + A + tp + [br]]
                    if "4" in pat: fill = [[ld[0], rd[0], rd[1], rd[2]], [rd[3], rd[4], rd[5]] + pk[:4], [ld[1], rd[6], rd[7], "s_lshl_b32 s%d, s33, 12" % (20 + c)], [ww, cu] + A + tp + [br]]
                    if "5" in pat: fill = [[rd[0], rd[1], ld[0], rd[2]], [rd[3], rd[4], ld[1], rd[5]], [rd[6], rd[7], ww, cu] + A, pk[:4] + ["s_lshl_b32 s%d, s33, 12" % (20 + c)] + tp + [br]]
                    w6, w5 = "s_waitcnt vmcnt(8) lgkmcnt(6)", "s_waitcnt vmcnt(8) lgkmcnt(5)"
                    if "a" in pat: fill = [pk + [rd[0], rd[1]], [ld[0], rd[2], rd[3], rd[4]], [ld[1], rd[5], rd[6], rd[7], ww, cu], A + [br]]
                    if "b" in pat: fill = [pk + [rd[0], rd[1]], [ld[0], rd[2], rd[3]], [ld[1], rd[4], rd[5], w6, cu], [rd[6], rd[7]] + A + [br]]
                    if "c" in pat: fill = [[rd[0], rd[1]] + pk[:3], pk[3:] + [ld[0], rd[2], rd[3]], [ld[1], rd[4], rd[5], w6, cu], [rd[6], rd[7]] + A + [br]]
                    if "d" in pat: fill = [pk + [rd[0]], [ld[0], rd[1], rd[2], rd[3]], [ld[1], rd[4], w5, cu, A[0]], [rd[5], rd[6], rd[7], A[1], br]]
                    if "f" in pat: fill = [[rd[0], rd[1]] + pk[:3] + [rd[2]], pk[3:] + [ld[0], rd[3], rd[4]], [ld[1], rd[5], w6, cu, A[0]], [rd[6], rd[7], A[1], br]]
                    if "g" in pat: fill = [[rd[0]] + pk + [ld[0]], [rd[1], rd[2], rd[3], ld[1]], [rd[4], rd[5], w6, cu, A[0]], [rd[6], rd[7], A[1], br]]
                    X = "v_xor_b32 v9, 64, v8"
                    mul = "s_mul_i32 s%d, s33, 4096" % (20 + r)
                    if "h" in pat: fill = [[rd[0], rd[1]] + pk[:4], [mul, ld[0], rd[2], rd[3]], [ld[1], rd[4], rd[5], w6, cu], [rd[6], rd[7], A[0], X, br]]
                    if "i" in pat: fill = [[rd[0], rd[1]] + pk[1:3], pk[3:] + [ld[0], rd[2], rd[3]], [ld[1], rd[4], rd[5], w6, cu], [rd[6], rd[7]] + A + [pk[0], br]]
                    if "j" in pat: fill = [[rd[0], rd[1]] + pk[:2], [pk[2], pk[3], mul, ld[0], rd[2], rd[3]], [ld[1], rd[4], rd[5], w6, cu], [rd[6], rd[7], A[0], X, br]]
                    if "6" in pat: fill = [[rd[0], rd[1], rd[2], ld[0]], [rd[3], rd[4], rd[5], ld[1]], [rd[6], rd[7]] + pk[:4] + ["s_lshl_b32 s%d, s33, 12" % (20 + c)], A + [ww, cu] + tp + [br]]
                elif "e" in var:
                    fill = [[rd[0], rd[1]] + pk[:3] + [rd[2]], pk[3:] + [ld[0], rd[3], rd[4]], [ld[1], rd[5], rd[6], rd[7]], [ww, cu] + ["v_and_or_b32 v%d, s%d, v3, v%d" % (8 + t, 20 + (c + 3) % 6, 4 + t) for t in range(2)] + top + [br]]
                else:
                    fill = [[ad[0], rd[0], rd[1]] + pk, [ld[0], rd[2], rd[3], ad[1], rd[4]], [ld[1], rd[5], rd[6], rd[7]], [ww, cu] + top + [br]]
            for k in range(4):
                nh, kh = k & 1, k >> 1
                a("v_mfma_f32_32x32x16_bf16 v[%d:%d], %s, %s, v[%d:%d]" % (ACC + 16 * nh, ACC + 16 * nh + 15, fb(c % 3, 2 * nh + kh), of(c, kh), ACC + 16 * nh, ACC + 16 * nh + 15))
                for x in fill[k]:
                    a(x)
            continue
        a("s_cmp_lt_i32 s%d, 0" % (20 + c)); a("s_cbranch_scc1 DONE")
        if var == "V3":
            ord_ = ["ds_read_b128 %s, v14 offset:%d" % (of((c + 2) % 6, m), ((c + 2) % 6) * 8192 + m * 1024) for m in range(2)]
            a("s_waitcnt lgkmcnt(11)")
            a("v_max_u32 v15, v%d, v%d" % (OF + 8 * c, OF + 8 * c + 4)); a("v_cmp_eq_u32 vcc, -1, v15"); a("s_cbranch_vccnz DONE")
            fill = [[rfl, mrd, pick[3], ad[0], rd[0], rd[1]], [ord_[0], rd[2], ad[1], rd[3], rd[4]], [ord_[1], rd[5], rd[6], rd[7], "ds_write_b32 v12, v13 offset:64"], []]
        elif tok:
            a("s_waitcnt vmcnt(4) lgkmcnt(%d)" % len(rd))
            a("v_cmp_eq_u32 vcc, -1, v%d" % (OF + 8 * c)); a("s_cbranch_vccnz DONE")
            seq = [rfl, mrd] + [ad[0]] + pick + ld
            k = 1
            for i, x in enumerate(rd):
                seq.append(x)
                if k < na and i % 2 == 1:
                    seq.append(ad[k]); k += 1
            n = (len(seq) + 2) // 3
            fill = [seq[:n], seq[n:2 * n], seq[2 * n:], []]
        else:
            a("s_waitcnt vmcnt(8) lgkmcnt(8)")
            if var != "V0n":
                a("v_max_u32 v15, v%d, v%d" % (OF + 8 * c, OF + 8 * c + 4)); a("v_cmp_eq_u32 vcc, -1, v15"); a("s_cbranch_vccnz DONE")
            fill = [[rfl, mrd, ad[0], pick[0], rd[0], pick[1], rd[1], pick[2], pick[3]], [ld[0], rd[2], ad[1], rd[3], rd[4]], [ld[1], rd[5], rd[6], rd[7]], []]
        for k in range(4):
            if tok:
                a("v_mfma_f32_16x16x32_bf16 v[%d:%d], %s, %s, v[%d:%d]" % (ACC + 4 * k, ACC + 4 * k + 3, fb(c % 3, k), of(c, 0), ACC + 4 * k, ACC + 4 * k + 3))
            else:
                nh, kh = k & 1, k >> 1
                a("v_mfma_f32_32x32x16_bf16 v[%d:%d], %s, %s, v[%d:%d]" % (ACC + 16 * nh, ACC + 16 * nh + 15, fb(c % 3, 2 * nh + kh), of(c, kh), ACC + 16 * nh, ACC + 16 * nh + 15))
            for x in fill[k]:
                a(x)
        if var == "V3" and r % 2 == 1:
            a("s_barrier")
    a("s_sub_u32 s34, s34, 1"); a("s_cmp_lg_u32 s34, 0"); a("s_cbranch_scc1 LOOP")
    a("s_memtime s[42:43]")
    a("s_waitcnt vmcnt(0) lgkmcnt(0)")
    a("s_sub_u32 s42, s42, s40")
    a("s_lshl_b32 s6, s2, 3"); a("s_add_u32 s6, s6, s3"); a("s_lshl_b32 s6, s6, 2")
    a("v_mov_b32 v1, s6"); a("v_mov_b32 v2, s42")
    a("global_store_dword v1, v2, s[4:5]")
    a("DONE:")
    a("s_endpgm")
    if var == "V3":
        a("LOADER:")
        a("s_mov_b32 s34, %d" % (3 * (NIT + 2)))
        a("LL:")
        for k in range(2):
            a("s_add_u32 s33, s33, 1"); a("s_cmp_eq_u32 s33, 20"); a("s_cselect_b32 s33, 0, s33"); a("s_lshl_b32 s20, s33, 12")
            a("s_add_u32 m0, s36, %d" % (k * 8192)); a("s_nop 0")
            a("buffer_load_dwordx4 v2, s[8:11], s20 offen sc1 lds")
            a("buffer_load_dwordx4 v2, s[8:11], s20 offen offset:1024 sc1 lds")
        a("s_waitcnt vmcnt(8)")
        a("s_barrier")
        a("s_sub_u32 s34, s34, 1"); a("s_cmp_lg_u32 s34, 0"); a("s_cbranch_scc1 LL")
        a("s_waitcnt vmcnt(0)")
        a("s_endpgm")
    a('.section .rodata,"a"\n.p2align 6\n.amdhsa_kernel t_kernel\n.amdhsa_next_free_vgpr 224\n.amdhsa_next_free_sgpr 100\n.amdhsa_accum_offset 224\n.amdhsa_group_segment_fixed_size 0\n.amdhsa_kernarg_size 96\n.amdhsa_user_sgpr_count 2\n.amdhsa_user_sgpr_kernarg_segment_ptr 1\n.amdhsa_system_sgpr_workgroup_id_x 1\n.end_amdhsa_kernel')
    return "\n".join(L) + "\n"
def build(src, name, path):
    open(path + ".s", "w").write(cl.with_harness_metadata(src, name, 12, launch_lists=True))
    r = subprocess.run(["clang", "-x", "assembler", "-target", "amdgcn-amd-amdhsa", "-mcpu=gfx950", path + ".s", "-o", path + ".co"], capture_output=True, text=True)
    assert r.returncode == 0, r.stderr
    return cl.AsmKernel(path + ".co", name) if os.path.exists("/dev/kfd") else cl.address_register_problem(path + ".co", name)
if not os.path.exists("/dev/kfd"):
    for v in sys.argv[1:]:
        print(v, build(gen(v), "t_kernel", "p2_" + v))
    sys.exit(0)
rng = np.random.RandomState(0)
dat = (rng.randn(2 << 20).astype(np.float32).view(np.uint32) >> 16).astype(np.uint16)
src = cl.DeviceBuffer.from_numpy(dat); ws = cl.DeviceBuffer(4 << 20)
ka = cl.pack_ptr_kernargs([src.ptr] * 11 + [ws.ptr])
for v in sys.argv[1:]:
    k = build(gen(v), "t_kernel", "p2_" + v)
    res = []
    for it in range(6):
        cl.hip_check(hip.hipMemset(ws._ptr, 0, 1 << 20))
        k.launch((160, 1, 1), (512, 1, 1), ka, 163840)
        cl.hip_check(hip.hipDeviceSynchronize())
        t = ws.to_numpy(np.uint32, (160, 8)).astype(float)
        res.append(t.max(axis=1).mean())
    print(v, "clk per step: %.1f" % (np.median(res) / (6 * NIT)))
```

```python
from common import *

KNAME = NAME + "_kernel"
SC_POLL = os.environ.get("SC_POLL", "sc1").replace("_", " ")
SC_FLAG = os.environ.get("SC_FLAG", "sc1").replace("_", " ")
SC_ST = os.environ.get("SC_ST", "sc1").replace("_", " ")
SC_LD = os.environ.get("SC_LD", "sc1").replace("_", " ")
FNT = os.environ.get("FNT", "")
FNTD = os.environ.get("FNTD", FNT)
FL_OFF = 0x80000
KMB = 160 * 512
ZBYTES = KMB + 1024
ZKB = 10
HUB = 63
NZ = 8
GW0 = 24
MT = 12
MH = 6
RROWS = (MT - 1) * 16
XREG = MT * 2048
SLOT = XREG + 16384
LA = 2
NS = 3
NCH = 10
WO_L = 0
XB = 3 * SLOT
TV = XB + 3072
TVD = TV + 2 * 1664
TS = TVD + 2048
STG = 140288
assert TS + 3072 + 256 <= STG
SP = 144
YB = STG + 8 * 16 * SP
LDS_BYTES = 4 * SLOT
APZ = P("APZ", 0)
NZM = NZ + (32 if APZ else 0)
SPIN = 0x20000
SENT = P("SENT", 1)
YCNT = KMB + 512


def gen(a):
    a.raw(".p2align 12")
    a.raw(".p2align 8")
    a.raw(f".globl {KNAME}")
    a.raw(f".type {KNAME},@function")
    a.label(KNAME)
    S = RA("s", 3, 82 if STAMP else 100)
    V = RA("v", 1, 256)
    s_tmp = S.a()
    s_pws = S.a(4)
    s_pwo = S.a(2)
    s_po = S.a(2)
    sX, sW, sO, sWO = S.many(4, 4)
    s_xcd, s_i, s_w, s_rt, s_hg, s_t2, s_n = S.many(7)
    s_half = S.a()
    s_fb = S.a()
    s_fl = S.a()
    s_pc = S.a(2)
    v_lane, v_t0, v_t1, v_t2, v_t3, v_pf, v_smp = V.many(7)
    DBG, WS = s_pws, s_pws + 2

    s_rt2, s_ct = S.many(2)
    s_mb = S.a()
    mS, mV = S.mark(), V.mark()
    s_j, s_pm, s_pg = S.a(), S.a(8), S.a(2)
    S.release(mS)
    s_lw, s_xb, s_m0x, s_m0w, s_sox, s_sow, s_kc, s_wb, s_xk, s_so1 = S.many(10)
    VL = RA("v", 216, 240)
    v_xo = VL.many(2)
    v_wo = VL.many(2)
    ORDER = [("w", 0), ("x", 0), ("w", 1), ("x", 1), ("x", 2), ("w", 2), ("x", 3), ("w", 3), ("x", 4), ("x", 5)]
    if os.environ.get("ORD"):
        cnt = {"w": 0, "x": 0}
        ORDER = []
        for ch in os.environ["ORD"]:
            ORDER.append((ch, cnt[ch]))
            cnt[ch] += 1
        assert cnt == {"w": 4, "x": 6}
    HS = P("HSPLIT", 6)

    def dma_head():
        a(f"s_lshl_b32 {s_sox}, {s_kc}, 7")
        a(f"s_mul_i32 {s_sow}, {s_kc}, {64*3840}")
        a(f"s_add_u32 {s_xk}, {s_xb}, {s_sox}")
        a(f"s_add_u32 {s_sow}, {s_sow}, {s_wb}")
        a(f"s_add_u32 {s_kc}, {s_kc}, 1")
        a(f"s_cmp_eq_u32 {s_kc}, 10")
        a(f"s_cselect_b32 {s_kc}, 0, {s_kc}")

    def dma_part(c, lo, hi, head=True):
        if c >= NCH:
            return
        sl = ((c + 2) % NS) * SLOT
        if lo == 0 and head:
            dma_head()
        for kind, j in ORDER[lo:hi]:
            if kind == "w":
                a(f"s_add_u32 m0, {s_m0w}, {sl + j*1024}")
                a(f"s_add_u32 {s_so1}, {s_sow}, {j*4*3840}")
                a(f"buffer_load_dwordx4 {v_wo[j >> 1]}, {sW(4)}, {s_so1} offen lds")
            else:
                a(f"s_add_u32 m0, {s_m0x}, {sl + j*1024}")
                if j == 0:
                    a(f"s_max_i32 {s_so1}, {s_xk}, {s_sox}")
                else:
                    a(f"s_add_u32 {s_so1}, {s_xk}, {j*10240}")
                    if j == 1:
                        a(f"s_max_i32 {s_so1}, {s_so1}, {s_sox}")
                a(f"buffer_load_dwordx4 {v_xo[j & 1]}, {sX(4)}, {s_so1} offen lds")

    def karg_rest():
        a(f"s_load_dwordx4 {s_pws(4)}, s[0:1], 80")
        a(f"s_load_dwordx2 {s_pwo(2)}, s[0:1], 16")
        a(f"s_load_dwordx2 {s_po(2)}, s[0:1], 72")

    def common_ids():
        a(f"v_and_b32 {v_lane}, 63, v0")
        a(f"v_mov_b32 {v_smp}, 0")
        a(f"s_and_b32 {s_xcd}, s2, 7")
        a(f"s_lshr_b32 {s_i}, s2, 3")
        a(f"s_xor_b32 {s_w}, {s_w}, 4")
        a(f"s_lshr_b32 {s_n}, {s_i}, 3")
        a(f"s_lshl_b32 {s_n}, {s_n}, 2")
        a(f"s_and_b32 {s_tmp}, {s_i}, 3")
        a(f"s_add_u32 {s_n}, {s_n}, {s_tmp}")
        a(f"s_add_u32 {s_n}, {s_n}, 4")
        a(f"s_bitcmp1_b32 {s_i}, 2")
        a(f"s_cselect_b32 {s_n}, -1, {s_n}")
        a(f"s_cmp_lt_u32 {s_i}, 8")
        a(f"s_cselect_b32 {s_n}, {s_i}, {s_n}")
        a(f"s_lshl_b32 {s_rt2}, {s_xcd}, 1")
        a(f"s_cmp_ge_u32 {s_n}, 10")
        a(f"s_addc_u32 {s_rt2}, {s_rt2}, 0")
        a(f"s_sub_u32 {s_ct}, {s_n}, 10")
        a(f"s_cmp_ge_u32 {s_n}, 10")
        a(f"s_cselect_b32 {s_ct}, {s_ct}, {s_n}")
        a(f"s_mul_i32 {s_mb}, {s_xcd}, 20")
        a(f"s_add_u32 {s_mb}, {s_mb}, {s_n}")
        a(f"s_and_b32 {s_mb}, {s_mb}, 255")
        a(f"s_lshl_b32 {s_mb}, {s_mb}, 9")
        a(f"s_add_u32 {s_mb}, {s_mb}, {FL_OFF}")

    s_pos = s_half

    def main_ids():
        a(f"s_lshr_b32 {s_rt}, {s_xcd}, 1")
        a(f"s_lshl_b32 {s_rt}, {s_rt}, 5")
        a(f"s_lshr_b32 {s_tmp}, {s_i}, 3")
        a(f"s_mul_i32 {s_tmp}, {s_tmp}, {MT-1}")
        a(f"s_add_u32 {s_rt}, {s_rt}, {s_tmp}")
        a(f"s_sub_u32 {s_rt}, {s_rt}, {MT-1}")
        a(f"s_and_b32 {s_hg}, {s_xcd}, 1")
        a(f"s_lshl_b32 {s_hg}, {s_hg}, 3")
        a(f"s_and_b32 {s_tmp}, {s_i}, 7")
        a(f"s_lshl_b32 {s_tmp}, {s_tmp}, 2")
        a(f"s_lshr_b32 {s_tmp}, 0x64317520, {s_tmp}")
        a(f"s_and_b32 {s_tmp}, {s_tmp}, 7")
        a(f"s_add_u32 {s_hg}, {s_hg}, {s_tmp}")
        a(f"s_and_b32 {s_pos}, {s_i}, 3")
        a(f"s_and_b32 {s_tmp}, {s_i}, 4")
        a(f"s_lshl_b32 {s_tmp}, {s_tmp}, 1")
        a(f"s_add_u32 {s_pos}, {s_pos}, {s_tmp}")
        a(f"s_and_b32 {s_tmp}, {s_xcd}, 1")
        a(f"s_lshl_b32 {s_tmp}, {s_tmp}, 2")
        a(f"s_add_u32 {s_pos}, {s_pos}, {s_tmp}")

    a("s_cmp_ge_u32 s2, 256")
    a("s_cbranch_scc1 K_EXIT")
    a(f"s_load_dwordx2 {sX(2)}, s[0:1], 0")
    a(f"s_load_dwordx2 {sW(2)}, s[0:1], 8")
    karg_rest()
    a(f"v_readfirstlane_b32 {s_w}, v0")
    stamp_init(a)
    a(f"s_mov_b32 {sX+2}, 0x{X_BYTES:x}")
    a(f"s_mov_b32 {sX+3}, 0x20000")
    a(f"s_lshr_b32 {s_w}, {s_w}, 6")
    a("s_cmp_ge_u32 s2, 64")
    a("s_cbranch_scc1 K_MAIN")
    a(f"s_load_dwordx8 {s_pm(8)}, s[0:1], 32")
    a(f"s_load_dwordx2 {s_pg(2)}, s[0:1], 64")
    a(f"s_getpc_b64 {s_pc(2)}")
    a.label("K_PC")
    a("s_lshr_b32 s3, s2, 3")
    a("s_mul_i32 s3, s3, K_CPL")
    a(f"v_add_u32 {v_t0}, s3, v0")
    a(f"v_lshlrev_b32 {v_t0}, 7, {v_t0}")
    a(f"v_min_u32 {v_t0}, K_CODE_END-K_PC-4, {v_t0}")
    a(f"v_cmp_gt_u32 vcc, K_CPL, v0")
    a("s_and_saveexec_b64 %s, vcc" % sO(2))
    a("s_cbranch_execz K_NOPF")
    a(f"global_load_dword {v_pf}, {v_t0}, {s_pc(2)}")
    a.label("K_NOPF")
    a("s_mov_b64 exec, -1")
    a(f"s_cmp_lg_u32 {s_w}, 4")
    a("s_cbranch_scc1 K_AUX")
    a(f"s_min_u32 s3, s2, 8")
    a(f"s_mul_i32 s3, s3, {ZKB*1024}")
    a(f"s_add_u32 {s_t2}, s3, {ZKB*1024}")
    a(f"s_cmp_lt_u32 s2, 8")
    a("s_cbranch_scc1 K_ZS")
    a(f"s_cmp_lg_u32 s2, {HUB}")
    a("s_cbranch_scc1 K_AUX")
    a(f"s_mov_b32 {s_t2}, 0")
    a.label("K_ZS")
    a(f"v_lshlrev_b32 {v_t0}, 4, v0")
    for e in range(4):
        a(f"v_mov_b32 v{8+e}, 0")
    a("s_waitcnt lgkmcnt(0)")
    srd(a, sO, WS, ZBYTES + 4096, FL_OFF - 4096)
    assert 8 * ZKB * 1024 == KMB
    a.label("K_ZL")
    a(f"buffer_store_dwordx4 v[8:11], {v_t0}, {sO(4)}, s3 offen {SC_FLAG}")
    a("s_add_u32 s3, s3, 1024")
    a(f"s_cmp_lt_u32 s3, {s_t2}")
    a("s_cbranch_scc1 K_ZL")
    a("s_branch K_AUX")
    a.label("K_MAIN")
    a(f"s_cmp_ge_u32 {s_w}, 4")
    a("s_cbranch_scc1 K_CONS")
    stamp(a, "role")
    PERM_ = [0, 2, 5, 7, 1, 3, 4, 6]
    tab = lambda L: sum(v << (4 * k) for k, v in enumerate(L))
    a(f"s_bfe_u32 {s_tmp}, s2, 0x20001")
    a(f"s_mul_i32 {s_xb}, {s_tmp}, {512*1280}")
    a(f"s_add_u32 {sX+2}, {s_xb}, {512*1280}")
    a(f"s_lshr_b32 {s_t2}, s2, 6")
    a(f"s_mul_i32 {s_tmp}, {s_t2}, {RROWS*1280}")
    a(f"s_add_u32 {s_xb}, {s_xb}, {s_tmp}")
    a(f"s_mul_i32 {s_tmp}, {s_w}, {48*1280}")
    a(f"s_add_u32 {s_xb}, {s_xb}, {s_tmp}")
    a(f"s_sub_u32 {s_xb}, {s_xb}, {(RROWS+16)*1280}")
    a(f"v_bfe_u32 {v_t1}, v0, 4, 2")
    a(f"s_lshr_b32 {s_tmp}, s2, 1")
    a(f"s_and_b32 {s_tmp}, {s_tmp}, 28")
    a(f"s_or_b32 {s_tmp}, {s_tmp}, 0x40000")
    a(f"v_lshlrev_b32 {v_t0}, 1, {v_t1}")
    a(f"v_sub_u32 {v_t0}, v0, {v_t0}")
    KT = eval(os.environ.get("KT", "[[0,2,1,2,0,3,0,5],[6,7,2,2,5,5,7,5],[6,5,5,7,7,7,3,0],[0,2,1,2,0,5,0,5],[5,7,2,2,5,5,7,5],[6,6,5,7,7,7,3,9]]"))
    if len(KT) == 3:
        KT = KT + KT
    kt = [tab([row[p] for p in PERM_]) for row in KT]
    a(f"s_and_b32 {s_wb}, s2, 0xc1")
    a(f"s_mov_b32 {s_kc}, 0x{kt[0]:x}")
    for k in range(1, 6):
        a(f"s_cmpk_eq_u32 {s_wb}, {(k % 3 + 1) * 64 + k // 3}")
        a(f"s_cselect_b32 {s_kc}, 0x{kt[k]:x}, {s_kc}")
    a(f"s_bfe_u32 {s_kc}, {s_kc}, {s_tmp}")
    a(f"s_bfe_u32 {s_hg}, 0x{tab(PERM_):x}, {s_tmp}")
    a(f"v_and_b32 {v_t0}, 15, {v_t0}")
    a(f"v_mul_u32_u24 {v_t3}, 3840, {v_t1}")
    a(f"s_lshl_b32 {s_tmp}, s2, 2")
    XTAB = tab(eval(os.environ.get('XT', '[5,3,3,2,3,0,4,4]')))
    a(f"s_lshr_b32 {s_tmp}, 0x{XTAB:x}, {s_tmp}")
    a(f"s_and_b32 {s_tmp}, {s_tmp}, 15")
    a(f"s_add_u32 {s_kc}, {s_kc}, {s_tmp}")
    a(f"s_mov_b32 {s_t2}, 0x00a55a")
    a(f"v_subrev_u32 {v_t3}, 160, {v_t3}")
    a(f"s_sub_u32 {s_tmp}, {s_kc}, 10")
    a(f"s_cselect_b32 {s_kc}, {s_kc}, {s_tmp}")
    for jj in range(2):
        if jj:
            a(f"v_xor_b32 {v_t0}, 8, {v_t0}")
        a(f"v_mul_u32_u24 {v_t2}, 52, {v_t0}")
        a(f"v_lshrrev_b32 {v_t2}, 5, {v_t2}")
        a(f"v_and_b32 {v_t2}, 24, {v_t2}")
        a(f"v_bfe_u32 {v_t2}, {s_t2}, {v_t2}, 8")
        a(f"v_add_u32 {v_t2}, {v_t2}, {v_t0}")
        a(f"v_lshl_add_u32 {v_wo[jj]}, {v_t2}, 4, {v_t3}")
        a(f"v_add_u32 {v_t2}, 1, {v_t0}")
        a(f"v_lshrrev_b32 {v_t2}, 4, {v_t2}")
        a(f"v_lshl_add_u32 {v_wo[jj]}, {v_t2}, 28, {v_wo[jj]}")
    a("s_bitcmp1_b32 s2, 0")
    a(f"s_cselect_b32 {s_tmp}, 8, 0")
    a(f"s_add_u32 {s_hg}, {s_hg}, {s_tmp}")
    a(f"s_mul_i32 {s_wb}, {s_hg}, 80")
    a(f"s_mul_i32 {s_tmp}, {s_w}, {16*3840}")
    a(f"s_add_u32 {s_wb}, {s_wb}, {s_tmp}")
    a(f"s_lshl_b32 {s_m0w}, {s_w}, 12")
    a(f"s_add_u32 {s_m0w}, {s_m0w}, {XREG}")
    a(f"s_mul_i32 {s_m0x}, {s_w}, 6144")
    a(f"s_mov_b32 {sW+2}, 0x{640*3840:x}")
    a(f"s_mov_b32 {sW+3}, 0x20000")
    a(f"v_xor_b32 {v_t1}, {v_t1}, v0")
    a(f"v_and_b32 {v_t1}, 7, {v_t1}")
    a(f"v_bfe_u32 {v_t0}, v0, 3, 3")
    a(f"v_mul_u32_u24 {v_t0}, 1280, {v_t0}")
    a(f"v_lshl_add_u32 {v_xo[0]}, {v_t1}, 4, {v_t0}")
    a(f"v_xor_b32 {v_xo[1]}, 64, {v_xo[0]}")
    dma_head()
    stamp(a, "setup")
    a("s_waitcnt lgkmcnt(0)")
    stamp(a, "karg")
    if P("FIRSTP", 0):
        dma_part(0, 0, 2, head=False)
        a("s_waitcnt vmcnt(1)")
        stamp(a, "f1")
        a("s_waitcnt vmcnt(0)")
        stamp(a, "f2")
        dma_part(0, 2, 4, head=False)
        a("s_waitcnt vmcnt(0)")
        stamp(a, "f3")
        dma_part(0, 4, 10, head=False)
    else:
        dma_part(0, 0, 10, head=False)
    dma_part(1, 0, HS)
    stamp(a, "issued")
    a(f"s_mov_b32 {s_lw}, {s_w}")
    common_ids()
    main_ids()

    def lds_zero():
        a(f"v_mov_b32 {v_t1}, {YB + 16}")
        for k in range(0, 12, 2):
            a(f"ds_write2_b32 {v_t1}, {v_smp}, {v_smp} offset0:{k} offset1:{k+1}")

    a.label("K_LOADER")

    def zpoll(k, offs, val, goff=None):
        for off in offs:
            a(f"s_load_dword {s_t2}, {DBG(2)}, {off}")
            a("s_waitcnt lgkmcnt(0)")
            a(f"s_cmp_ge_u32 {s_t2}, {val}")
            a(f"s_cbranch_scc1 K_ZO{k}")
            a(f"s_sleep {P('ZSLEEP', 8)}")
        a(f"s_mov_b32 {s_tmp}, {SPIN // 8}")
        a.label(f"K_ZB{k}")
        a(f"v_mov_b32 {v_t2}, {offs[0] if goff is None else goff}")
        a(f"global_load_dword {v_t2}, {v_t2}, {DBG(2)} {SC_POLL}")
        a("s_waitcnt vmcnt(0)")
        a(f"v_readfirstlane_b32 {s_t2}, {v_t2}")
        a(f"s_cmp_ge_u32 {s_t2}, {val}")
        a(f"s_cbranch_scc1 K_ZO{k}")
        a("s_sleep 8")
        a(f"s_sub_u32 {s_tmp}, {s_tmp}, 1")
        a(f"s_cbranch_scc0 K_ZB{k}")
        a.label(f"K_ZO{k}")

    def mb_sample(vaddr):
        a(f"v_lshl_add_u32 {vaddr}, {v_lane}, 2, {s_mb}")
        a(f"global_load_dword {v_smp}, {vaddr}, {WS(2)} offset:256 {SC_POLL}")
        a(f"v_and_b32 {vaddr}, 0xfffffe04, {vaddr}")
        a(f"global_load_dword {v_pf}, {vaddr}, {WS(2)} offset:128 {SC_POLL}")

    def wo_voff(v_wo):
        a(f"v_lshrrev_b32 {v_t0}, 3, {v_lane}")
        a(f"v_mul_u32_u24 {v_t0}, 1280, {v_t0}")
        a(f"v_lshrrev_b32 {v_t1}, 2, {v_lane}")
        a(f"v_and_b32 {v_t1}, 4, {v_t1}")
        a(f"v_and_b32 {v_t2}, 7, {v_lane}")
        a(f"v_xor_b32 {v_t1}, {v_t1}, {v_t2}")
        a(f"v_lshl_add_u32 {v_t0}, {v_t1}, 4, {v_t0}")
        a(f"s_lshl_b32 {s_t2}, {s_ct}, 7")
        a(f"v_add_u32 {v_wo}, {s_t2}, {v_t0}")
        a(f"v_lshrrev_b32 {v_t3}, 5, {v_lane}")
        a(f"v_mul_u32_u24 {v_t3}, {16*1280}, {v_t3}")
        a(f"v_add_u32 {v_t3}, {v_t3}, {v_wo}")

    def wo_blocks(v_wo, s_k, late, s_src, s_dst, s_o, thr=0, hook=None):
        a(f"s_lshl_b32 {s_src}, {s_k}, 2")
        a(f"s_lshr_b32 {s_src}, 0x{0x6431 if late else 0x7520:x}, {s_src}")
        a(f"s_and_b32 {s_src}, {s_src}, 7")
        a(f"s_mul_i32 {s_src}, {s_src}, 51200")
        a(f"s_lshl_b32 {s_dst}, {s_k}, 12")

        def one(v, so, m):
            a(f"s_add_u32 {s_o}, {s_src}, {so}")
            a(f"s_add_u32 m0, {s_dst}, {WO_L + late*40960 + m}")
            a(f"s_waitcnt vmcnt({thr-1})" if thr else "s_nop 0")
            a(f"buffer_load_dwordx4 {v}, {sWO(4)}, {s_o} offen lds")

        for b in range(2):
            for r in range(4):
                one(v_wo, b*8*51200 + (0, 8, 20, 28)[r]*1280, b*20480 + r*1024)
                if hook and 4*b + r == thr - 1:
                    hook()
        a(f"s_lshl_b32 {s_dst}, {s_k}, 10")
        for b in range(2):
            one(v_t3, b*8*51200 + 16*1280, b*20480 + 16384)

    v_row, v_g, v_r, v_c = V.many(4)
    s_q = S.a()

    def lane_consts():
        a(f"v_and_b32 {v_row}, 15, {v_lane}")
        a(f"v_lshrrev_b32 {v_g}, 4, {v_lane}")
        a(f"v_bfe_u32 {v_r}, {v_lane}, 2, 2")
        a(f"v_and_b32 {v_c}, 3, {v_lane}")

    def o_addr(d, vt, sc_):
        a(f"v_lshrrev_b32 {v_t0}, 2, {vt}")
        a(f"v_mul_u32_u24 {v_t0}, {80 - 4}, {v_t0}")
        a(f"v_add_lshl_u32 {v_t0}, {v_t0}, {vt}, 10")
        a(f"v_lshl_add_u32 {v_t0}, {v_row}, 4, {v_t0}")
        a(f"v_add_u32 {d}, {sc_}, {v_t0}")

    def o_consts(s_main, s_tail):
        srd(a, sO, WS, O_BYTES, O_OFF)
        a(f"s_lshr_b32 {s_q}, {s_pos}, 2")
        a(f"s_add_u32 {s_main}, {s_q}, {s_pos}")
        a(f"s_lshl_b32 {s_main}, {s_main}, 12")
        a(f"s_mul_i32 {s_tail}, {s_q}, {5*4096 - 1024}")
        a(f"s_lshl_b32 {s_q}, {s_pos}, 8")
        a(f"s_add_u32 {s_tail}, {s_tail}, {s_q}")
        a(f"s_add_u32 {s_tail}, {s_tail}, {4*4096}")
        a(f"s_lshr_b32 {s_q}, {s_rt}, 5")
        a(f"s_add_u32 {s_q}, {s_q}, 1")
        a(f"s_mul_i32 {sO+2}, {s_q}, {8*81920}")
        a(f"s_mov_b32 {s_q}, {s_rt}")

    mV2 = V.mark()
    mS2 = S.mark()

    v_os, v_ot, v_wv = VL.many(3)
    pz = VL.a(4)
    s_z = S.a()
    s_lhi = S.next
    srd(a, sWO, s_pwo, 640 * 1280)
    lane_consts()
    o_consts(s_tmp, s_t2)
    a(f"s_add_u32 {s_z}, {s_q}, {s_lw}")
    a(f"v_mov_b32 {v_t1}, {s_z}")
    o_addr(v_os, v_t1, s_tmp)
    a(f"v_lshl_add_u32 {v_os}, {v_g}, 8, {v_os}")
    a(f"s_lshl_b32 {s_tmp}, {s_lw}, 2")
    a(f"v_add_u32 {v_t2}, {s_tmp}, {v_g}")
    a(f"v_add_u32 {v_t1}, {s_q}, {v_t2}")
    o_addr(v_ot, v_t1, s_t2)
    a(f"v_mov_b32 {v_t3}, 0x10000000")
    a(f"v_cmp_gt_u32 vcc, {MT-1}, {v_t2}")
    for e in range(4):
        a(f"v_mov_b32 {pz+e}, -1")
    a(f"v_cndmask_b32 {v_ot}, {v_t3}, {v_ot}, vcc")
    wo_voff(v_wv)
    a(f"s_mov_b32 {s_w}, {s_lw}")

    PZI = (-9 if P("CPZ", -2) > -2 or APZ else P("PZI", 9))
    def poison():
        a(f"s_mov_b32 {s_t2}, 81920")
        a(f"s_cmp_eq_u32 {s_lw}, 3")
        a(f"s_cselect_b32 {s_tmp}, 0, {2*81920}")
        a(f"buffer_store_dwordx4 {pz(4)}, {v_os}, {sO(4)}, 0 offen {SC_ST}")
        a(f"buffer_store_dwordx4 {pz(4)}, {v_os}, {sO(4)}, {s_t2} offen {SC_ST}")
        a(f"buffer_store_dwordx4 {pz(4)}, {v_os}, {sO(4)}, {s_tmp} offen {SC_ST}")
        a(f"buffer_store_dwordx4 {pz(4)}, {v_ot}, {sO(4)}, 0 offen {SC_ST}")

    def pz_done(n):
        a(f"v_mov_b32 {v_t0}, {YB}")
        a(f"v_mov_b32 {v_t1}, 1")
        a(f"s_waitcnt vmcnt({n})")
        stamp(a, "pzdone")
        a("s_mov_b64 exec, 1")
        a(f"ds_add_u32 {v_t0}, {v_t1} offset:28")
        a(f"ds_add_u32 {v_t0}, {v_t1} offset:32")
        a("s_mov_b64 exec, -1")

    for c in range(NCH):
        outst = (HS if c + 1 < NCH else 0) + (4 if c == PZI + 1 else 0)
        if c == NCH - 1:
            a("s_waitcnt lgkmcnt(0)")
            a(f"s_cmp_ge_u32 {s_z}, {NZM}")
            a("s_cbranch_scc1 K_ZO0")
            zpoll(0, [], NZM, 192)
            a(f"s_cmp_eq_u32 {s_n}, -1")
            a("s_cbranch_scc1 K_NOLT")
            if P("WOE", 1):
                wo_blocks(v_wv, s_lw, 0, s_sox, s_sow, s_tmp)
            a(f"s_waitcnt vmcnt({10 * P('WOE', 1) + outst})")
            a("s_barrier")
            stamp(a, "c9")
            if PZI == 9:
                poison()
            pz_done(0)
            if not P("WOE", 1):
                wo_blocks(v_wv, s_lw, 0, s_sox, s_sow, s_tmp)
            if P("WLM", 0) == 0:
                if P("WLD", 0):
                    a(f"s_sleep {P('WLD', 0)}")
                wo_blocks(v_wv, s_lw, 1, s_sox, s_sow, s_tmp)
            a("s_branch K_P2_GM")
            a.label("K_NOLT")
        a(f"s_waitcnt vmcnt({outst})")
        stamp(a, f"w{c}")
        a("s_barrier")
        stamp(a, f"c{c}")
        if c == NCH - 2:
            a(f"s_load_dword {s_z}, {DBG(2)}, 192")
        dma_part(c + 1, HS, 10)
        dma_part(c + 2, 0, HS)
        if c == PZI:
            poison()
        a.raw(f"@@G{c}")
    pz_done(0)
    a("s_branch K_END")

    V.release(mV)
    v_row, v_g, v_r, v_c = V.many(4)
    S.release(mS2)
    a.label("K_CONS")
    DEFER = P("DEFER", 1)
    if DEFER:
        a(f"v_and_b32 {v_lane}, 63, v0")
    else:
        common_ids()
        lds_zero()
        main_ids()
    lane_consts()
    s_mh, s_nh, s_tg = S.many(3)
    s_c, s_sc = S.many(2, 2)
    v_b0, v_b1, v_bp, v_ps = V.many(4, 4)
    v_o = V.many(3)
    v_ot, v_tw, v_tr, v_xb, v_sw1, v_sr1, v_fo, v_cn = V.many(8)
    v_neg = v_fo
    a(f"s_bfe_u32 {s_mh}, {s_w}, 0x10001")
    a(f"s_and_b32 {s_nh}, {s_w}, 1")
    v_aa = [V.many(2) for _ in range(2)]
    v_ba = [V.many(4) for _ in range(2)]
    a(f"v_lshrrev_b32 {v_t0}, 1, {v_row}")
    a(f"v_xor_b32 {v_t0}, {v_t0}, {v_g}")
    a(f"v_lshlrev_b32 {v_t0}, 4, {v_t0}")
    a(f"v_lshl_add_u32 {v_t0}, {v_row}, 7, {v_t0}")
    a(f"s_mul_i32 {s_tmp}, {s_mh}, {MH*2048}")
    a(f"v_add_u32 {v_aa[0][0]}, {s_tmp}, {v_t0}")
    a(f"v_xor_b32 {v_aa[0][1]}, 64, {v_aa[0][0]}")
    for ks in range(2):
        a(f"v_add_u32 {v_aa[1][ks]}, {2*SLOT}, {v_aa[0][ks]}")
    a(f"v_and_b32 {v_t0}, 1, {v_g}")
    a(f"v_lshl_or_b32 {v_t0}, {v_t0}, 2, {v_r}")
    a(f"s_mul_i32 {s_tmp}, {s_nh}, 40")
    a(f"v_lshl_add_u32 {v_t0}, {v_t0}, 5, {s_tmp}")
    a(f"v_lshl_add_u32 {v_t1}, {v_g}, 3, {v_r}")
    a(f"v_lshlrev_b32 {v_t1}, 8, {v_t1}")
    a(f"v_add_u32 {v_t1}, {XREG}, {v_t1}")
    a(f"v_lshl_add_u32 {v_t3}, {v_c}, 3, {v_t0}")
    a(f"s_mul_i32 {s_t2}, {s_nh}, {48 << 24}")
    a(f"s_sub_u32 {s_t2}, 0x{(248 << 24) | (112 << 16) | (192 << 8) | 32:x}, {s_t2}")
    for tt in range(4):
        if tt < 3:
            a(f"v_add_u32 {v_t2}, {(0, 160, 80)[tt]}, {v_t3}")
        else:
            a(f"v_lshlrev_b32 {v_t2}, 3, {v_c}")
            a(f"v_bfe_u32 {v_t2}, {s_t2}, {v_t2}, 8")
            a(f"v_add_u32 {v_t2}, {v_t2}, {v_t0}")
        a(f"v_and_b32 {v_t2}, 255, {v_t2}")
        a(f"v_add_u32 {v_ba[0][tt]}, {v_t2}, {v_t1}")
        a(f"v_add_u32 {v_ba[1][tt]}, {2*SLOT}, {v_ba[0][tt]}")
    cuts = [len(a.lines)]
    if DEFER:
        common_ids()
        lds_zero()
        main_ids()
        cuts.append(len(a.lines))
    a(f"s_or_b32 {s_tg}, {s_rt}, {s_mh}")
    a(f"v_mov_b32 {v_neg}, 0x{NEG:x}")
    a(f"v_lshlrev_b32 {v_t0}, 2, {v_g}")
    a(f"v_sub_u32 {v_t0}, {v_row}, {v_t0}")
    a(f"s_cmp_eq_u32 {s_tg}, 0")
    a(f"s_cselect_b32 {s_tmp}, 0x{NEG:x}, 0")
    for r in range(4):
        a(f"v_subrev_u32 {v_t1}, {r}, {v_t0}")
        a(f"v_and_b32 {v_t2}, 0x80000001, {v_t1}")
        a(f"v_cmp_eq_u32 vcc, 0, {v_t2}")
        a("s_nop 1")
        a(f"v_cndmask_b32 {v_b1+r}, {v_neg}, 0, vcc")
        a(f"v_cmp_eq_u32 vcc, 0x80000000, {v_t2}")
        a("s_nop 1")
        a(f"v_cndmask_b32 {v_b0+r}, {v_neg}, 0, vcc")
        a(f"v_add_f32 {v_bp+r}, {s_tmp}, {v_b0+r}")
    for p, vb in enumerate((v_b0, v_b1)):
        for k in range(2):
            lo = 0x0c0c0000 | ((2 * k + 1) << 8) | (2 * k)
            hi = 0x00000c0c | ((2 * k + 1) << 24) | ((2 * k) << 16)
            a(f"v_mov_b32 {v_t1}, 0x0c0c0c0c")
            a(f"v_mov_b32 {v_t2}, 0x{lo:x}")
            a(f"v_cmp_eq_u32 vcc, 0, {vb+2*k}")
            a(f"v_mov_b32 {v_t3}, 0x{hi:x}")
            a("s_nop 0")
            a(f"v_cndmask_b32 {v_t1}, {v_t1}, {v_t2}, vcc")
            a(f"v_cmp_eq_u32 vcc, 0, {vb+2*k+1}")
            a("s_nop 1")
            a(f"v_cndmask_b32 {v_ps+2*p+k}, {v_t1}, {v_t3}, vcc")
    cuts.append(len(a.lines))
    a(f"s_mul_i32 {s_tmp}, {s_nh}, 1664")
    a(f"s_mul_i32 {s_t2}, {s_mh}, {6*128}")
    a(f"s_add_u32 {s_tmp}, {s_tmp}, {s_t2}")
    a(f"s_add_u32 {s_tmp}, {s_tmp}, {TV}")
    a(f"v_lshl_add_u32 {v_t0}, {v_g}, 2, {v_r}")
    a(f"v_lshl_add_u32 {v_tr}, {v_t0}, 3, {s_tmp}")
    a(f"v_lshl_add_u32 {v_t0}, {v_row}, 3, {s_tmp}")
    a(f"v_lshlrev_b32 {v_t1}, 3, {v_lane}")
    a(f"v_add_u32 {v_t1}, {TVD}, {v_t1}")
    a(f"v_cmp_eq_u32 vcc, 2, {v_g}")
    a(f"s_mul_i32 {s_tmp}, {s_nh}, 1536")
    a(f"s_add_u32 {s_tmp}, {s_tmp}, {XB}")
    a(f"v_cndmask_b32 {v_tw}, {v_t1}, {v_t0}, vcc")
    a(f"v_lshl_add_u32 {v_xb}, {v_lane}, 3, {s_tmp}")
    a(f"s_mul_i32 {s_tmp}, {s_mh}, {6*256}")
    a(f"s_add_u32 {s_tmp}, {s_tmp}, {TS}")
    a(f"s_lshl3_add_u32 {s_t2}, {s_nh}, {s_tmp}")
    a(f"v_lshl_add_u32 {v_sw1}, {v_row}, 4, {s_t2}")
    a(f"v_cmp_eq_u32 vcc, 0, {v_g}")
    a("s_nop 1")
    a(f"v_cndmask_b32 {v_sw1}, {v_t1}, {v_sw1}, vcc")
    a(f"s_mul_i32 {s_t2}, {s_nh}, {3*256}")
    a(f"s_add_u32 {s_tmp}, {s_tmp}, {s_t2}")
    a(f"v_lshl_add_u32 {v_sr1}, {v_lane}, 4, {s_tmp}")
    a(f"v_mov_b32 {v_cn}, {YB}")
    a("s_waitcnt lgkmcnt(0)")
    o_consts(s_c, s_c + 1)
    a(f"s_mul_i32 {s_tmp}, {s_mh}, 6")
    a(f"s_add_u32 {s_q}, {s_q}, {s_tmp}")
    a(f"s_add_u32 {s_q}, {s_q}, 3")
    a(f"s_lshl_b32 {s_tmp}, {s_nh}, 9")
    a(f"s_add_u32 {s_c}, {s_c}, {s_tmp}")
    a(f"v_and_b32 {v_t2}, 1, {v_g}")
    a(f"v_lshrrev_b32 {v_t3}, 1, {v_g}")
    a(f"v_add_u32 {v_t1}, {s_q}, {v_t2}")
    o_addr(v_o[2], v_t1, s_c)
    a(f"v_lshl_add_u32 {v_o[2]}, {v_t3}, 8, {v_o[2]}")
    a(f"v_subrev_u32 {v_t1}, 2, {v_t1}")
    o_addr(v_o[1], v_t1, s_c)
    a(f"v_lshl_add_u32 {v_o[1]}, {v_t3}, 8, {v_o[1]}")
    a(f"v_or_b32 {v_t2}, {s_mh}, {v_t2}")
    a(f"v_cmp_eq_u32 vcc, 0, {v_t2}")
    a(f"v_mov_b32 {v_t3}, 0x10000000")
    a(f"v_subrev_u32 {v_o[0]}, 81920, {v_o[2]}")
    a(f"v_cndmask_b32 {v_o[0]}, {v_o[0]}, {v_t3}, vcc")
    a(f"s_mul_i32 {s_tmp}, {s_nh}, 3")
    a(f"s_add_u32 {s_q}, {s_q}, {s_tmp}")
    a(f"v_add_u32 {v_t1}, {s_q}, {v_g}")
    o_addr(v_ot, v_t1, s_c + 1)
    a(f"v_subrev_u32 {v_ot}, 81920, {v_ot}")
    a(f"v_or_b32 {v_t2}, {s_w}, {v_g}")
    a(f"v_cmp_eq_u32 vcc, 0, {v_t2}")
    a("s_nop 1")
    a(f"v_cndmask_b32 {v_ot}, {v_ot}, {v_t3}, vcc")
    a(f"v_cmp_eq_u32 vcc, 3, {v_g}")
    a("s_nop 1")
    a(f"v_cndmask_b32 {v_ot}, {v_ot}, {v_t3}, vcc")
    cuts.append(len(a.lines))
    a(f"s_lshr_b32 {s_tmp}, {s_rt}, 3")
    a(f"s_mul_i32 {s_tmp}, {s_tmp}, 5120")
    a(f"s_add_u32 {s_tmp}, {s_tmp}, {FL_OFF}")
    a(f"s_and_b32 {s_t2}, {s_rt}, 31")
    a(f"s_cselect_b32 {s_t2}, 4, 0")
    a(f"v_mov_b32 {v_t0}, {s_t2}")
    a(f"v_cmp_gt_u32 vcc, 10, {v_lane}")
    a(f"v_lshl_add_u32 {v_fo}, {v_lane}, 9, {s_tmp}")
    a(f"s_mov_b32 {s_fl}, 0xfffff")
    a(f"v_cndmask_b32 {v_t0}, 0, {v_t0}, vcc")
    a(f"v_add_u32 {v_fo}, {v_fo}, {v_t0}")
    a(f"s_lshr_b32 {s_fb}, {s_pos}, 2")
    a(f"s_add_u32 {s_fb}, {s_fb}, {s_pos}")
    a(f"s_lshl_b32 {s_fb}, 1, {s_fb}")
    a(f"s_cmp_eq_u32 {s_w}, 0")
    a(f"s_cselect_b32 {s_fb}, {s_fb}, 0")
    a(f"s_mov_b32 {s_c}, 0x{LOG2E if P('RL2', 1) else SCALE_L2E:x}")
    a(f"s_mov_b32 {s_c+1}, {s_c}")
    a(f"s_mov_b32 {s_sc}, 0x{f32bits(20 ** -0.5):x}")
    a(f"s_mov_b32 {s_sc+1}, {s_sc}")
    cuts.append(len(a.lines))
    late = []
    if DEFER:
        late = [a.lines[cuts[k]:cuts[k+1]] for k in range(len(cuts) - 1)]
        del a.lines[cuts[0]:]
    acc = [V.many(4, 4) for _ in range(MH)]
    mF = V.mark()
    fa = [V.many(MH, 4) for _ in range(2)]
    fb = [V.many(4, 4) for _ in range(2)]
    vf1 = V.a(14, 2)
    vf0 = V.a(14, 2)

    def mm1(m, tt, ks, first=False):
        A, B = (fa[ks][m], fb[ks][tt]) if tt == 2 else (fb[ks][tt], fa[ks][m])
        return f"{MFMA} {acc[m][tt](4)}, {A(4)}, {B(4)}, {'0' if first else acc[m][tt](4)}"

    def read_ops(c, ks):
        sl = (c + 2) % NS
        sp, so = sl >> 1, (sl & 1) * SLOT
        B, A = [], []
        for tt in range(4):
            B.append([f"ds_read_b64_tr_b16 {(fb[ks][tt]+2*h)(2)}, {v_ba[sp][tt]} offset:{so + ks*8192 + h*1024}"
                      for h in range(2)])
        for m in range(MH):
            A.append(f"ds_read_b128 {fa[ks][m](4)}, {v_aa[sp][ks]} offset:{so + m*2048}")
        return B[0] + [A[0]] + B[1] + [A[1]] + B[2] + [A[2]] + B[3] + A[3:]

    def al8(tag, lvl):
        if P("A8", 0) & lvl:
            k = len(a.lines)
            while a.lines[k - 1].split()[0] in ("s_waitcnt", "s_barrier"):
                k -= 1
            if (len(a.lines) - k) % 2 == 0:
                a.lines.insert(k, f"K_A8{tag}:")
            else:
                a.lines.insert(k, f"K_B8{tag}:")

    def mfma_block(ks, first, fillers, post=None):
        al8(f"m{len(a.lines)}", 1)
        k = 0
        idx = 0
        order = [(m, tt) for m in range(MH) for tt in range(4)]
        if P("MORD", 2) == 1:
            order = [(m, tt) for tt in range(4) for m in range(MH)]
        if P("MORD", 2) == 2:
            order = [(m, tt if m % 2 == 0 else 3 - tt) for m in range(MH) for tt in range(4)]
        if P("MORD", 2) == 3:
            order = [(m if tt % 2 == 0 else MH - 1 - m, tt) for tt in range(4) for m in range(MH)]
        for m, tt in order:
            if True:
                a(mm1(m, tt, ks, first))
                if k < len(fillers):
                    a(fillers[k])
                    k += 1
                if post:
                    post(idx)
                idx += 1
        assert k == len(fillers)

    def warm_call(ret, c):
        if not P("WARM", 1):
            return
        for k in range(3):
            a(f"s_cmp_eq_u32 {s_w}, {k}")
            a(f"s_cbranch_scc1 K_CH{c}{k}")
        a(f"s_branch K_CH{c}3")
        a.label(ret)

    stamp(a, "csetup")
    NPRE = P("NPRE", 4)
    for seg in late[:NPRE]:
        a.lines += seg
    late = late[NPRE:]
    if not DEFER or P("WARMC", -1) < 0:
        warm_call("K_WRET_M", "M")
    def cpoison():
        for e in range(4):
            a(f"v_mov_b32 {vf0+e}, -1")
        for v in v_o + [v_ot]:
            a(f"buffer_store_dwordx4 {vf0(4)}, {v}, {sO(4)}, 0 offen {SC_ST}")

    if P("CPZ", -2) == -1:
        cpoison()
    stamp(a, "warmed")
    if P("CPRIO", 2):
        a(f"s_setprio {P('CPRIO', 2)}")
    a("s_barrier")
    stamp(a, "c0")
    a.label("K_L0")
    for line in read_ops(0, 0):
        a(line)
    kf = [acc[m][0] for m in range(MH)]
    qf = [acc[m][1] for m in range(MH)]

    def cvt(d, x):
        return f"v_cvt_pk_bf16_f32 {d}, {x}, {x+1}"

    def prep(m, tt):
        k, q, v, t = acc[m]
        if tt == 0:
            return [cvt(k, k), cvt(k + 1, k + 2)]
        if tt == 1:
            return [cvt(q, q), cvt(q + 1, q + 2)]
        if tt == 2:
            return [f"v_mov_b32 {q+2}, 0", f"v_mov_b32 {q+3}, 0"]
        L = [cvt(k + 2, t), cvt(k + 3, t + 2), cvt(vf0 + 2*m + 2, v), cvt(vf0 + 2*m + 3, v + 2),
             f"v_permlane16_swap_b32 {k+2}, {q+2}", f"v_permlane16_swap_b32 {k+3}, {q+3}",
             f"ds_write_b64 {v_tw}, {(k+2)(2)} offset:{(m+1)*128}",
             f"ds_read_b64_tr_b16 {(vf1+2*m+2)(2)}, {v_tr} offset:{(m+1)*128}"]
        if m == MH - 1:
            L += [f"s_cmp_lg_u32 {s_mh}, 0", "s_cbranch_scc1 K_NOX",
                  f"ds_write_b64 {v_xb}, {k(2)}", f"ds_write_b64 {v_xb}, {(k+2)(2)} offset:512",
                  f"ds_write_b64 {v_xb}, {(vf0+2*m+2)(2)} offset:1024", f"v_lshl_add_u32 {v_t0}, {s_nh}, 2, {v_cn}",
                  f"ds_write_b16 {v_t0}, {v_cn} offset:30", "K_NOX:"]
        return L

    for c in range(NCH):
        a.comment("chunk %d" % c)
        if c == 5:
            stamp(a, "c5")
        if c in (3, 8, 9):
            stamp(a, f"k{c}")
        a("s_waitcnt lgkmcnt(0)")
        if c == NCH - 1:
            break
        mfma_block(0, c == 0, read_ops(c, 1))
        if c == P("CPZ", -2):
            cpoison()
        if c == 8 and P("CPZ", -2) > -2:
            a("s_waitcnt vmcnt(0)")
        if DEFER and c == P("WARMC", -1):
            warm_call("K_WRET_M", "M")
        elif late:
            a.lines += late.pop(0)
        a("s_waitcnt lgkmcnt(0)")
        a("s_barrier")
        mfma_block(1, False, read_ops(c + 1, 0))

    EF = os.environ.get("EARLYF", "a3")
    EF1 = os.environ.get("EARLYF1", "a4")

    def hint(name):
        stamp(a, name)
        if name not in (EF, EF1):
            return
        if EF == EF1:
            a(f"s_cmp_eq_u32 {s_fb}, 0")
        else:
            a(f"s_and_b32 {s_tmp}, {s_fb}, 0x{0x3ff if name == EF1 else 0xffc00:x}")
        a(f"s_cbranch_scc{1 if EF == EF1 else 0} K_NOH{name}")
        a(f"v_mov_b32 {v_t2}, {s_fb}")
        a(f"s_mov_b32 exec_lo, {s_fl}")
        a("s_mov_b32 exec_hi, 0")
        a(f"global_atomic_add {v_fo}, {v_t2}, {WS(2)} {SC_FLAG}")
        a("s_mov_b64 exec, -1")
        a.label(f"K_NOH{name}")

    def cgate(name, vaddr, off, val):
        a(f"s_mov_b32 {s_tmp}, {SPIN*8}")
        a.label(f"K_CG{name}")
        a(f"ds_read_b32 {v_t1}, {vaddr} offset:{off}")
        a(f"s_sub_u32 {s_tmp}, {s_tmp}, 1")
        a("s_waitcnt lgkmcnt(0)")
        a(f"v_readfirstlane_b32 {s_t2}, {v_t1}")
        a(f"s_cselect_b32 {s_t2}, {val}, {s_t2}")
        a(f"s_cmp_lt_u32 {s_t2}, {val}")
        a(f"s_cbranch_scc1 K_CG{name}")

    QU, PU = [2, 3, 4, 5], [0, 1]
    sc = [(fa[0][u], fa[1][u]) for u in range(MH)]
    kx, ts4 = acc[5][3], fb[0][0]
    sw16 = lambda x, y: f"v_permlane16_swap_b32 {x}, {y}"
    sw32 = lambda x, y: f"v_permlane32_swap_b32 {x}, {y}"
    xrd = [f"ds_read_b64 {kx(2)}, {v_xb}", f"ds_read_b64 {(kx+2)(2)}, {v_xb} offset:512", f"ds_read_b64 {vf0(2)}, {v_xb} offset:1024",
           f"ds_read_b64_tr_b16 {vf1(2)}, {v_tr}"]
    ex = [fb[1][1] + 2*k for k in range(6)]
    pk = [sc[u][0] for u in range(MH)]

    def smm(u, own):
        k = kf[u] if own else (kf[u-1] if u else kx)
        b = v_b1 if own else (v_bp if u == 1 else v_b0)
        return f"{MFMA} {sc[u][own](4)}, {k(4)}, {qf[u](4)}, {b(4)}"

    def pick(u):
        s0, s1 = sc[u]
        return [f"v_max3_f32 {s0}, {s0}, {s0+1}, {s1}", f"v_max3_f32 {s0+2}, {s0+2}, {s0+3}, {s1+2}",
                f"v_max_f32 {s0}, {s0}, {s1+1}", f"v_max_f32 {s0+1}, {s0+2}, {s1+3}",
                cvt(s0, s0)]

    M0 = P("LASTM", 2)
    MO = list(range(MH - 1, -1, -1))
    seq = [(m, tt, 0) for m in MO[:M0] for tt in range(4)] + [(m, tt, 1) for m in MO[:M0] for tt in range(4)]
    for m in MO[M0:]:
        seq += [(m, tt, 0) for tt in range(4)] + [(m, tt, 1) for tt in range(4)]
    ro = read_ops(NCH - 1, 1)
    rB = [l for l in ro if "tr_b16" in l]
    rA = [l for l in ro if "b128" in l][::-1]
    fill = [(("b", 0), rB[0]), (("b", 0), rB[1]), (("a", 5), rA[0])] + [(("b", k // 2), rB[k]) for k in range(2, 8)] \
        + [(("a", 5 - k), rA[k]) for k in range(1, 6)]
    Q = LgkmQueue(a)
    todo = []
    ALW = ("s_cbr", "ds_write_b", "ds_or", "K_NOX", "v_lshl")
    XOK = ((YB & 0xffff) << 16) + 4

    def drain_todo(n):
        k = 0
        while todo and todo[0][0] <= len(a.lines) and (k < n or todo[0][1].startswith(ALW)):
            l = todo.pop(0)[1]
            if l.startswith("#"):
                ready_at[int(l[1:])] = len(a.lines) + 2
                continue
            a.raw(l) if l.endswith(":") else a(l)
            if l.startswith("ds_") and "offset:30" not in l and not l.startswith(f"ds_write_b64 {v_xb},"):
                Q.issue("x" if l in xrd else "w")
            k += 1

    ready_at = {}
    sq = [(u, own) for u in (5, 4, 3, 2, 1, 0) for own in (1, 0)]

    def try_score():
        if not sq:
            return False
        u, own = sq[0]
        need = [u] if own or not u else [u, u - 1]
        if any(ready_at.get(t, 1 << 30) > len(a.lines) for t in need):
            return False
        sq.pop(0)
        if (u, own) == (0, 0):
            Q.need("x")
            a(f"v_readfirstlane_b32 {s_t2}, {v_t1}")
            a(f"s_cmp_lt_u32 {s_t2}, {XOK - 4}")
            a("s_cbranch_scc1 K_XW")
            a.label("K_XR")
        a(smm(u, own))
        if not own:
            todo.extend([len(a.lines) + 8, l] for l in pick(u) + [f"#{10 + u}"])
        return True

    PPG = P("PPG", 2)
    al8("last", 2)
    for pos, (m, tt, ks) in enumerate(seq):
        if ks == 1:
            Q.need(("b", tt), ("a", m))
        a(mm1(m, tt, ks))
        nl = len(a.lines)
        for _ in range(2):
            if fill:
                tag, l = fill.pop(0)
                a(l)
                Q.issue(tag)
        if ks == 1:
            todo.extend([nl + (8 if tt != 2 else 0), l] for l in prep(m, tt) + ([f"#{m}"] if tt == 3 else []))
            if tt == 3 and m == P("XAT", 2):
                todo.extend([0, l] for l in [f"v_lshl_add_u32 {v_t0}, {s_nh}, 2, {v_cn}", f"ds_read_b32 {v_t1}, {v_t0} offset:28"] + xrd)
        drain_todo(PPG)
        if P("SEARLY", 1) and try_score():
            drain_todo(PPG)
    stamp(a, "join")

    def unpack_l(u):
        return [f"v_lshlrev_b32 {ex[u]}, 16, {pk[u]}", f"v_and_b32 {ex[u]+1}, 0xffff0000, {pk[u]}"]

    def unpack(u):
        for l in unpack_l(u):
            a(l)

    fq = [sw16(pk[4], pk[5]), sw16(pk[2], pk[3]), "s_nop 1", sw32(pk[2], pk[4]), sw32(pk[3], pk[5])] + sum((unpack_l(u) for u in (2, 4, 3)), [])
    while todo or sq:
        n0, m0 = len(a.lines), len(todo)
        try_score()
        drain_todo(3)
        if len(a.lines) == n0 and len(todo) == m0:
            a(fq.pop(0) if fq and ready_at.get(12, 1 << 30) <= len(a.lines) else "s_nop 0")
    hint("a1")
    for l in fq:
        a(l)
    unpack(5)
    a(sw16(pk[0], pk[1]))
    RL2 = P("RL2", 1)
    EO = [2, 4, 3, 5, 0, 1]
    for u in EO[4:]:
        unpack(u)
    if RL2:
        for u in EO:
            a(f"v_pk_mul_f32 {ex[u](2)}, {ex[u](2)}, {s_sc(2)}")
        for u in EO:
            a(cvt(pk[u], ex[u]))
        for u in EO[::-1]:
            unpack(u)
    PCE = EF in ("a2", "a25")
    assert "a1" not in (EF, EF1)

    def pcheck():
        a(f"v_readfirstlane_b32 {s_t2}, {v_t1}")
        a(f"s_cmp_lt_u32 {s_t2}, {XOK}")
        a("s_cbranch_scc1 K_PW")
        a.label("K_PR")

    if PCE:
        a(f"ds_read_b32 {v_t1}, {v_t0} offset:28")
    mq, mp, tp = sc[0][1], sc[0][1] + 2, sc[1][1]
    a(f"v_max3_f32 {mp}, {ex[0]}, {ex[0]+1}, {ex[1]}")
    a(f"v_max3_f32 {mq}, {ex[2]}, {ex[2]+1}, {ex[4]}")
    a(f"v_max_f32 {mp}, {mp}, {ex[1]+1}")
    a(f"v_max3_f32 {mq}, {mq}, {ex[4]+1}, {ex[3]}")
    a(f"v_mov_b32 {tp}, {mp}")
    a(f"v_max3_f32 {mq}, {mq}, {ex[3]+1}, {ex[5]}")
    a(f"v_max_f32 {mq}, {mq}, {ex[5]+1}")
    a(sw32(mp, tp))
    a(f"v_mul_f32 {mq}, {s_c}, {mq}")
    a(f"v_max_f32 {mp}, {mp}, {tp}")
    a(f"v_mul_f32 {mp}, {s_c}, {mp}")
    for u in QU + PU:
        a(f"v_pk_fma_f32 {ex[u](2)}, {ex[u](2)}, {s_c(2)}, {(mq if u >= 2 else mp)(2)} op_sel_hi:[1,1,0] neg_lo:[0,0,1] neg_hi:[0,0,1]")
    for u in PU + QU:
        a(f"v_exp_f32 {ex[u]}, {ex[u]}")
        a(f"v_exp_f32 {ex[u]+1}, {ex[u]+1}")
    if PCE:
        a("s_waitcnt lgkmcnt(0)")
        pcheck()
    hint("a2")
    t2 = sc[1][1] + 2
    if not PCE:
        a(f"ds_read_b32 {v_t1}, {v_t0} offset:28")
    a(f"v_pk_add_f32 {mp(2)}, {ex[0](2)}, {ex[1](2)}")
    a(f"v_pk_add_f32 {mq(2)}, {ex[2](2)}, {ex[3](2)}")
    a(f"v_add_f32 {mp}, {mp}, {mp+1}")
    a(f"v_pk_add_f32 {t2(2)}, {ex[4](2)}, {ex[5](2)}")
    a(f"v_mov_b32 {tp}, {mp}")
    a(f"v_pk_add_f32 {mq(2)}, {mq(2)}, {t2(2)}")
    a(f"v_add_f32 {mq}, {mq}, {mq+1}")
    a(sw32(mp, tp))
    a(f"v_rcp_f32 {mq}, {mq}")
    a(f"v_add_f32 {mp}, {mp}, {tp}")
    a(f"v_rcp_f32 {mp}, {mp}")
    for u in QU:
        a(f"v_pk_mul_f32 {ex[u](2)}, {ex[u](2)}, {mq(2)} op_sel_hi:[1,0]")
    for u in PU:
        a(f"v_pk_mul_f32 {ex[u](2)}, {ex[u](2)}, {mp(2)} op_sel_hi:[1,0]")
    hint("a25")
    for u in (2, 4, 3, 5, 0, 1):
        a(cvt(pk[u], ex[u]))
    for l in (sw32(pk[2], pk[4]), sw32(pk[3], pk[5]), sw16(pk[0], pk[1]), "s_waitcnt lgkmcnt(0)", sw16(pk[2], pk[3]), sw16(pk[4], pk[5])):
        a(l)
    if not PCE:
        pcheck()
    hint("a3")
    pf = qf
    oc = [(acc[m][2], acc[m][3]) for m in range(MH)]

    def pv(u):
        for dt, vf in ((1, vf1), (0, vf0)):
            a(f"{MFMA} {oc[u][dt](4)}, {(vf+2*u)(4)}, {pf[u](4)}, 0")

    def outp(q):
        st = kf[2*q]
        for j in range(2):
            a(cvt(st + 2*j, oc[2*q+j][0]))
        for j in range(2):
            a(cvt(st + 2*j + 1, oc[2*q+j][0] + 2))
        a("s_nop 0")
        a(sw16(st, st + 2))
        a(sw16(st + 1, st + 3))
        a(f"v_min_u32 {st}, -2, {st}")
        a(f"buffer_store_dwordx4 {st(4)}, {v_o[q]}, {sO(4)}, 0 offen {SC_ST}")

    def tail(u):
        t = kf[u | 1] + 2 * (u & 1)
        a(cvt(t, oc[u][1]))
        a(cvt(t + 1, oc[u][1] + 2))
        a(f"ds_write_b64 {v_sw1}, {t(2)} offset:{u*256}")

    pvl = lambda u, dt: f"{MFMA} {oc[u][dt](4)}, {((vf0, vf1)[dt]+2*u)(4)}, {pf[u](4)}, 0"
    for u in range(MH):
        for k in range(4):
            a(f"v_perm_b32 {pf[u]+k}, {pk[u]}, {pk[u]}, {v_ps+k}")
            if u > 0 and k & 1:
                a(pvl(u - 1, 1 - (k >> 1)))
        if u > 2:
            tail(u - 3)
        hint(f"b{u}")
    a(f"v_mov_b32 {v_t1}, 1")
    a(pvl(MH - 1, 1))
    hint("a4")
    a(f"v_lshl_add_u32 {v_t0}, {s_mh}, 2, {v_cn}")
    for u in range(3, MH):
        tail(u)
        if u == 3:
            a(pvl(MH - 1, 0))
    a("s_mov_b64 exec, 1")
    a(f"ds_add_u32 {v_t0}, {v_t1} offset:48")
    a("s_mov_b64 exec, -1")
    outp(0)
    outp(1)
    a(f"ds_read_b32 {v_t1}, {v_t0} offset:48")
    a(f"ds_read_b128 {ts4(4)}, {v_sr1}")
    hint("a5")
    outp(2)
    a("s_waitcnt lgkmcnt(0)")
    a(f"v_readfirstlane_b32 {s_t2}, {v_t1}")
    a(f"s_cmp_lt_u32 {s_t2}, 2")
    a("s_cbranch_scc1 K_TW")
    a.label("K_TR")
    a(f"v_min_u32 {ts4}, -2, {ts4}")
    a(f"buffer_store_dwordx4 {ts4(4)}, {v_ot}, {sO(4)}, 0 offen {SC_ST}")
    stamp(a, "attdone")
    a(f"s_cmp_eq_u32 {s_n}, -1")
    a("s_cbranch_scc1 K_END")
    a(f"s_add_u32 {s_w}, {s_w}, 4")
    a("s_branch K_P2_HELP")
    a.label("K_XW")
    cgate("X", v_t0, 28, XOK - 4)
    for l in xrd:
        a(l)
    a("s_waitcnt lgkmcnt(0)")
    a("s_branch K_XR")
    a.label("K_PW")
    cgate("P", v_t0, 28, XOK)
    a("s_branch K_PR")
    a.label("K_TW")
    cgate("T", v_t0, 48, 2)
    a(f"ds_read_b128 {ts4(4)}, {v_sr1}")
    a("s_waitcnt lgkmcnt(0)")
    a("s_branch K_TR")

    seg_aux0 = len(a.lines)
    S.release(mS)
    V.release(mV)
    a.label("K_AUX")
    GA, UP, DN = 0, 40960, 81920
    KEYS = 122880
    KSEL = KEYS + 1024
    PRE = KSEL + 64
    HB = PRE + 1024
    WV = HB + 1024
    assert WV + 4 * 4096 <= YB
    s_j = S.a()
    s_pm = S.a(8)
    s_pg = S.a(2)
    sR, sGW = sW, sO
    sG, sU, sD = S.many(3, 4)
    s_k1 = S.a(2)
    s_k2 = s_k1 + 1
    s_so, s_m0, s_m1 = S.many(3)
    s_t3 = S.a(3)

    def aux_ids():
        common_ids()
        a(f"s_mul_i32 {s_j}, {s_xcd}, 7")
        a(f"s_add_u32 {s_j}, {s_j}, {s_i}")
        a(f"s_sub_u32 {s_j}, {s_j}, 1")
        a(f"s_cmp_lt_u32 {s_j}, {NSL}")
        a(f"s_cselect_b32 {s_j}, {s_j}, 63")
        a(f"s_cmp_eq_u32 {s_i}, 0")
        a(f"s_cselect_b32 {s_j}, 63, {s_j}")

    v_row, v_xo, v_c16, v_go, v_do, v_gy = V.many(6)
    xr = V.a(160)
    vk = V.a(4)

    def fgate(name, off, val):
        a(f"s_mov_b32 {s_tmp}, {SPIN*8}")
        a.label(f"K_FG{name}")
        a(f"ds_read_b32 {v_t0}, {v_gy} offset:{off}")
        a("s_sleep 1")
        a(f"s_sub_u32 {s_tmp}, {s_tmp}, 1")
        a("s_waitcnt lgkmcnt(0)")
        a(f"v_readfirstlane_b32 {s_t2}, {v_t0}")
        a("s_nop 3")
        a(f"s_cselect_b32 {s_t2}, {val}, {s_t2}")
        a(f"s_cmp_lt_u32 {s_t2}, {val}")
        a(f"s_cbranch_scc1 K_FG{name}")

    a(f"s_cmp_ge_u32 {s_w}, 4")
    a("s_cbranch_scc1 K_AUX_L")
    a(f"s_and_b32 {s_tmp}, s2, 7")
    a(f"s_lshr_b32 {s_so}, s2, 3")
    a(f"s_lshl3_add_u32 {s_tmp}, {s_tmp}, {s_so}")
    a(f"s_lshl_b32 {s_tmp}, {s_tmp}, 5")
    a(f"s_lshl3_add_u32 {s_tmp}, {s_w}, {s_tmp}")
    a(f"v_bfe_u32 {v_row}, v0, 4, 2")
    a(f"v_add_u32 {v_row}, {s_tmp}, {v_row}")
    a(f"v_and_b32 {v_c16}, 15, v0")
    a(f"v_lshlrev_b32 {v_c16}, 4, {v_c16}")
    a(f"v_mul_u32_u24 {v_xo}, 1280, {v_row}")
    a(f"v_add_u32 {v_xo}, {v_xo}, {v_c16}")
    a(f"v_and_b32 {v_t0}, 63, v0")
    a(f"v_lshlrev_b32 {v_t0}, 4, {v_t0}")
    a(f"s_lshl_b32 {s_m0}, {s_w}, 12")
    a(f"s_add_u32 {s_m0}, {s_m0}, {WV}")
    a(f"s_mov_b32 {s_so}, {4*1280}")
    a(f"s_mov_b32 m0, {s_m0}")
    a("s_waitcnt lgkmcnt(0)")
    srd(a, sR, s_pm, 1280)
    srd(a, sGW, s_pg, 1280)
    a(f"buffer_load_dwordx4 {v_t0}, {sR(4)}, 0 offen lds")
    a(f"buffer_load_dwordx4 {v_t0}, {sR(4)}, 0 offen offset:1024 lds")
    a(f"s_add_u32 m0, {s_m0}, 2048")
    a(f"v_add_u32 {v_c16}, {s_m0}, {v_c16}")
    a(f"buffer_load_dwordx4 {v_t0}, {sGW(4)}, 0 offen lds")
    a(f"buffer_load_dwordx4 {v_t0}, {sGW(4)}, 0 offen offset:1024 lds")
    for j in range(5):
        for h in range(2):
            a(f"buffer_load_dwordx4 {(xr+8*j+4*h)(4)}, {v_xo}, {sX(4)}, {s_so if h else 0} offen offset:{j*256}")
    stamp(a, "rissued")
    if P("SKD", -1) >= 0:
        a("s_lshr_b32 s82, s2, 3")
        a(f"s_lshl3_add_u32 s82, s82, {s_w}")
        a("s_cmp_lg_u32 s82, 8")
        a("s_cbranch_scc1 K_SKD0")
        a("s_and_b32 s82, s2, 7")
        a("s_lshl_b32 s82, s82, 2")
        a("s_waitcnt lgkmcnt(0)")
        a(f"s_atomic_add s84, {DBG(2)}, s82 offset:16")
        a("s_waitcnt lgkmcnt(0)")
        a.label("K_SKD0")
    a("s_barrier")
    aux_ids()
    srd(a, sWO, s_pwo, 640 * 1280)
    srd(a, sD, WS, ZBYTES, FL_OFF)
    srd(a, sU, WS, YP_BYTES, YP_OFF)
    ar, ag = [xr + 80, xr + 81], [xr + 82, xr + 83]
    for v in ar + ag:
        a(f"v_mov_b32 {v}, 0")
    a(f"v_mov_b32 {v_gy}, {YB}")
    a("s_waitcnt vmcnt(10)")
    for j in range(5):
        a(f"ds_read_b128 {(xr+40+4*j)(4)}, {v_c16} offset:{j*256}")
        a(f"ds_read_b128 {(xr+60+4*j)(4)}, {v_c16} offset:{2048 + j*256}")
    for j in range(5):
        a(f"s_waitcnt vmcnt({8 - 2*j}) lgkmcnt({8 - 2*j})")
        for e in range(4):
            for h in range(2):
                a(f"v_dot2c_f32_bf16 {ar[h]}, {xr+8*j+4*h+e}, {xr+40+4*j+e}")
                a(f"v_dot2c_f32_bf16 {ag[h]}, {xr+8*j+4*h+e}, {xr+60+4*j+e}")
    a("s_nop 2")
    for dpp in ("quad_perm:[1,0,3,2]", "quad_perm:[2,3,0,1]", "row_half_mirror", "row_mirror"):
        for v in ar + ag:
            a(f"v_add_f32_dpp {v}, {v}, {v} {dpp} row_mask:0xf bank_mask:0xf")
    a(f"v_and_b32 {v_t2}, 31, {v_row}")
    a(f"v_lshlrev_b32 {v_go}, 2, {v_t2}")
    a(f"v_add_u32 {v_go}, {KEYS}, {v_go}")
    a(f"v_lshlrev_b32 {v_do}, 1, {v_t2}")
    a(f"v_add_u32 {v_do}, {KEYS + 128}, {v_do}")
    for h in range(2):
        bf16r(a, v_t0, ar[h])
        a(f"v_ashrrev_i32 {v_t1}, 31, {v_t0}")
        a(f"v_or_b32 {v_t1}, 0x80000000, {v_t1}")
        a(f"v_xor_b32 {v_t0}, {v_t0}, {v_t1}")
        a(f"v_and_b32 {v_t0}, 0xffff0000, {v_t0}")
        a(f"v_sub_u32 {v_t1}, 0x{0x87ff - 4*h:x}, {v_row}")
        a(f"v_or_b32 {ar[h]}, {v_t0}, {v_t1}")
        a(f"ds_write_b32 {v_go}, {ar[h]} offset:{16*h}")
        bf16r(a, ag[h], ag[h])
        sigmoid(a, ag[h], ag[h], v_t3)
        a(f"v_cvt_pk_bf16_f32 {ag[h]}, {ag[h]}, {ag[h]}")
        a(f"v_or_b32 {ag[h]}, 0x8000, {ag[h]}")
        a(f"ds_write_b16 {v_do}, {ag[h]} offset:{8*h}")
    a(f"v_mov_b32 {v_t1}, 1")
    a("s_mov_b64 exec, 1")
    a(f"ds_add_u32 {v_gy}, {v_t1} offset:48")
    a("s_mov_b64 exec, -1")
    stamp(a, "scored")
    a(f"s_cmp_ge_u32 {s_w}, 6")
    a("s_cbranch_scc1 K_AUX_G1")
    fgate("R", 48, 4)
    a(f"s_cmp_lg_u32 {s_w}, 4")
    a("s_cbranch_scc1 K_AUX_G0")
    a(f"v_and_b32 {v_t1}, 31, {v_lane}")
    a(f"v_lshlrev_b32 {v_t1}, 2, {v_t1}")
    a(f"v_add_u32 {v_t1}, {KEYS}, {v_t1}")
    a(f"ds_read_b32 {v_t0}, {v_t1}")
    a("s_waitcnt lgkmcnt(0)")
    wave_top2(a, v_t0, v_t1, s_k1, s_k2, s_t3)
    zpoll(3, [0, 64], 1)
    a("s_lshl_b32 %s, s2, 3" % s_tmp)
    a(f"s_add_u32 {s_tmp}, {s_tmp}, {FL_OFF + KMB}")
    a(f"s_atomic_add_x2 {s_k1(2)}, {WS(2)}, {s_tmp}")
    stamp(a, "pub")
    a(f"s_cmp_lg_u32 s2, {HUB}")
    a("s_cbranch_scc1 K_AUX_G1")
    a(f"s_mov_b32 {s_so}, {KMB}")
    a(f"v_lshlrev_b32 {v_t1}, 3, {v_lane}")
    a(f"s_mov_b32 {s_tmp}, {SPIN}")
    a.label("K_AUX_POLL")
    a(f"buffer_load_dwordx2 {vk(2)}, {v_t1}, {sD(4)}, {s_so} offen {SC_POLL}")
    a("s_waitcnt vmcnt(0)")
    a(f"v_min_u32 {v_t0}, {vk}, {vk+1}")
    a(f"v_cmp_eq_u32 vcc, 0, {v_t0}")
    a("s_cbranch_vccz K_AUX_GOT")
    a(f"s_sleep {P('KSLEEP', 2)}")
    a(f"s_sub_u32 {s_tmp}, {s_tmp}, 1")
    a(f"s_cmp_lg_u32 {s_tmp}, 0")
    a("s_cbranch_scc1 K_AUX_POLL")
    a.label("K_AUX_GOT")
    a("s_waitcnt lgkmcnt(0)")
    wave_max_u32(a, vk, v_t1, s_k1, s_t3)
    a(f"v_cmp_ne_u32 vcc, {s_k1}, {vk}")
    a("s_nop 1")
    a(f"v_cndmask_b32 {v_t0}, {vk+1}, {vk}, vcc")
    wave_max_u32(a, v_t0, v_t1, s_k2, s_t3)
    a(f"v_mov_b32 {vk}, {s_k1}")
    a(f"v_mov_b32 {vk+1}, {s_k2}")
    fgate("Z", 36, 1)
    a(f"v_lshlrev_b32 {v_t1}, 9, {v_lane}")
    a(f"s_mov_b32 {sD+2}, {KMB}")
    for k in range(3):
        a(f"s_mov_b32 {s_so}, {k*64*512}")
        a(f"buffer_store_dwordx2 {vk(2)}, {v_t1}, {sD(4)}, {s_so} offen offset:128 {SC_FLAG}")
    a(f"v_mov_b32 {v_t1}, 16")
    a(f"ds_write_b32 {v_gy}, {v_t1} offset:48")
    stamp(a, "hub")
    a("s_branch K_AUX_G1")
    a.label("K_AUX_G0")
    a(f"v_and_b32 {v_t1}, 3, {v_lane}")
    a(f"v_lshlrev_b32 {v_t1}, 4, {v_t1}")
    a(f"v_add_u32 {v_t0}, {KEYS + 128}, {v_t1}")
    a(f"ds_read_b128 {vk(4)}, {v_t0}")
    a(f"v_lshrrev_b32 {v_t0}, 2, {v_lane}")
    a(f"v_lshl_add_u32 {v_t1}, {v_t0}, 9, {v_t1}")
    a(f"s_sleep {P('BSLEEP', 12)}")
    zpoll(4, [128], NZ)
    a(f"v_mov_b32 {v_t0}, 1")
    a(f"ds_write_b32 {v_gy}, {v_t0} offset:36")
    a(f"s_lshr_b32 {s_tmp}, {s_i}, 2")
    a(f"s_lshl1_add_u32 {s_tmp}, {s_xcd}, {s_tmp}")
    a(f"s_mul_i32 {s_tmp}, {s_tmp}, 5120")
    a(f"s_and_b32 {s_so}, {s_i}, 3")
    a(f"s_lshl_b32 {s_so}, {s_so}, 6")
    a(f"s_add_u32 {s_tmp}, {s_tmp}, {s_so}")
    a("s_mov_b32 exec_hi, 0xff")
    a("s_waitcnt lgkmcnt(0)")
    a(f"buffer_store_dwordx4 {vk(4)}, {v_t1}, {sD(4)}, {s_tmp} offen offset:256 {SC_FLAG}")
    a("s_mov_b64 exec, -1")
    a.label("K_AUX_G1")
    a(f"s_cmp_lg_u32 {s_j}, 63")
    a("s_cbranch_scc1 K_FFN_C")
    a(f"s_cmp_lg_u32 {s_i}, 0")
    a("s_cbranch_scc1 K_AUX_NT")
    if P("WOLLC", 1):
        a(f"s_lshl2_add_u32 {s_tmp}, {s_xcd}, {s_w}")
        a(f"s_sub_u32 {s_tmp}, {s_tmp}, 4")
        a(f"s_mul_i32 {s_tmp}, {s_tmp}, {200*128}")
        a(f"v_lshlrev_b32 {v_t0}, 7, {v_lane}")
        for k in range(4):
            if k == 3:
                a("s_mov_b64 exec, 0xff")
            a(f"buffer_load_dword {v_t3}, {v_t0}, {sWO(4)}, {s_tmp} offen")
            a(f"s_add_u32 {s_tmp}, {s_tmp}, {64*128}")
        a("s_mov_b64 exec, -1")
    a.label("K_AUX_NT")
    fgate("Z2", 36, 1)
    a("s_waitcnt vmcnt(0)")
    a("s_branch K_P2")

    a.label("K_AUX_L")
    aux_ids()
    lds_zero()
    a(f"v_lshrrev_b32 {v_t1}, 2, {v_lane}")
    a(f"v_mul_u32_u24 {v_go}, 3456, {v_t1}")
    a(f"v_lshrrev_b32 {v_t1}, 4, {v_lane}")
    a(f"v_and_b32 {v_t1}, 2, {v_t1}")
    a(f"v_xor_b32 {v_t1}, {v_t1}, {v_lane}")
    a(f"v_and_b32 {v_t1}, 3, {v_t1}")
    a(f"v_lshl_add_u32 {v_go}, {v_t1}, 4, {v_go}")
    a(f"s_mul_i32 {s_tmp}, {s_w}, {10*55296}")
    a(f"s_lshl_b32 {s_so}, {s_j}, 6")
    a(f"s_add_u32 {s_tmp}, {s_tmp}, {s_so}")
    a(f"v_add_u32 {v_go}, {s_tmp}, {v_go}")
    a(f"s_mul_i32 {s_k1}, {s_w}, 10240")
    a(f"s_add_u32 {s_m1}, {s_k1}, {UP}")
    a(f"s_bitcmp1_b32 {s_j}, 0")
    a(f"s_cselect_b32 {s_m0}, {s_m1}, {s_k1}")
    a(f"s_cselect_b32 {s_m1}, {s_k1}, {s_m1}")
    a(f"v_lshlrev_b32 {v_row}, 4, {v_lane}")
    a("s_waitcnt lgkmcnt(0)")
    a("s_barrier")
    srd(a, sWO, s_pwo, 640 * 1280)
    a(f"s_cmp_lg_u32 {s_j}, 63")
    a("s_cbranch_scc1 K_AUX_FFN1")
    a(f"s_cmp_lg_u32 {s_w}, 0")
    a("s_cbranch_scc1 K_AUX_NR")
    a(f"s_cmp_eq_u32 s2, {HUB - 8}")
    a("s_cbranch_scc1 K_AUX_NR")
    a(f"s_cmp_eq_u32 s2, {HUB}")
    a(f"s_cselect_b32 {s_so}, 0, 128")
    a(f"s_mov_b32 {s_tmp}, 1")
    a("s_waitcnt vmcnt(0)")
    a(f"s_atomic_add {s_tmp}, {DBG(2)}, {s_so}")
    a(f"s_atomic_add {s_tmp}, {DBG(2)}, {s_so} offset:64")
    a("s_waitcnt lgkmcnt(0)")
    stamp(a, "zdone")
    a.label("K_AUX_NR")
    if APZ:
        a(f"s_cmp_lg_u32 {s_i}, 0")
        a("s_cbranch_scc1 K_AUX_NP")
        if P("APZD", 0):
            a(f"v_mov_b32 {v_gy}, {YB}")
            fgate("PD", 48, 4)
        srd(a, sO, WS, O_BYTES, O_OFF)
        for e in range(4):
            a(f"v_mov_b32 {vk+e}, -1")
        a(f"s_lshl2_add_u32 {s_so}, {s_xcd}, {s_w}")
        a(f"s_mul_i32 {s_so}, {s_so}, 81920")
        a(f"s_add_u32 {s_t2}, {s_so}, 81920")
        a.label("K_PZL")
        for k in range(4):
            a(f"buffer_store_dwordx4 {vk(4)}, {v_row}, {sO(4)}, {s_so} offen offset:{k*1024} {SC_ST}")
        a(f"s_add_u32 {s_so}, {s_so}, 4096")
        a(f"s_cmp_lt_u32 {s_so}, {s_t2}")
        a("s_cbranch_scc1 K_PZL")
        a(f"s_mov_b32 {s_tmp}, 1")
        a("s_waitcnt vmcnt(0)")
        a(f"s_atomic_add {s_tmp}, {DBG(2)}, 192")
        a("s_waitcnt lgkmcnt(0)")
        stamp(a, "pzdone")
        a.label("K_AUX_NP")
    a(f"v_mov_b32 {v_gy}, {YB}")
    fgate("Z3", 36, 1)
    a(f"s_cmp_lg_u32 s2, {HUB}")
    a("s_cbranch_scc1 K_AUX_NH")
    fgate("H", 48, 16)
    a.label("K_AUX_NH")
    a("s_branch K_P2")
    a.label("K_AUX_FFN1")
    a(f"s_bitcmp1_b32 {s_j}, 0")
    a(f"s_cselect_b64 {sG(2)}, {(s_pm+4)(2)}, {(s_pm+2)(2)}")
    a(f"s_cselect_b64 {sU(2)}, {(s_pm+2)(2)}, {(s_pm+4)(2)}")
    a(f"s_mov_b32 {sG+2}, {640*3456}")
    a(f"s_mov_b32 {sG+3}, 0x20000")
    a(f"s_mov_b32 {sU+2}, {640*3456}")
    a(f"s_mov_b32 {sU+3}, 0x20000")
    if P("LDEL", 0):
        a(f"s_sleep {P('LDEL', 0)}")
    for k in range(20):
        q = k % 10
        a(f"s_add_u32 m0, {s_m0 if k < 10 else s_m1}, {q*1024}")
        a(f"s_mov_b32 {s_so}, {q*55296}")
        a(f"buffer_load_dwordx4 {v_go}, {(sG if k < 10 else sU)(4)}, {s_so} offen {FNT} lds")
    srd(a, sD, s_pm + 6, 1728 * 1280)
    a(f"s_mul_i32 {s_tmp}, {s_j}, 40960")
    a(f"s_add_u32 {s_tmp}, {s_tmp}, {s_k1}")
    a(f"v_lshrrev_b32 {v_t0}, 3, {v_lane}")
    a(f"v_and_b32 {v_t1}, 2, {v_t0}")
    a(f"s_lshl_b32 {s_so}, {s_w}, 2")
    a(f"v_xor_b32 {v_t1}, {s_so}, {v_t1}")
    a(f"v_xor_b32 {v_t1}, {v_t1}, {v_lane}")
    a(f"v_and_b32 {v_t1}, 7, {v_t1}")
    a(f"v_mul_u32_u24 {v_t0}, 1280, {v_t0}")
    a(f"v_lshl_add_u32 {v_t0}, {v_t1}, 4, {v_t0}")
    a(f"v_add_u32 {v_do}, {s_tmp}, {v_t0}")
    for q in range(10):
        a(f"s_add_u32 m0, {s_k1}, {DN + q*1024}")
        a(f"s_mov_b32 {s_so}, {q*128}")
        a(f"buffer_load_dwordx4 {v_do}, {sD(4)}, {s_so} offen {FNTD} lds")
    a("s_waitcnt vmcnt(10)")
    a("s_barrier")
    a("s_branch K_P2_EARLY")

    a.label("K_FFN_C")
    wf, xf, df = xr, xr + 80, xr
    v_g, v_wa, v_da, v_ka = V.many(4)
    a(f"v_lshrrev_b32 {v_g}, 4, {v_lane}")
    a(f"v_bfe_u32 {v_t0}, {v_lane}, 2, 2")
    a(f"v_lshl_add_u32 {v_t0}, {v_g}, 3, {v_t0}")
    a(f"v_and_b32 {v_t1}, 3, {v_lane}")
    a(f"v_lshlrev_b32 {v_t1}, 3, {v_t1}")
    a(f"v_lshl_add_u32 {v_wa}, {v_t0}, 6, {v_t1}")
    a(f"s_bfe_u32 {s_tmp}, {s_w}, 0x10001")
    a(f"s_mul_i32 {s_tmp}, {s_tmp}, 40960")
    assert GA == 0
    a(f"v_xor_b32 {v_t2}, {s_w}, {v_g}")
    a(f"v_and_b32 {v_t2}, 1, {v_t2}")
    a(f"v_lshl_add_u32 {v_wa}, {v_t2}, 5, {v_wa}")
    a(f"v_add_u32 {v_wa}, {s_tmp}, {v_wa}")
    a(f"v_bfe_u32 {v_t2}, {v_lane}, 3, 2")
    a(f"v_xor_b32 {v_t2}, {s_w}, {v_t2}")
    a(f"v_and_b32 {v_t2}, 3, {v_t2}")
    a(f"v_lshl_add_u32 {v_t1}, {v_t2}, 5, {v_t1}")
    a(f"v_and_b32 {v_t0}, 3, {v_t0}")
    a(f"v_lshl_add_u32 {v_t1}, {v_t0}, 7, {v_t1}")
    a(f"v_mul_u32_u24 {v_da}, 10240, {v_g}")
    a(f"s_mov_b32 {s_tmp}, {DN}")
    a(f"v_add3_u32 {v_da}, {v_da}, {v_t1}, {s_tmp}")
    a(f"v_mov_b32 {v_ka}, {KSEL}")
    a(f"s_cmp_lg_u32 {s_w}, 5")
    a("s_cbranch_scc1 K_KW")
    a(f"s_mov_b32 {s_tmp}, {SPIN}")
    a.label("K_KPOLL")
    a(f"s_load_dwordx2 {s_k1(2)}, {WS(2)}, {s_mb} offset:128 glc")
    a("s_waitcnt lgkmcnt(0)")
    a(f"s_min_u32 {s_t2}, {s_k1}, {s_k2}")
    a(f"s_cmp_lg_u32 {s_t2}, 0")
    a("s_cbranch_scc1 K_KGOT")
    a(f"s_sleep {P('KSLEEP2', 2)}")
    a(f"s_sub_u32 {s_tmp}, {s_tmp}, 1")
    a("s_cbranch_scc0 K_KPOLL")
    a.label("K_KGOT")
    a(f"v_mov_b32 {vk}, {s_k1}")
    a(f"v_mov_b32 {vk+1}, {s_k2}")
    a(f"ds_write_b64 {v_ka}, {vk(2)}")
    a(f"v_lshlrev_b32 {v_t0}, 4, {v_lane}")
    XL = WV + 8192
    for t, sk in enumerate((s_k1, s_k2)):
        a(f"s_and_b32 {s_so}, {sk}, 0x7ff")
        a(f"s_sub_u32 {s_so}, 2047, {s_so}")
        a(f"s_mul_i32 {s_so}, {s_so}, 1280")
        a(f"s_mov_b32 m0, {XL + t*1344}")
        a("s_mov_b64 exec, -1")
        a(f"buffer_load_dwordx4 {v_t0}, {sX(4)}, {s_so} offen lds")
        a("s_mov_b64 exec, 0xffff")
        a(f"buffer_load_dwordx4 {v_t0}, {sX(4)}, {s_so} offen offset:1024 lds")
    a("s_mov_b64 exec, -1")
    a(f"v_mov_b32 {v_t1}, 16")
    a("s_waitcnt vmcnt(0)")
    a(f"ds_write_b32 {v_gy}, {v_t1} offset:48")
    a("s_branch K_KW2")
    a.label("K_KW")
    a(f"s_cmp_lt_u32 {s_w}, 6")
    a("s_cbranch_scc1 K_KW2")
    a(f"s_cmp_eq_u32 {s_w}, 6")
    a("s_cbranch_scc1 K_CHF0")
    a("s_branch K_CHF1")
    a.label("K_WRET_F")
    a.label("K_KW2")
    a(f"v_and_b32 {v_t0}, 1, {v_lane}")
    a(f"v_mul_u32_u24 {v_xo}, 1344, {v_t0}")
    a(f"v_lshl_add_u32 {v_xo}, {v_g}, 4, {v_xo}")
    a(f"v_add_u32 {v_xo}, {XL}, {v_xo}")
    pacc = V.many(2, 4)
    v_pa, v_hr, v_hs, v_hw, v_yo = V.many(5)
    a(f"v_and_b32 {v_t0}, 1, {v_lane}")
    a(f"v_lshlrev_b32 {v_pa}, 6, {v_t0}")
    a(f"v_lshl_add_u32 {v_pa}, {v_g}, 4, {v_pa}")
    a(f"s_and_b32 {s_tmp}, {s_w}, 3")
    a(f"s_lshl_b32 {s_tmp}, {s_tmp}, 7")
    a(f"v_add3_u32 {v_hr}, {v_pa}, {s_tmp}, {v_ka}")
    a(f"v_add_u32 {v_pa}, {PRE - KSEL}, {v_hr}")
    a(f"v_add_u32 {v_hr}, {HB - KSEL}, {v_hr}")
    a(f"v_lshrrev_b32 {v_t0}, 5, {v_lane}")
    a(f"v_bfe_u32 {v_t1}, {v_lane}, 4, 1")
    a(f"v_lshl_add_u32 {v_t1}, {v_t1}, 1, {v_t0}")
    a(f"v_lshlrev_b32 {v_t1}, 6, {v_t1}")
    a(f"v_and_b32 {v_t2}, 15, {v_lane}")
    a(f"v_lshl_add_u32 {v_t1}, {v_t2}, 2, {v_t1}")
    a(f"v_add_u32 {v_hs}, {PRE}, {v_t1}")
    a(f"v_lshlrev_b32 {v_t2}, 1, {v_lane}")
    a(f"s_add_u32 {s_tmp}, {s_tmp}, {HB}")
    a(f"v_add_u32 {v_hw}, {s_tmp}, {v_t2}")
    a(f"v_and_b32 {v_t0}, 1, {v_lane}")
    a(f"v_mul_u32_u24 {v_t0}, 2560, {v_t0}")
    a(f"v_lshl_add_u32 {v_yo}, {v_g}, 4, {v_t0}")
    a(f"s_lshl_b32 {s_so}, {s_w}, 6")
    a(f"s_add_u32 {s_so}, {s_so}, {WV - 4*64}")
    a(f"v_add_u32 {v_yo}, {s_so}, {v_yo}")
    a(f"v_mov_b32 {v_t1}, 1")
    fgate("K", 48, 16)
    stamp(a, "keys")
    for q in range(20):
        a(f"ds_read_b128 {(xf+4*q)(4)}, {v_xo} offset:{q*64}")
    a("s_setprio 3")
    a("s_barrier")
    stamp(a, "dmad")
    for q in range(20):
        for h in range(2):
            a(f"ds_read_b64_tr_b16 {(wf+4*q+2*h)(2)}, {v_wa} offset:{q*2048 + h*256}")
    a("s_waitcnt lgkmcnt(0)")
    a("s_barrier")
    stamp(a, "polled")
    for q in range(20):
        a(f"{MFMA} {pacc[q&1](4)}, {(wf+4*q)(4)}, {(xf+4*q)(4)}, {'0' if q < 2 else pacc[q&1](4)}")
    stamp(a, "xin")
    a("s_nop 7")
    for r in range(4):
        a(f"v_add_f32 {pacc[0]+r}, {pacc[0]+r}, {pacc[1]+r}")
    a("s_mov_b32 exec_lo, 0x00030003")
    a("s_mov_b32 exec_hi, 0x00030003")
    a(f"ds_write_b128 {v_pa}, {pacc[0](4)}")
    a("s_mov_b64 exec, 1")
    a(f"ds_add_u32 {v_gy}, {v_t1} offset:52")
    a("s_mov_b64 exec, -1")
    a(f"s_cmp_lg_u32 {s_w}, 6")
    a("s_cbranch_scc1 K_NOS6B")
    mb_sample(v_t2)
    a.label("K_NOS6B")
    fgate("P", 52, 8)
    hv = V.a(4)
    stamp(a, "pre")
    a(f"ds_read_b32 {hv}, {v_hs}")
    a(f"ds_read_b32 {hv+2}, {v_hs} offset:256")
    for q in range(7):
        for h in range(2):
            a(f"ds_read_b64_tr_b16 {(df+4*q+2*h)(2)}, {v_da} offset:{q*1024 + h*512}")
    a("s_waitcnt lgkmcnt(14)")
    bf16r(a, hv, hv)
    bf16r(a, hv + 2, hv + 2)
    sigmoid(a, hv + 1, hv, hv + 1)
    a(f"v_mul_f32 {hv}, {hv}, {hv+1}")
    bf16r(a, hv, hv)
    a(f"v_mul_f32 {hv}, {hv}, {hv+2}")
    a(f"v_cvt_pk_bf16_f32 {hv}, {hv}, {hv}")
    a(f"ds_write_b16 {v_hw}, {hv}")
    a("s_waitcnt lgkmcnt(0)")
    a(f"ds_read_b128 {hv(4)}, {v_hr}")
    for q in range(7, 10):
        for h in range(2):
            a(f"ds_read_b64_tr_b16 {(df+4*q+2*h)(2)}, {v_da} offset:{q*1024 + h*512}")
    a("s_waitcnt lgkmcnt(6)")
    for q in range(10):
        if q >= 7:
            a(f"s_waitcnt lgkmcnt({2 * (9 - q)})")
        a(f"{MFMA} {(xf+4*q)(4)}, {(df+4*q)(4)}, {hv(4)}, 0")
    a("s_mov_b32 exec_lo, 0x00030003")
    a("s_mov_b32 exec_hi, 0x00030003")
    for q in range(10):
        a(f"ds_write_b128 {v_yo}, {(xf+4*q)(4)} offset:{q*256}")
    a(f"v_mov_b32 {v_t1}, 1")
    a("s_mov_b64 exec, 1")
    a(f"ds_add_u32 {v_gy}, {v_t1} offset:52")
    a("s_mov_b64 exec, -1")
    stamp(a, "yl")
    a(f"s_cmp_lg_u32 {s_w}, 4")
    a("s_cbranch_scc1 K_P2")
    a(f"v_lshlrev_b32 {v_t1}, 4, {v_lane}")
    a(f"v_add_u32 {v_t2}, {WV}, {v_t1}")
    a(f"s_mul_i32 {s_so}, {s_j}, 5120")
    a(f"s_add_u32 {s_m0}, {s_so}, 4096")
    fgate("Q", 52, 12)
    for q in range(5):
        a(f"ds_read_b128 {(df+4*q)(4)}, {v_t2} offset:{q*1024}")
    for q in range(5):
        a(f"s_waitcnt lgkmcnt({4-q})")
        a(f"buffer_store_dwordx4 {(df+4*q)(4)}, {v_t1}, {sU(4)}, {s_so if q < 4 else s_m0} offen offset:{(q % 4)*1024} {SC_ST}")
    a(f"s_mov_b32 {s_tmp}, 1")
    a("s_waitcnt vmcnt(0)")
    stamp(a, "ydone")
    a(f"s_atomic_add {s_tmp}, {WS(2)}, {FL_OFF + YCNT} glc")
    a(f"ds_read_b64 {vk(2)}, {v_ka}")
    a("s_waitcnt lgkmcnt(0)")
    a(f"s_cmp_lg_u32 {s_tmp}, {NSL - 1}")
    a("s_cbranch_scc1 K_P2")
    for t in range(2):
        a(f"v_readfirstlane_b32 {s_so}, {vk+t}")
        a(f"s_and_b32 {s_so}, {s_so}, 0x7ff")
        a(f"s_sub_u32 {s_so}, 2047, {s_so}")
        a(f"s_lshr_b32 {s_so}, {s_so}, 7")
        a(f"s_mul_i32 {s_so}, {s_so}, 5120")
        for ct in range(10):
            a(f"s_atomic_add {s_tmp}, {WS(2)}, {s_so} offset:{FL_OFF + ct*512 + 136}")
    a("s_waitcnt lgkmcnt(0)")
    a("s_branch K_P2")
    seg_aux1 = len(a.lines)

    S.release(mS)
    V.release(mV)
    sG, sY = sW, S.a(4)
    s_sel = S.a(4)
    s_k1, s_k2, s_hi = S.many(3)
    assert S.next >= s_lhi
    sOut = S.a(4)
    s_so, s_tg, s_row0, s_c10 = S.many(4)
    RO = P("P2RO", 6)
    s_lo = S.many(RO)
    s_rem, s_bud = S.many(2)
    v_l3, v_g, v_xo, v_go, v_fa, v_da, v_sr, v_yb = V.many(8)
    xv = V.a(8)
    gv = V.many(2, 2)
    vsel = V.a(4)
    bx = V.a(16)
    mV3 = V.mark()
    RM = P("RMIX", 0)

    GOL = YB + 1024

    def epi_pre():
        L = []
        for i in range(8):
            L += [f"v_lshlrev_b32 {bx+2*i}, 16, {xv+i}", f"v_and_b32 {bx+2*i+1}, 0xffff0000, {xv+i}"]
        return L
    v_r, v_c, v_sw, v_wo = V.many(4)
    v_oo = V.many(2)
    PERM = [0, 2, 5, 7, 1, 3, 4, 6]
    HGT = [[8 * (u & 1) + PERM[4 * (u >> 1) + i] for i in range(4)] for u in range(4)]
    vn, va = V.many(2), V.many(2)
    v_ma, v_m = V.many(2)

    of = [V.many(2, 4) for _ in range(RO)]
    acc = V.many(2, 16)
    fb = [V.many(4, 4) for _ in range(3)]
    bxt = V.many(4, 2)

    def p2_common():
        a(f"s_lshl_b32 {s_row0}, {s_rt2}, 7")
        a(f"v_lshrrev_b32 {v_l3}, 3, {v_lane}")
        a(f"v_lshrrev_b32 {v_g}, 4, {v_lane}")
        a(f"v_mov_b32 {v_yb}, {YB}")
        a(f"s_lshl_b32 {s_tg}, {s_rt2}, 3")
        a(f"s_add_u32 {s_tg}, {s_tg}, {s_w}")
        a(f"s_mul_i32 {s_tmp}, {s_tg}, 20480")
        a(f"s_lshl_b32 {s_t2}, {s_ct}, 7")
        a(f"s_add_u32 {s_tmp}, {s_tmp}, {s_t2}")
        a(f"v_and_b32 {v_t0}, 7, {v_lane}")
        a(f"v_lshlrev_b32 {v_t0}, 4, {v_t0}")
        a(f"v_mul_u32_u24 {v_t2}, 1280, {v_l3}")
        a(f"v_add3_u32 {v_xo}, {v_t0}, {v_t2}, {s_tmp}")
        a(f"s_lshl_b32 {s_tmp}, {s_w}, 7")
        a(f"s_add_u32 {s_tmp}, {s_tmp}, {GOL}")
        a(f"v_lshl_add_u32 {v_go}, {v_l3}, 3, {s_tmp}")
        a(f"s_mov_b32 {s_c10}, 10240")
        srd(a, sO, WS, O_BYTES, O_OFF)
        srd(a, sOut, s_po, X_BYTES)
        a(f"v_mul_u32_u24 {v_t1}, {SP}, {v_l3}")
        a(f"v_add_u32 {v_t1}, {v_t0}, {v_t1}")
        a(f"s_mul_i32 {s_tmp}, {s_w}, {16*SP}")
        a(f"s_add_u32 {s_tmp}, {s_tmp}, {STG}")
        a(f"v_add_u32 {v_sr}, {s_tmp}, {v_t1}")

    def p2_gemm_setup():
        a(f"v_bfe_u32 {v_r}, {v_lane}, 2, 2")
        a(f"v_and_b32 {v_c}, 3, {v_lane}")
        a(f"s_add_u32 {s_tmp}, {s_tg}, {s_w}")
        a(f"s_lshr_b32 {s_t2}, {s_tmp}, 2")
        a(f"s_mul_i32 {s_t2}, {s_t2}, {80 - 4}")
        a(f"s_add_u32 {s_tmp}, {s_tmp}, {s_t2}")
        a(f"s_lshl_b32 {s_tmp}, {s_tmp}, 10")
        a(f"v_and_b32 {v_t0}, 15, {v_lane}")
        a(f"v_lshl_add_u32 {v_t0}, {v_t0}, 4, {s_tmp}")
        a(f"v_lshrrev_b32 {v_t1}, 5, {v_lane}")
        a(f"v_lshl_add_u32 {v_t0}, {v_t1}, 8, {v_t0}")
        a(f"v_and_b32 {v_t2}, 1, {v_g}")
        a(f"v_lshl_add_u32 {v_oo[0]}, {v_t2}, 10, {v_t0}")
        a(f"v_mov_b32 {v_oo[1]}, 0x1f000")
        assert WO_L == 0
        a(f"v_lshl_add_u32 {v_t0}, {v_t1}, 3, {v_r}")
        a(f"v_lshlrev_b32 {v_t0}, 7, {v_t0}")
        a(f"v_lshl_add_u32 {v_t0}, {v_c}, 3, {v_t0}")
        a(f"v_lshl_add_u32 {v_t0}, {v_t2}, 5, {v_t0}")
        a(f"v_lshrrev_b32 {v_t2}, 1, {v_r}")
        a(f"v_lshl_add_u32 {vn[0]}, {v_t2}, 6, {v_t0}")
        a(f"v_xor_b32 {vn[1]}, 64, {vn[0]}")
        a(f"v_mov_b32 {va[0]}, {vn[0]}")
        a(f"v_mov_b32 {va[1]}, {vn[0]}")
        a(f"v_and_b32 {v_t0}, 31, {v_lane}")
        a(f"v_mul_u32_u24 {v_t0}, {SP}, {v_t0}")
        a(f"v_lshl_add_u32 {v_t0}, {v_t1}, 3, {v_t0}")
        a(f"s_mul_i32 {s_tmp}, {s_w}, {32*SP}")
        a(f"s_add_u32 {s_tmp}, {s_tmp}, {STG}")
        a(f"v_add_u32 {v_sw}, {s_tmp}, {v_t0}")

    def p2_gemm_setup2():
        a(f"s_and_b32 {s_t2}, {s_rt2}, 3")
        a(f"s_lshl_b32 {s_t2}, {s_t2}, 2")
        a(f"s_lshr_b32 {s_t2}, 0xf63f, {s_t2}")
        a(f"s_and_b32 {s_t2}, {s_t2}, 15")
        a(f"s_lshl1_add_u32 {s_tmp}, {s_w}, 1")
        a(f"s_cmp_ge_u32 {s_tmp}, {s_t2}")
        a(f"s_cselect_b32 {s_so}, 24, 16")
        a(f"s_cmp_gt_u32 {s_tmp}, {s_t2}")
        a(f"s_cselect_b32 {s_so}, 20, {s_so}")
        a(f"v_add_u32 {v_ma}, {s_so}, {v_yb}")
        for r in range(RO):
            a(f"s_mov_b32 {s_lo[r]}, -1")
        a(f"s_mov_b32 {s_rem}, 0xfffff")
        a(f"s_mov_b32 {s_bud}, {SPIN}")
        for m in range(2):
            for e in range(16):
                a(f"v_mov_b32 {acc[m]+e}, 0")

    def lgate(name, off, val, sleep=0):
        a(f"s_mov_b32 {s_tmp}, {SPIN*8}")
        a.label(f"K_P2_G{name}")
        a(f"ds_read_b32 {v_t0}, {v_yb} offset:{off}")
        if sleep:
            a(f"s_sleep {sleep}")
        a(f"s_sub_u32 {s_tmp}, {s_tmp}, 1")
        a("s_waitcnt lgkmcnt(0)")
        a(f"v_readfirstlane_b32 {s_t2}, {v_t0}")
        a("s_nop 3")
        a(f"s_cselect_b32 {s_t2}, {val}, {s_t2}")
        a(f"s_cmp_lt_u32 {s_t2}, {val}")
        a(f"s_cbranch_scc1 K_P2_G{name}")

    def xloads():
        a(f"buffer_load_dwordx4 {xv(4)}, {v_xo}, {sX(4)}, 0 offen")
        a(f"buffer_load_dwordx4 {(xv+4)(4)}, {v_xo}, {sX(4)}, {s_c10} offen")

    a.label("K_P2_EARLY")
    p2_common()
    xloads()
    p2_gemm_setup()
    p2_gemm_setup2()
    if not SENT:
        a("s_waitcnt vmcnt(2)")
    a("s_barrier")
    stamp(a, "drained")
    a("s_branch K_P2_AUXW")
    a.label("K_P2_GM")
    GE = [int(x) for x in os.environ.get("GE", "").split(",") if x]
    early = {}
    for k, fn in enumerate((p2_common, p2_gemm_setup, p2_gemm_setup2, lambda: warm_call("K_WRET_B", "B"))):
        n0 = len(a.lines)
        if k < len(GE):
            a(f"s_cmp_eq_u32 {s_n}, -1")
            a(f"s_cbranch_scc1 K_GS{k}")
        fn()
        if k < len(GE):
            a.label(f"K_GS{k}")
            early.setdefault(GE[k], []).extend(a.lines[n0:])
            del a.lines[n0:]
        if k == P("WLK", 1) and P("WLM", 0) == 1:
            wo_blocks(v_wv, s_w, 1, s_k1, s_k2, s_so)
        if k == 2:
            xloads()
    assert V.next <= 216
    stamp(a, "g2")
    a(f"v_mov_b32 {v_t1}, 1")
    a("s_waitcnt vmcnt(2)")
    stamp(a, "g3")
    a("s_mov_b64 exec, 1")
    a(f"ds_add_u32 {v_yb}, {v_t1} offset:44")
    a("s_mov_b64 exec, -1")
    lgate("WM", 44, 4, 1)
    if P("WLM", 0) < 2:
        a(f"ds_write_b32 {v_yb}, {v_yb} offset:56")
    a.label("K_P2_GEMM")
    a(f"s_setprio {P('GPRIO', 1)}")
    stamp(a, "p2in")
    spin, drain = Asm(), Asm()
    s_rdy, s_p = s_sel + 2, s_sel + 3
    assert RO % 3 == 0
    def pub_consts():
        a(f"s_add_u32 {s_k2}, {s_rt2}, 1")
        a(f"s_and_b32 {s_k2}, {s_k2}, 2")
        a(f"s_mov_b32 {sY+2}, 0x84210")
        a(f"s_mov_b32 {sY+3}, {sY+2}")

    pub_consts()
    a("s_waitcnt vmcnt(0)")
    for l in epi_pre():
        a(l)
    if P("P2LOG", 0):
        a("s_mov_b32 m0, 0")
        a("s_memrealtime s[80:81]")
        V.high = 256
    a("s_branch K_SPL")
    for r in range(RO):
        c, n = (r + 1) % RO, (r + 2) % RO
        rd = [f"ds_read_b64_tr_b16 {(fb[(c+2) % 3][t]+2*h)(2)}, {va[t >> 1]} offset:{(t & 1)*2048 + h*512}" for t in range(4) for h in range(2)]
        refresh = [f"ds_read_b32 {v_m}, {v_ma}", "s_waitcnt lgkmcnt(0)", f"v_readfirstlane_b32 {s_rdy}, {v_m}"]
        sand = f"s_and_b32 {s_t2}, {s_rdy}, {s_rem}"
        ff1 = f"s_ff1_i32_b32 {s_p}, {s_t2}"
        shl = f"s_lshl_b32 {s_lo[r]}, {s_p}, 12"
        clr = f"s_bitset0_b32 {s_rem}, {s_p}"
        ld = [f"buffer_load_dwordx4 {of[r][m](4)}, {v_oo[0]}, {sO(4)}, {s_lo[r]} offen offset:{m*512} {SC_LD}" for m in range(2)]
        dl = f"buffer_load_dword {v_t1}, {v_oo[0]}, {sO(4)}, {s_lo[r]} offen"
        nul = [f"s_mov_b32 {s_lo[r]}, -1", f"v_mov_b32 {of[r][0]}, -1"]
        ad = [f"v_and_or_b32 {va[t]}, {s_lo[(c+3) % RO]}, {v_oo[1]}, {vn[t]}" for t in range(2)]
        mm = [f"v_mfma_f32_32x32x16_bf16 {acc[nh](16)}, {fb[c % 3][2*nh + kh](4)}, {of[c][kh](4)}, {acc[nh](16)}"
              for nh, kh in ((0, 0), (1, 0), (0, 1), (1, 1))]
        a.label(f"K_IT{r}")
        if P("P2LOG", 0):
            a("v_writelane_b32 v251, s80, m0")
            a("s_memrealtime s[80:81]")
            a(f"v_writelane_b32 v252, {s_lo[c]}, m0")
            a(f"v_writelane_b32 v253, {s_rdy}, m0")
            a(f"v_writelane_b32 v250, {s_bud}, m0")
            a("s_add_u32 m0, m0, 1")
        chk = lambda k: [f"s_waitcnt vmcnt({2*(RO-2)}) lgkmcnt({k})", f"v_cmp_u_f32 vcc, {of[n][0]}, {of[n][1]}"]
        rest = lambda x0, x1: x0 + [rd[2], rd[3], mm[2], x1, rd[4], rd[5]] + chk(6) + [mm[3], rd[6], rd[7]] + ad
        for l in [mm[0], rd[0], rd[1], sand, f"s_cbranch_scc0 K_RF{r}"]:
            a(l)
        a.label(f"K_RB{r}")
        for l in rest([ff1, mm[1], clr, shl, ld[0]], ld[1]):
            a(l)
        a(f"s_cbranch_vccnz K_FX{c}")
        if r == RO - 1:
            a("s_branch K_IT0")
        drain.label(f"K_DR{r}")
        for l in [mm[0], rd[0], rd[1]]:
            drain(l)
        drain.label(f"K_DM{r}")
        for l in rest(nul + [mm[1], dl], dl):
            drain(l)
        drain(f"s_cbranch_vccnz K_DX{c}")
        if r == RO - 1:
            drain("s_branch K_DR0")
        spin.label(f"K_RF{r}")
        spin(f"s_cmp_eq_u32 {s_rem}, 0")
        spin(f"s_cbranch_scc1 K_DM{r}")
        for l in refresh + [sand]:
            spin(l)
        spin(f"s_cbranch_scc1 K_RB{r}")
        for l in rest([mm[1]] + nul + [dl], dl):
            spin(l)
        spin(f"s_cbranch_vccz K_IT{c}")
        spin(f"s_branch K_FX{c}")
        spin.label(f"K_TL{r}")
        for l in chk(8) + ad:
            spin(l)
        spin(f"s_cbranch_vccz K_IT{c}")
        spin(f"s_branch K_FX{c}")
        spin.label(f"K_DX{r}")
        live = [s_lo[j] for j in range(RO) if j not in (r, (r - 1) % RO)]
        spin(f"s_and_b32 {s_p}, {live[0]}, {live[1]}")
        for o in live[2:]:
            spin(f"s_and_b32 {s_p}, {s_p}, {o}")
        spin(f"s_cmp_lt_i32 {s_p}, 0")
        spin("s_cbranch_scc1 K_P2_MM")
        spin.label(f"K_FX{r}")
        spin(f"s_cmp_lt_i32 {s_lo[c]}, 0")
        spin(f"s_cbranch_scc1 K_SK{r}")
        spin(f"v_max_u32 {v_t0}, {of[c][0]}, {of[c][1]}")
        spin(f"v_cmp_eq_u32 vcc, -1, {v_t0}")
        spin(f"s_cbranch_vccz K_IT{r}")
        spin(f"s_sub_u32 {s_bud}, {s_bud}, 1")
        spin(f"s_cbranch_scc1 K_IT{r}")
        spin(f"s_lshr_b32 {s_p}, {s_lo[c]}, 12")
        spin(f"s_bitset1_b32 {s_rem}, {s_p}")
        spin.label(f"K_SK{r}")
        spin(sand)
        spin(f"s_cbranch_scc0 K_NUL{r}")
        spin.label(f"K_BK{r}")
        for l in [ff1, shl] + ld + [clr]:
            spin(l)
        spin.label(f"K_RD{r}")
        for l in rd:
            spin(l)
        spin(f"s_cmp_lt_i32 {s_lo[n]}, 0")
        spin(f"s_cbranch_scc0 K_TL{r}")
        for l in ad:
            spin(l)
        spin(f"s_branch K_SK{c}")
        spin.label(f"K_NUL{r}")
        oth = [s_lo[j] for j in range(RO) if j not in (r, c)]
        spin(f"s_and_b32 {s_p}, {oth[0]}, {oth[1]}")
        for o in oth[2:]:
            spin(f"s_and_b32 {s_p}, {s_p}, {o}")
        spin(f"s_cmp_lt_i32 {s_p}, 0")
        spin(f"s_cbranch_scc0 K_PC{r}")
        spin(f"s_cmp_eq_u32 {s_rem}, 0")
        spin("s_cbranch_scc1 K_P2_MM")
        spin("s_branch K_SPN")
        spin.label(f"K_PC{r}")
        spin(f"s_cmp_eq_u32 {s_rem}, 0")
        spin(f"s_cbranch_scc1 K_NI{r}")
        for _ in range(P("NPACE", 2)):
            for l in refresh + [sand]:
                spin(l)
            spin(f"s_cbranch_scc1 K_BK{r}")
        spin.label(f"K_NI{r}")
        for l in nul + [dl, dl]:
            spin(l)
        spin(f"s_branch K_RD{r}")
    if P("SPNEAR", 1):
        a.lines += drain.lines + spin.lines
        spin.lines = []
    a.label("K_P2_MM")
    seg_f0 = seg_f1 = len(a.lines)
    stamp(a, "p2mm")
    if P("P2LOG", 0):
        a("s_lshl_b32 s80, s2, 2")
        a(f"s_add_u32 s80, s80, {s_w}")
        a("s_lshl_b32 s80, s80, 10")
        a("s_add_u32 s80, s80, 0x%x" % (STAMP_OFF + 0x100000))
        a(f"v_lshl_add_u32 v254, {v_lane}, 4, s80")
        a(f"global_store_dwordx4 v254, v[250:253], {WS(2)}")
    for nh in range(2):
        for jq in range(4):
            tr = bxt[jq]
            a(f"v_cvt_pk_bf16_f32 {tr}, {acc[nh]+4*jq}, {acc[nh]+4*jq+1}")
            a(f"v_cvt_pk_bf16_f32 {tr+1}, {acc[nh]+4*jq+2}, {acc[nh]+4*jq+3}")
            a(f"ds_write_b64 {v_sw}, {tr(2)} offset:{nh*64 + jq*16}")

    seg_h0 = len(a.lines)
    a.label("K_P2")
    a(f"s_cmp_ge_u32 {s_w}, 4")
    a("s_cbranch_scc1 K_P2_HELP")
    p2_common()
    xloads()
    p2_gemm_setup()
    p2_gemm_setup2()
    a.label("K_P2_AUXW")
    wo_voff(v_wo)

    def dn_done():
        a(f"v_mov_b32 {v_t1}, 1")
        a("s_mov_b64 exec, 1")
        a(f"ds_add_u32 {v_yb}, {v_t1} offset:52")
        a("s_mov_b64 exec, -1")

    wo_blocks(v_wo, s_w, 0, s_k1, s_k2, s_so, P("THR", 6), dn_done)
    warm_call("K_WRET_A", "A")
    a(f"v_mov_b32 {v_t1}, 1")
    a("s_waitcnt vmcnt(0)")
    a("s_mov_b64 exec, 1")
    a(f"ds_add_u32 {v_yb}, {v_t1} offset:44")
    a("s_mov_b64 exec, -1")
    lgate("WA", 44, 4)
    a("s_branch K_P2_GEMM")
    V.release(mV3)
    a.label("K_P2_HELP")
    a(f"s_setprio {P('HPRIO', 3)}")
    a(f"s_cmp_eq_u32 {s_w}, 7")
    a("s_cbranch_scc1 K_P2_W7")
    a(f"s_cmp_eq_u32 {s_w}, 4")
    a("s_cbranch_scc1 K_P2_NL")
    if P("WLM", 0) < 2:
        a(f"s_cmp_ge_u32 {s_i}, 8")
        a("s_cbranch_scc1 K_P2_NL")
    if P("WLH", 0):
        a(f"s_sleep {P('WLH', 0)}")
    srd(a, sWO, s_pwo, 640 * 1280)
    wo_voff(v_fa)
    a(f"s_sub_u32 {s_tg}, {s_w}, 5")
    wo_blocks(v_fa, s_tg, 1, s_k1, s_k2, s_so, P("THR2", 0))
    a(f"s_add_u32 {s_tg}, {s_tg}, 2")
    wo_blocks(v_fa, s_tg, 1, s_k1, s_k2, s_so, P("THR2", 0))
    a(f"v_mov_b32 {v_t0}, {YB}")
    a(f"v_mov_b32 {v_t1}, 1")
    a("s_waitcnt vmcnt(0)")
    stamp(a, "wl")
    a("s_mov_b64 exec, 1")
    a(f"ds_add_u32 {v_t0}, {v_t1} offset:56")
    a("s_mov_b64 exec, -1")
    a.label("K_P2_NL")
    p2_common()
    srd(a, sY, WS, YP_BYTES, YP_OFF)
    vs = V.a(4)
    yq = V.many(14, 4)
    v_one = V.a()
    a(f"v_mov_b32 {v_one}, 1")
    xloads()
    a(f"s_cmp_lg_u32 {s_w}, 6")
    a("s_cbranch_scc1 K_P2_HW")
    a(f"s_mov_b32 {s_tmp}, {SPIN}")
    a("s_waitcnt vmcnt(2)")
    a.label("K_P2_DPOLL")
    a(f"v_min_u32 {v_t0}, {v_smp}, {v_pf}")
    a(f"v_cmp_eq_u32 vcc, 0, {v_t0}")
    a("s_cbranch_vccz K_P2_DOK")
    a(f"s_cmp_eq_u32 {s_tmp}, {SPIN}")
    a("s_cbranch_scc1 K_P2_DNS")
    a(f"s_sleep {P('DSLEEP', 12)}")
    a.label("K_P2_DNS")
    mb_sample(v_da)
    a(f"s_sub_u32 {s_tmp}, {s_tmp}, 1")
    a("s_waitcnt vmcnt(0)")
    a(f"s_cmp_lg_u32 {s_tmp}, 0")
    a("s_cbranch_scc1 K_P2_DPOLL")
    a.label("K_P2_DOK")
    a(f"v_readlane_b32 {s_k1}, {v_pf}, 0")
    a(f"v_readlane_b32 {s_k2}, {v_pf}, 1")
    a("s_nop 1")
    for t, sk in enumerate((s_k1, s_k2)):
        a(f"s_and_b32 {s_tmp}, {sk}, 0x7ff")
        a(f"s_sub_u32 {s_tmp}, 2047, {s_tmp}")
        a(f"v_mov_b32 {vs+t}, {s_tmp}")
        a(f"v_mov_b32 {v_t2}, {sk}")
        a(f"v_and_b32 {v_t2}, 0xffff0000, {v_t2}")
        a(f"v_ashrrev_i32 {v_t3}, 31, {v_t2}")
        a(f"v_not_b32 {v_t3}, {v_t3}")
        a(f"v_or_b32 {v_t3}, 0x80000000, {v_t3}")
        a(f"v_xor_b32 {v_t2}, {v_t2}, {v_t3}")
        a(f"v_and_b32 {v_t2}, 0xffff0000, {v_t2}")
        sigmoid(a, v_t2, v_t2, v_t3)
        bf16r(a, vs + 2 + t, v_t2)
    a(f"ds_write_b128 {v_yb}, {vs(4)}")
    a(f"ds_write_b32 {v_yb}, {v_one} offset:40")
    a(f"v_lshl_add_u32 {v_da}, {v_lane}, 4, {v_yb}")
    a(f"v_lshlrev_b32 {yq[0]}, 16, {v_smp}")
    a(f"v_and_b32 {yq[0]}, 0x7fff0000, {yq[0]}")
    a(f"v_and_b32 {yq[0]+2}, 0x7fff0000, {v_smp}")
    for e in (0, 2):
        a(f"v_sub_f32 {yq[0]+e+1}, 1.0, {yq[0]+e}")
        bf16r(a, yq[0] + e + 1, yq[0] + e + 1)
    a(f"ds_write_b128 {v_da}, {yq[0](4)} offset:{GOL - YB}")
    a("s_branch K_P2_E")
    a.label("K_P2_HW")
    lgate("S2", 40, 1, 1)
    a(f"ds_read_b128 {vsel(4)}, {v_yb}")
    a("s_waitcnt lgkmcnt(0)")
    a(f"s_cmp_eq_u32 {s_w}, 4")
    a("s_cselect_b64 vcc, -1, 0")
    a("s_nop 1")
    a(f"v_cndmask_b32 {v_t0}, {vsel+1}, {vsel}, vcc")
    a(f"v_cndmask_b32 {v_t3}, {vsel+3}, {vsel+2}, vcc")
    a("s_nop 0")
    a(f"v_readfirstlane_b32 {s_k1}, {v_t0}")
    a("s_nop 3")
    a(f"s_sub_u32 {s_tmp}, {s_k1}, {s_row0}")
    a(f"s_cmp_lt_u32 {s_tmp}, 128")
    a("s_cbranch_scc0 K_P2_E")
    a(f"s_mov_b32 {s_tmp}, {SPIN}")
    a.label("K_P2_YPOLL")
    a(f"s_load_dword {s_t2}, {WS(2)}, {s_mb} offset:136 glc")
    a("s_waitcnt lgkmcnt(0)")
    a(f"s_cmp_lg_u32 {s_t2}, 0")
    a("s_cbranch_scc1 K_P2_YGO")
    a(f"s_sleep {P('YSLEEP', 4)}")
    a(f"s_sub_u32 {s_tmp}, {s_tmp}, 1")
    a("s_cbranch_scc0 K_P2_YPOLL")
    a.label("K_P2_YGO")
    a(f"v_and_b32 {v_t0}, 15, {v_lane}")
    a(f"v_lshlrev_b32 {v_t0}, 4, {v_t0}")
    a(f"v_mul_u32_u24 {v_t2}, 5120, {v_g}")
    a(f"s_sub_u32 {s_k2}, {s_w}, 4")
    a(f"s_mul_i32 {s_t2}, {s_k2}, 2560")
    a(f"s_lshl_b32 {s_tmp}, {s_ct}, 8")
    a(f"s_add_u32 {s_tmp}, {s_tmp}, {s_t2}")
    a(f"v_add3_u32 {v_t1}, {v_t0}, {v_t2}, {s_tmp}")
    NQ = (NSL + 3) // 4
    for q in range(NQ):
        a(f"s_mov_b32 {s_so}, {q*20480}")
        a(f"buffer_load_dwordx4 {yq[q](4)}, {v_t1}, {sY(4)}, {s_so} offen {SC_LD}")
    for q in range(1, NQ):
        a(f"s_waitcnt vmcnt({NQ-1-q})")
        for e in range(4):
            a(f"v_add_f32 {vs+e}, {(vs if q > 1 else yq[0])+e}, {yq[q]+e}")
    for swap in ("v_permlane16_swap_b32", "v_permlane32_swap_b32"):
        for e in range(4):
            a(f"v_mov_b32 {yq[0]+e}, {vs+e}")
        a("s_nop 0")
        for e in range(4):
            a(f"{swap} {vs+e}, {yq[0]+e}")
        for e in range(4):
            a(f"v_add_f32 {vs+e}, {vs+e}, {yq[0]+e}")
    for e in range(4):
        bf16r(a, vs + e, vs + e)
        a(f"v_mul_f32 {vs+e}, {v_t3}, {vs+e}")
        bf16r(a, vs + e, vs + e)
    a(f"s_lshl_b32 {s_tmp}, {s_k2}, 8")
    a(f"s_add_u32 {s_tmp}, {s_tmp}, {YB + 256}")
    a(f"v_add_u32 {v_t0}, {s_tmp}, {v_t0}")
    a(f"ds_write_b128 {v_t0}, {vs(4)}")
    a("s_branch K_P2_E")
    a.label("K_P2_W7")
    a(f"s_mov_b32 {s_fl}, {s_mb}")
    s_mm, s_tb, s_ma, s_tq = sY, sY + 2, s_sel, s_sel + 2
    a("s_waitcnt lgkmcnt(0)")
    a(f"s_load_dwordx2 {s_ma(2)}, {WS(2)}, {s_fl} glc")
    pub_consts()
    a(f"v_mov_b32 {v_yb}, {YB}")

    def publish():
        a(f"s_cmp_eq_u32 {s_k2}, 0")
        a(f"s_cselect_b32 {s_ma+1}, {s_ma}, {s_ma+1}")
        a(f"s_lshl_b64 {s_tq(2)}, {s_ma(2)}, 1")
        a(f"s_and_b64 {s_tq(2)}, {s_tq(2)}, {s_ma(2)}")
        a(f"s_lshl_b64 vcc, {s_tq(2)}, 2")
        a(f"s_and_b64 {s_tq(2)}, {s_tq(2)}, vcc")
        a(f"s_lshl_b64 {s_tq(2)}, {s_tq(2)}, 1")
        a(f"s_and_b64 {s_tq(2)}, {s_tq(2)}, {s_tb(2)}")
        a(f"s_or_b64 {s_ma(2)}, {s_ma(2)}, {s_tq(2)}")
        a(f"v_readfirstlane_b32 {s_k1}, {v_t3}")
        a(f"s_cmp_ge_u32 {s_k1}, 2")
        a(f"s_cselect_b32 {s_k1}, -1, 0x3ff")
        a(f"s_and_b32 {s_ma}, {s_ma}, {s_k1}")
        a(f"s_and_b32 {s_ma+1}, {s_ma+1}, {s_k1}")
        a(f"s_and_b32 {s_k1}, {s_ma}, {s_ma+1}")
        a(f"v_mov_b32 {vs}, {s_ma}")
        a(f"v_mov_b32 {vs+1}, {s_ma+1}")
        a(f"v_mov_b32 {vs+2}, {s_k1}")
        a("s_mov_b64 exec, 1")
        a(f"ds_or_b64 {v_yb}, {vs(2)} offset:16")
        a(f"ds_or_b32 {v_yb}, {vs+2} offset:24")
        a("s_mov_b64 exec, -1")

    a(f"v_mov_b32 {v_t3}, 0")
    a(f"v_mov_b32 {vs}, 0x80000000")
    a("s_mov_b64 exec, 1")
    for off in (16, 20, 24):
        a(f"ds_or_b32 {v_yb}, {vs} offset:{off}")
    a("s_waitcnt lgkmcnt(0)")
    publish()
    a(f"s_load_dwordx2 {s_ma(2)}, {WS(2)}, {s_fl} glc")
    stamp(a, "fin")

    p2_common()
    xloads()
    a(f"s_mov_b32 {s_tmp}, {SPIN}")
    a("s_waitcnt lgkmcnt(0)")
    if P("PIPE", 1):
        a.label("K_P2_FP")
        a(f"s_load_dwordx2 {s_mm(2)}, {WS(2)}, {s_fl} glc")
        publish()
        a(f"ds_read_b32 {v_t3}, {v_yb} offset:56")
        a(f"s_cmp_eq_u32 {s_k1}, 0xfffff")
        a("s_cbranch_scc1 K_P2_FGO")
        a(f"s_cmp_lg_u64 {s_ma(2)}, 0")
        a("s_cbranch_scc1 K_P2_FS2")
        a(f"s_sleep {P('FSLEEP0', 8)}")
        a.label("K_P2_FS2")
        a(f"s_sub_u32 {s_tmp}, {s_tmp}, 1")
        a("s_waitcnt lgkmcnt(0)")
        a(f"s_mov_b64 {s_ma(2)}, {s_mm(2)}")
        a("s_cbranch_scc0 K_P2_FP")
        a(f"s_mov_b32 {s_tmp}, 0")
    a.label("K_P2_FCHK")
    publish()
    a(f"s_cmp_eq_u32 {s_k1}, 0xfffff")
    a("s_cbranch_scc1 K_P2_FGO")
    a(f"s_cmp_lg_u64 {s_ma(2)}, 0")
    a("s_cbranch_scc1 K_P2_FS")
    a(f"s_sleep {P('FSLEEP0', 8)}")
    a.label("K_P2_FS")
    a(f"s_sleep {P('FSLEEP', 2)}")
    a(f"s_load_dwordx2 {s_ma(2)}, {WS(2)}, {s_fl} glc")
    a(f"ds_read_b32 {v_t3}, {v_yb} offset:56")
    a(f"s_sub_u32 {s_tmp}, {s_tmp}, 1")
    a("s_waitcnt lgkmcnt(0)")
    a("s_cbranch_scc0 K_P2_FCHK")
    for e in range(3):
        a(f"v_mov_b32 {vs+e}, -1")
    a(f"ds_write_b96 {v_yb}, {vs(3)} offset:16")
    a.label("K_P2_FGO")
    stamp(a, "fgo")
    a.label("K_P2_E")
    a("s_setprio 0")
    a("s_waitcnt vmcnt(0)")
    for l in epi_pre():
        a(l)
    a("s_branch K_P2_E2")
    a.label("K_SPN")
    for r in range(RO):
        a(f"s_mov_b32 {s_lo[r]}, -1")
    vs = bxt[0]
    a.label("K_SPL")
    for l in refresh + [sand]:
        a(l)
    a("s_cbranch_scc1 K_BK0")
    a(f"s_cmp_lt_i32 {s_rdy}, 0")
    a("s_cbranch_scc0 K_SPG")
    a(f"s_sleep {P('SSLEEP', 1)}")
    a("s_branch K_SPL")
    a.label("K_SPG")
    a(f"s_load_dwordx2 {s_ma(2)}, {WS(2)}, {s_mb} glc")
    a(f"ds_read_b32 {v_t3}, {v_yb} offset:56")
    a("s_waitcnt lgkmcnt(0)")
    publish()
    for l in refresh + [sand]:
        a(l)
    a("s_cbranch_scc1 K_BK0")
    for k in range(P("GSN", 3)):
        a(f"s_sleep {P('GSLEEP', 2)}")
        for l in refresh + [sand]:
            a(l)
        a("s_cbranch_scc1 K_BK0")
    a("s_branch K_SPL")
    seg_h1 = len(a.lines)

    V.release(mV3)
    a.label("K_P2_E2")
    if P("EPRIO", -1) >= 0:
        a(f"s_setprio {P('EPRIO', -1)}")
    av = V.a(8)
    yt = V.a(12)
    ta = V.a(4)
    a("s_waitcnt vmcnt(0) lgkmcnt(0)")
    s_r16 = S.a()
    a(f"s_lshl_b32 {s_r16}, {s_tg}, 4")
    a("s_barrier")
    stamp(a, "p2e")
    a(f"ds_read_b64 {vsel(2)}, {v_yb}")
    a(f"ds_read_b64 {gv[0](2)}, {v_go}")
    a(f"ds_read_b128 {av(4)}, {v_sr}")
    a(f"ds_read_b64 {gv[1](2)}, {v_go} offset:64")
    a(f"ds_read_b128 {(av+4)(4)}, {v_sr} offset:{8*SP}")
    a("s_waitcnt lgkmcnt(4)")
    for k in range(2):
        a(f"v_readfirstlane_b32 {s_sel+k}, {vsel+k}")
    rare = Asm()
    for t in range(2):
        a(f"s_sub_u32 {s_tmp}, {s_sel+t}, {s_r16}")
        a(f"s_cmp_lt_u32 {s_tmp}, 16")
        a(f"s_cbranch_scc1 K_YROW{t}")
        a.label(f"K_NOY{t}")
        r_ = rare
        r_.label(f"K_YROW{t}")
        r_(f"v_and_b32 {v_t0}, 7, {v_lane}")
        r_(f"v_lshlrev_b32 {v_t0}, 5, {v_t0}")
        r_(f"v_add_u32 {v_t0}, {YB + 256 + t*256}, {v_t0}")
        r_(f"ds_read_b128 {yt(4)}, {v_t0}")
        r_(f"ds_read_b128 {(yt+4)(4)}, {v_t0} offset:16")
        r_(f"s_and_b32 {s_t2}, {s_tmp}, 7")
        r_(f"v_cmp_eq_u32 vcc, {s_t2}, {v_l3}")
        r_(f"s_cmp_ge_u32 {s_tmp}, 8")
        r_(f"s_cbranch_scc1 K_YR1_{t}")
        for j in range(2):
            if j:
                r_.label(f"K_YR1_{t}")
            r_("s_waitcnt lgkmcnt(0)")
            for i in range(8):
                tt_ = yt + 8 + (i & 3)
                r_(f"v_add_f32 {tt_}, {bx+8*j+i}, {yt+i}")
                bf16r(r_, tt_, tt_)
                r_(f"v_cndmask_b32 {bx+8*j+i}, {bx+8*j+i}, {tt_}, vcc")
            r_(f"s_branch K_NOY{t}")
    OSC = [os.environ.get("OUT_SC%d" % j, "sc1").replace("_", " ") for j in range(2)]
    for j in range(2):
        a(f"s_waitcnt lgkmcnt({3-2*j})")
        for i in range(4):
            b_ = bx + 8 * j + 2 * i
            a(f"v_pk_mul_f32 {b_(2)}, {b_(2)}, {gv[j](2)} op_sel:[0,1] op_sel_hi:[1,1]")
        a(f"s_waitcnt lgkmcnt({2-2*j})")
        for i in range(4):
            r = av + 4 * j + i
            t = ta + 2 * (i & 1)
            a(f"v_lshlrev_b32 {t}, 16, {r}")
            a(f"v_and_b32 {t+1}, 0xffff0000, {r}")
            a(f"v_pk_fma_f32 {t(2)}, {t(2)}, {gv[j](2)}, {(bx+8*j+2*i)(2)} op_sel_hi:[1,0,1]")
            a(f"v_cvt_pk_bf16_f32 {r}, {t}, {t+1}")
        a(f"buffer_store_dwordx4 {(av+4*j)(4)}, {v_xo}, {sOut(4)}, {'0' if j == 0 else s_c10} offen {OSC[j]}")
    if P("ENDW", 0):
        stamp(a, "st")
        a("s_waitcnt vmcnt(0)")
    a.label("K_END")
    if P("SKD", -1) >= 0:
        a("s_cmp_lg_u32 s2, 8")
        a("s_cbranch_scc1 K_EXIT")
        a(f"s_load_dwordx8 s[84:91], {DBG(2)}, 16 glc")
        a("s_memrealtime s[92:93]")
        a("s_waitcnt lgkmcnt(0)")
        a("s_sub_u32 s82, s%d, s%d" % (84 + P("SKD", -1), 84 + P("SKR", 1)))
        a("s_add_u32 s82, s82, 50")
        a("s_mul_i32 s82, s82, 20")
        a("s_min_u32 s82, s82, 20000")
        a.label("K_SKD1")
        a("s_memrealtime s[94:95]")
        a("s_waitcnt lgkmcnt(0)")
        a("s_sub_u32 s83, s94, s92")
        a("s_cmp_lt_u32 s83, s82")
        a("s_cbranch_scc1 K_SKD1")
    else:
        stamp_flush(a, 0, WS, "K_STX")
    a.label("K_EXIT")
    a("s_endpgm")
    L = a.lines
    a.lines = L[:seg_aux0] + L[seg_aux1:seg_f0] + L[seg_f1:seg_h0] + L[seg_h1:] + rare.lines + spin.lines + L[seg_f0:seg_f1] \
        + L[seg_h0:seg_h1]
    a.label("K_CHEND")
    a.lines += L[seg_aux0:seg_aux1]
    a.label("K_CODE_END")
    L = []
    for l in a.lines:
        L += early.get(int(l[3:]), []) if l.startswith("@@G") else [l]
    a.lines = L
    return V.high, S.high


def kd(name, vg, sg):
    vg = (vg + 7) // 8 * 8
    return """.amdhsa_kernel %s
  .amdhsa_next_free_vgpr %d
  .amdhsa_next_free_sgpr %d
  .amdhsa_accum_offset %d
  .amdhsa_group_segment_fixed_size 0
  .amdhsa_kernarg_size 96
  .amdhsa_user_sgpr_count 2
  .amdhsa_user_sgpr_kernarg_segment_ptr 1
  .amdhsa_system_sgpr_workgroup_id_x 1
.end_amdhsa_kernel""" % (name, vg, 100 if STAMP else max(sg, 16), vg)


ENTRY_OFF = 0x300


def is_instr(l):
    return l.startswith("    ") and not l.strip().startswith(";")


def sizes_of(head, body, tail):
    import subprocess, tempfile, re
    fix = ["K_CH%s%d:" % (c, k) for k in range(4) for c in "MABF"] + ["K_CPL = 32"]
    with tempfile.TemporaryDirectory() as d:
        open(d + "/t.s", "w").write("\n".join(head + body + fix + ["s_endpgm"] + tail) + "\n")
        subprocess.run(["clang", "-x", "assembler", "-target", "amdgcn-amd-amdhsa", "-mcpu=gfx950", "-c",
                        d + "/t.s", "-o", d + "/t.o"], check=True)
        dis = subprocess.run(["llvm-objdump", "-d", d + "/t.o"], capture_output=True, text=True, check=True).stdout
    addrs = [int(m.group(1), 16) for m in re.finditer(r"// ([0-9A-F]{12}):", dis)]
    n = sum(map(is_instr, body))
    assert len(addrs) == n + 1, (len(addrs), n)
    return [addrs[i + 1] - addrs[i] for i in range(n)]


def layout(head, body, tail):
    sz = sizes_of(head, body, tail)
    out, stubs = [], []
    addr, last, k = ENTRY_OFF, ENTRY_OFF, 0
    dead, on, D1, DF = False, False, P("WD1", 512), P("WDF", 0)
    AL = {}
    for it in os.environ.get("ALIGN", "K_IT0:32:8,K_DR0:32:16").split(","):
        if it:
            nm_, md, rm = it.split(":")
            AL[nm_] = (int(md), int(rm))
    for idx, l in enumerate(body):
        if l.startswith("K_LOADER:"):
            on = bool(P("WARM", 1))
        if l.startswith("K_CHEND:"):
            on = False
            nm = len(stubs)
        if l.startswith("K_KW2:"):
            on = True
            DF = 960
        if l.startswith("K_P2_EARLY:"):
            DF = P("WDF2", 0)
            a0 = len(stubs)
        if l[:-1] in AL or l.startswith(("K_A8", "K_B8")):
            md, rm = AL.get(l[:-1], (8, P("A8PH", 0) ^ (4 if l.startswith("K_B8") else 0)))
            while addr % md != rm:
                out.append("    s_nop 0")
                addr += 4
        if not is_instr(l):
            if l.endswith(":") and dead and on and addr - last >= D1 and (addr & 4095) <= 4096 - 64 and not l.startswith(("K_WRET", "K_CONS", "K_YR", "K_NOLT", "K_LOADER", "K_KW2", "K_CODE_END", "K_IT0", "K_DR0")):
                out.append(("stub", len(stubs))); stubs.append(addr); last = addr; addr += 8
            if l.endswith(":"):
                dead = False
            out.append(l)
            continue
        n = sz[k]; k += 1
        if (addr & 4095) + n + 4 > 4096 and P("WPAGE", 1):
            lab = "K_PG%d" % (addr >> 12)
            out.append("    s_branch " + lab)
            out.append(".p2align 12")
            addr = (addr + 4 + 4095) & ~4095
            if on:
                out.append(("stub", len(stubs))); stubs.append(addr); addr += 8
            last = addr
            out.append(lab + ":")
        elif DF and on and addr - last >= DF and (addr & 4095) < 4096 - 64:
            lab = "K_J%x" % addr
            out.append("    s_branch " + lab)
            out.append(("stub", len(stubs))); stubs.append(addr + 4); last = addr + 4; addr += 12
            out.append(lab + ":")
        out.append(l)
        addr += n
        op = l.split()[0]
        dead = op in ("s_branch", "s_endpgm")
    res = []
    ns = nm
    assert len(stubs) - nm >= 2
    for o in out:
        if isinstance(o, tuple):
            j = o[1]
            if j >= nm:
                if j - nm < 2:
                    res.append("K_CHF%d:" % (j - nm))
                res.append("K_STF%d:" % j)
                res.append("    s_branch " + ("K_STF%d" % (j + 2) if j + 2 < len(stubs) else "K_WRET_F"))
                res.append("    s_nop 0")
                continue
            if j < a0:
                for k in range(4):
                    if min(k, a0 - 1) == j:
                        res.append("K_CHM%d:" % k)
                res.append("K_STM%d:" % j)
                res.append("    s_branch " + ("K_STM%d" % (j + 4) if j + 4 < a0 else "K_WRET_M"))
                res.append("    s_nop 0")
                continue
            for c in "AB":
                if 0 <= j - a0 < 4:
                    res.append("K_CH%s%d:" % (c, j - a0))
                res.append("K_ST%s%d:" % (c, j))
                res.append("    s_branch " + ("K_ST%s%d" % (c, j + 4) if j + 4 < ns else "K_WRET_" + c))
        else:
            res.append(o)
    assert ns >= 4 or not P("WARM", 1)
    cpl = -(-(addr - ENTRY_OFF) // 1024)
    assert cpl <= 64
    print("code bytes", addr - ENTRY_OFF, "stubs", [hex(x) for x in stubs])
    return ["K_CPL = %d" % cpl] + res


def main():
    a = Asm()
    for l in HEADER:
        a.raw(l)
    a.raw("; @launch grid=(256,1,1) block=(512,1,1) lds=%d" % LDS_BYTES)
    a.raw('.amdgcn_target "amdgcn-amd-amdhsa--gfx950"')
    a.raw(".text")
    head = a.lines
    a.lines = []
    v1, s1 = gen(a)
    body = a.lines
    tail = ['.section .rodata,"a"', ".p2align 6", kd(KNAME, v1, s1)]
    a.lines = head + layout(head, body, tail) + tail
    out = sys.argv[1] if len(sys.argv) > 1 else os.path.join(os.path.dirname(os.path.abspath(__file__)), "..", NAME + ".s")
    open(out, "w").write(a.text())
    print("wrote", out, "v%d s%d" % (v1, s1))


if __name__ == "__main__":
    main()
```
